```python
import torch

def _softmax(x, axis=-1):
    return torch.softmax(x, dim=axis)
def _gelu(x):
    return torch.nn.functional.gelu(x, approximate="tanh")
def _silu(x):
    return torch.nn.functional.silu(x)
def _sigmoid(x):
    return torch.sigmoid(x)
def _layernorm(x, axis=-1, eps=1e-5):
    m = x.mean(dim=axis, keepdim=True)
    v = x.var(dim=axis, keepdim=True, unbiased=False)
    return (x - m) / torch.sqrt(v + eps)
def _scatter_add(tgt, idx, src, axis=0):
    return tgt.clone().index_add_(axis, idx, src)
def _segment_sum(src, seg, n):
    out = torch.zeros((n,) + src.shape[1:], dtype=src.dtype)
    return out.index_add_(0, seg, src)
def _pad(x, pw):
    flat = tuple(v for pair in reversed(pw) for v in pair)
    return torch.nn.functional.pad(x, flat)

kernel_name = 'parallel_sum__gqa_block_cached__geglu_ffn__decode'

def setup_inputs():

    _w = (lambda a: (lambda t: t.to(torch.bfloat16) if t.is_floating_point() else t)(torch.as_tensor(a)))
    def _A_setup():
        B, Sq, D = 1, 1, 512
        Hq, Hkv, Sk, Dh = 32, 32, 4096, 128
        assert Hq % Hkv == 0, (Hq, Hkv)
        return {
            "x": _w((lambda *s: torch.randn(*s, dtype=torch.bfloat16) * 0.05)(B, Sq, D)),
            "k_cache": _w((lambda *s: torch.randn(*s, dtype=torch.bfloat16) * 3.2)(B, Hkv, Sk, Dh)),
            "v_cache": _w((lambda *s: torch.randn(*s, dtype=torch.bfloat16) * 1.6)(B, Hkv, Sk, Dh)),
            "wq": _w((lambda *s: torch.randn(*s, dtype=torch.bfloat16) * 3.2)(D, Hq * Dh) * (D ** -0.5)),
            "wo": _w((lambda *s: torch.randn(*s, dtype=torch.bfloat16) * 1.6)(Hq * Dh, D) * ((Hq * Dh) ** -0.5)),
        }
    _A_in = _A_setup()

    def _B_setup():
        B, S, D, F = 1, 1, 512, 1376
        return {
            "x": _w((lambda *s: torch.randn(*s, dtype=torch.bfloat16) * 0.05)(B, S, D)),
            "w_gate": _w((lambda *s: torch.randn(*s, dtype=torch.bfloat16) * 0.05)(D, F)),
            "w_up": _w((lambda *s: torch.randn(*s, dtype=torch.bfloat16) * 0.05)(D, F)),
            "w_down": _w((lambda *s: torch.randn(*s, dtype=torch.bfloat16) * 0.05)(F, D)),
        }
    _B_in = _B_setup()

    return {
        "A_x": _A_in["x"],
        "A_k_cache": _A_in["k_cache"],
        "A_v_cache": _A_in["v_cache"],
        "A_wq": _A_in["wq"],
        "A_wo": _A_in["wo"],
        "B_x": _B_in["x"],
        "B_w_gate": _B_in["w_gate"],
        "B_w_up": _B_in["w_up"],
        "B_w_down": _B_in["w_down"],
    }

def reference(A_x, A_k_cache, A_v_cache, A_wq, A_wo, B_x, B_w_gate, B_w_up, B_w_down):
    def _A_ref(x, k_cache, v_cache, wq, wo):
        B, Sq, D = x.shape
        Hq, Dh = 32, 128
        Hkv = k_cache.shape[1]
        rep = Hq // Hkv
        q = (lambda x, *d: x.permute(*d))((x @ wq).reshape(B, Sq, Hq, Dh), 0, 2, 1, 3)
        k = (lambda x, n, axis: torch.repeat_interleave(x, n, dim=axis))(k_cache, rep, axis=1)
        v = (lambda x, n, axis: torch.repeat_interleave(x, n, dim=axis))(v_cache, rep, axis=1)
        scores = torch.einsum("bhqd,bhkd->bhqk", q, k) * (Dh ** -0.5)
        p = _softmax(scores, axis=-1)
        o = torch.einsum("bhqk,bhkd->bhqd", p, v)
        return (lambda x, *d: x.permute(*d))(o, 0, 2, 1, 3).reshape(B, Sq, Hq * Dh) @ wo

    def _B_ref(x, w_gate, w_up, w_down):
        return (_gelu(x @ w_gate) * (x @ w_up)) @ w_down

    x = A_x
    xn = _layernorm(x, axis=-1)
    return x + _A_ref(xn, A_k_cache, A_v_cache, A_wq, A_wo) + _B_ref(xn, B_w_gate, B_w_up, B_w_down)
```

```python
import sys

NAME = "parallel_sum__gqa_block_cached__geglu_ffn__decode"

WS_EPOCH = 0x0
WS_HINT = 0x4000
WS_Q = 0x10000
WS_G = 0x50000
WS_ML = 0x90000
WS_O = 0xA0000
WS_Y = 0xE0000
WS_STAMP = 0x8000000
L_Q = 0x000
L_H = 0x100
L_OB = 0x200
L_FLAG = 0x300
L_ML = 0x340
L_OS = 0x400
L_W = 0x2000
LDS_BYTES = 98304
SPIN_MAX = 1 << 20

LOG2E = 0x3FB8AA3B
SCALE = 0x3DB504F3
EPS = 0x3727C5AC
INV512 = 0x3B000000
GELU_K1 = 0x3D372713
GELU_C = 0xC0135761


class Gen:
    def __init__(self, diag=False, **opt):
        self.L = []
        self.diag = diag
        self.opt = opt

    def A(self, s):
        for line in s.split("\n"):
            line = line.strip()
            if line:
                self.L.append(line)

    def nop(self, n):
        if n > 0:
            self.A(f"s_nop {n-1}")

    def stamp(self, i):
        if self.diag:
            self.A(f"s_memrealtime s[{64+2*i}:{65+2*i}]")

    def dump_stamps(self, first, n):
        if not self.diag:
            return
        A = self.A
        A("s_waitcnt lgkmcnt(0)")
        A("s_mov_b64 exec, 1")
        A(f"s_lshl_b32 s48, s2, 7")
        A(f"s_add_u32 s48, s48, {WS_STAMP + 8*first}")
        A("v_mov_b32 v1, s48")
        for k in range(n):
            A(f"v_mov_b32 v2, s{64+2*k}")
            A(f"v_mov_b32 v3, s{65+2*k}")
            A(f"global_store_dwordx2 v1, v[2:3], s[26:27] offset:{8*k}")
            A("s_nop 1")

    def row_allreduce(self, op, v, steps=("row_ror:8", "row_ror:4", "row_ror:2", "row_ror:1")):
        for st in steps:
            self.nop(2)
            self.A(f"{op}_dpp v{v}, v{v}, v{v} {st} row_mask:0xf bank_mask:0xf")

    def wave_reduce_to_sgpr(self, op, v, s):
        self.row_allreduce(op, v)
        self.nop(2)
        self.A(f"{op}_dpp v{v}, v{v}, v{v} row_bcast:15 row_mask:0xa bank_mask:0xf")
        self.nop(2)
        self.A(f"{op}_dpp v{v}, v{v}, v{v} row_bcast:31 row_mask:0xc bank_mask:0xf")
        self.nop(1)
        self.A(f"v_readlane_b32 s{s}, v{v}, 63")

    def oct_allreduce(self, op, v):
        self.row_allreduce(op, v, ("quad_perm:[1,0,3,2]", "quad_perm:[2,3,0,1]", "row_half_mirror"))

    def round_bf16(self, dst, src):
        self.A(f"v_cvt_pk_bf16_f32 v{dst}, v{src}, v{src}")
        self.A(f"v_and_b32 v{dst}, 0xffff0000, v{dst}")

    def build(self):
        A = self.A
        o = self.opt
        KVPOL = o.get("kvpol", "nt")
        WPOL = o.get("wpol", "nt")
        A(f"; @launch grid=(256,1,1) block=(640,1,1) lds={self.opt.get('lds', LDS_BYTES)}")
        A('.amdgcn_target "amdgcn-amd-amdhsa--gfx950"')
        A(".text")
        A(f".globl {NAME}_kernel")
        A(".p2align 8")
        A(f".type {NAME}_kernel,@function")
        A(f"{NAME}_kernel:")
        self.stamp(0)
        A("""
        s_cmp_ge_u32 s2, 0x100
        s_cbranch_scc1 L_end
        s_load_dwordx16 s[4:19], s[0:1], 0
        s_load_dwordx8 s[20:27], s[0:1], 64
        v_lshrrev_b32 v1, 6, v0
        v_and_b32 v0, 63, v0
        s_and_b32 s28, s2, 7
        s_lshl_b32 s28, s28, 2
        v_readfirstlane_b32 s3, v1
        s_bfe_u32 s29, s2, 0x20003
        s_add_u32 s28, s28, s29
        s_lshr_b32 s29, s2, 5
        s_lshl_b32 s30, s28, 3
        s_add_u32 s30, s30, s29
        s_mul_i32 s52, s28, 43
        s_add_u32 s53, s52, 43
        s_lshr_b32 s52, s52, 3
        s_lshr_b32 s53, s53, 3
        s_sub_u32 s53, s53, s52
        v_and_b32 v2, 15, v0
        v_lshrrev_b32 v3, 4, v0
        s_cmp_ge_u32 s3, 2
        s_cbranch_scc1 L_kv
        """)
        self.ctrl(WPOL)
        self.kv(KVPOL, WPOL)
        A("L_end:")
        A("s_endpgm")
        A('.section .rodata,"a"')
        A(".p2align 6")
        A(f".amdhsa_kernel {NAME}_kernel")
        A("  .amdhsa_next_free_vgpr 160")
        A("  .amdhsa_next_free_sgpr 102")
        A("  .amdhsa_accum_offset 160")
        A("  .amdhsa_group_segment_fixed_size 0")
        A("  .amdhsa_kernarg_size 96")
        A("  .amdhsa_user_sgpr_count 2")
        A("  .amdhsa_user_sgpr_kernarg_segment_ptr 1")
        A("  .amdhsa_system_sgpr_workgroup_id_x 1")
        A(".end_amdhsa_kernel")
        return "\n".join(self.L) + "\n"

    def ctrl(self, WPOL):
        A = self.A
        A(f"""
        s_setprio {self.opt.get('cprio', 2)}
        s_movk_i32 s48, 2752
        s_mov_b32 s49, 0
        s_sub_u32 s50, s53, 1
        s_cmp_eq_u32 s3, 0
        s_cselect_b32 s48, 0x2000, s48
        s_cselect_b32 s50, 7, s50
        s_lshl_b32 s51, s29, 6
        v_lshl_add_u32 v4, v3, 4, s51
        v_and_b32 v5, 7, v2
        v_min_u32 v5, s50, v5
        v_mul_lo_u32 v6, v4, s48
        v_lshl_add_u32 v6, v5, 4, v6
        v_lshlrev_b32 v4, 1, v4
        v_lshlrev_b32 v5, 4, v0
        v_mov_b32 v7, 0
        v_mov_b32 v20, {L_FLAG}
        v_cmp_gt_u32 vcc, 8, v2
        s_lshl_b32 s54, s28, 8
        s_lshl_b32 s55, s52, 4
        ds_write2_b32 v20, v7, v7 offset0:0 offset1:2
        s_waitcnt lgkmcnt(0)
        {"s_barrier" if self.opt.get("binit", "late") == "early" else ""}
        global_load_dword v21, v7, s[26:27] sc1
        global_load_dwordx4 v[16:19], v5, s[4:5]
        global_load_dwordx4 v[8:11], v4, s[4:5]
        global_load_dwordx4 v[12:15], v4, s[4:5] offset:16
        s_cmp_eq_u32 s3, 0
        s_cbranch_scc0 L_c1_ptr
        s_add_u32 s56, s10, s54
        s_addc_u32 s57, s11, 0
        s_add_u32 s58, s56, 128
        s_addc_u32 s59, s57, 0
        s_branch L_c_ptr_done
        L_c1_ptr:
        s_add_u32 s56, s16, s55
        s_addc_u32 s57, s17, 0
        s_add_u32 s58, s18, s55
        s_addc_u32 s59, s19, 0
        L_c_ptr_done:
        v_mov_b32 v22, s58
        v_mov_b32 v23, s59
        v_mov_b32 v24, s56
        v_mov_b32 v25, s57
        v_cndmask_b32 v22, v22, v24, vcc
        v_cndmask_b32 v23, v23, v25, vcc
        v_lshl_add_u64 v[22:23], v[6:7], 0, v[22:23]
        """)
        if self.opt.get("x_noq"):
            A("s_mov_b32 s48, 0")
        if self.opt.get("x_nog"):
            A("s_cmp_eq_u32 s3, 0")
            A("s_cselect_b32 s48, s48, 0")
        for j in range(16):
            A(f"global_load_dwordx4 v[{64+4*j}:{67+4*j}], v[22:23], off {WPOL}")
            if j < 15:
                A("v_lshl_add_u64 v[22:23], v[22:23], 0, s[48:49]")
        if self.opt.get("binit", "late") == "late":
            A("s_barrier")
        self.stamp(1)
        A("""
        s_lshl_b32 s54, s29, 7
        s_lshl_b32 s55, s28, 2
        s_add_u32 s54, s54, s55
        s_load_dword s33, s[4:5], s54
        """)
        A("""
        v_and_b32 v4, 2, v2
        v_cmp_eq_u32 vcc, 0, v4
        v_mov_b32 v5, 0x01000c0c
        v_mov_b32 v6, 0x0c0c0100
        v_cndmask_b32 v5, v5, v6, vcc
        v_mov_b32 v6, 0x03020c0c
        v_mov_b32 v7, 0x0c0c0302
        v_cndmask_b32 v6, v6, v7, vcc
        v_and_b32 v4, 13, v2
        v_mov_b32 v7, 0x0c0c0c0c
        """)
        for d in range(4):
            A(f"v_cmp_eq_u32 vcc, {4*d}, v4")
            self.nop(2)
            A(f"v_cndmask_b32 v{24+2*d}, v7, v5, vcc")
            A(f"v_cndmask_b32 v{25+2*d}, v7, v6, vcc")
        A("s_waitcnt vmcnt(18)")
        A("v_or_b32 v21, 15, v21")
        A("v_add_u32 v21, 1, v21")
        for k in range(4):
            A(f"v_lshlrev_b32 v{44+2*k}, 16, v{16+k}")
            A(f"v_and_b32 v{45+2*k}, 0xffff0000, v{16+k}")
        A("v_readfirstlane_b32 s31, v21")
        A("""
        v_add_f32 v4, v44, v45
        v_add_f32 v5, v46, v47
        v_add_f32 v6, v48, v49
        v_add_f32 v7, v50, v51
        v_add_f32 v4, v4, v5
        v_add_f32 v6, v6, v7
        v_add_f32 v4, v4, v6
        """)
        self.wave_reduce_to_sgpr("v_add_f32", 4, 54)
        A(f"v_mov_b32 v5, {INV512}")
        self.nop(1)
        A("v_mul_f32 v20, s54, v5")
        for k in range(8):
            A(f"v_sub_f32 v{44+k}, v{44+k}, v20")
        A("v_mul_f32 v4, v44, v44")
        for k in range(1, 8):
            A(f"v_fmac_f32 v4, v{44+k}, v{44+k}")
        self.wave_reduce_to_sgpr("v_add_f32", 4, 54)
        self.round_bf16(20, 20)
        A("v_mul_f32 v4, s54, v5")
        self.round_bf16(4, 4)
        A(f"v_add_f32 v4, {EPS}, v4")
        self.round_bf16(4, 4)
        A("v_sqrt_f32 v4, v4")
        self.nop(1)
        self.round_bf16(4, 4)
        A("v_rcp_f32 v6, v4")
        A("v_mov_b32 v21, v20")
        A("v_mov_b32 v5, v4")
        A("v_mov_b32 v7, v6")
        A("s_waitcnt vmcnt(16)")
        for k in range(8):
            x = 8 + k
            A(f"""
            v_lshlrev_b32 v44, 16, v{x}
            v_and_b32 v45, 0xffff0000, v{x}
            v_pk_add_f32 v[44:45], v[44:45], v[20:21] neg_lo:[0,1] neg_hi:[0,1]
            v_cvt_pk_bf16_f32 v46, v44, v45
            v_lshlrev_b32 v44, 16, v46
            v_and_b32 v45, 0xffff0000, v46
            v_pk_mul_f32 v[46:47], v[44:45], v[6:7]
            v_pk_fma_f32 v[44:45], v[46:47], v[4:5], v[44:45] neg_lo:[1,0,0] neg_hi:[1,0,0]
            v_pk_fma_f32 v[46:47], v[44:45], v[6:7], v[46:47]
            v_cvt_pk_bf16_f32 v{x}, v46, v47
            """)

        def perms(j):
            a = 32 + 4 * (j & 1)
            for d in range(4):
                A(f"v_perm_b32 v{a+d}, v{8+(j>>1)}, v{8+(j>>1)}, v{24+2*d+(j&1)}")
        perms(0)
        for j in range(16):
            if j < 15:
                perms(j + 1)
            else:
                self.nop(2)
            A(f"s_waitcnt vmcnt({15-j})")
            a = 32 + 4 * (j & 1)
            c = "0" if j == 0 else "v[40:43]"
            A(f"v_mfma_f32_16x16x32_bf16 v[40:43], v[{a}:{a+3}], v[{64+4*j}:{67+4*j}], {c}")
        A(f"""
        s_mul_i32 s54, s3, {WS_G - WS_Q}
        s_add_u32 s54, s54, {WS_Q}
        s_lshl_b32 s55, s30, 10
        s_add_u32 s55, s55, s54
        v_lshl_add_u32 v4, v0, 4, s55
        s_lshl_b32 s55, s28, 13
        s_add_u32 s55, s55, s54
        s_add_u32 s55, s55, 4096
        v_lshl_add_u32 v5, v0, 4, s55
        s_lshl_b32 s54, s28, 8
        s_lshl_b32 s55, s3, 7
        s_add_u32 s54, s54, s55
        s_add_u32 s54, s54, {WS_HINT}
        v_mov_b32 v41, s31
        v_mov_b32 v43, s31
        global_store_dwordx4 v4, v[40:43], s[26:27] sc1
        s_add_u32 s46, s26, s54
        s_addc_u32 s47, s27, 0
        s_lshl_b32 s55, s29, 2
        v_mov_b32 v6, s55
        s_getreg_b32 s44, hwreg(HW_REG_XCC_ID, 0, 4)
        s_or_b32 s44, s44, s31
        v_mov_b32 v7, s44
        s_mov_b64 exec, 1
        global_store_dword v6, v7, s[46:47] sc1
        s_mov_b64 exec, -1
        s_mov_b32 s32, 0
        s_mov_b32 s45, s44
        s_mov_b32 s43, 1
        s_mov_b32 s35, 0
        """)
        self.stamp(2)
        if self.opt.get("x_nopoll"):
            A("s_branch L_qdone")
        if self.opt.get("x_nopoll1"):
            A("s_cmp_eq_u32 s3, 1")
            A("s_cbranch_scc1 L_qdone")
        A(f"""
        L_qhint:
        s_load_dwordx8 s[56:63], s[46:47], 0 glc
        s_add_u32 s32, s32, 1
        s_cmp_ge_u32 s32, {SPIN_MAX}
        s_cbranch_scc1 L_qpoll
        s_waitcnt lgkmcnt(0)
        s_xor_b64 s[56:57], s[56:57], s[44:45]
        s_xor_b64 s[58:59], s[58:59], s[44:45]
        s_xor_b64 s[60:61], s[60:61], s[44:45]
        s_xor_b64 s[62:63], s[62:63], s[44:45]
        s_or_b64 s[56:57], s[56:57], s[58:59]
        s_or_b64 s[60:61], s[60:61], s[62:63]
        s_or_b64 s[56:57], s[56:57], s[60:61]
        s_or_b32 s43, s56, s57
        s_cmp_lt_u32 s43, 16
        s_cbranch_scc1 L_qpoll
        s_sleep {self.opt.get("hintsleep", 4)}
        s_branch L_qhint
        """)
        A("L_qpoll:")
        if self.opt.get("x_hintonly"):
            A("s_branch L_qdone")
        if self.diag:
            A("s_add_u32 s35, s35, 1")
        for k in range(8):
            A(f"global_load_dwordx4 v[{64+4*k}:{67+4*k}], v5, s[26:27] offset:{1024*k-4096} sc1")
        A("s_add_u32 s32, s32, 1")
        for k in range(8):
            r = 64 + 4 * k
            A(f"s_waitcnt vmcnt({7-k})")
            if k == 0:
                A(f"v_xor_b32 v6, s31, v{r+1}")
                A(f"v_mov_b32 v44, v{r}")
                A(f"v_mov_b32 v45, v{r+2}")
            else:
                A(f"v_bitop3_b32 v6, v{r+1}, s31, v6 bitop3:0xbe")
                A(f"v_add_f32 v44, v44, v{r}")
                A(f"v_add_f32 v45, v45, v{r+2}")
            A(f"v_bitop3_b32 v6, v{r+3}, s31, v6 bitop3:0xbe")
        A(f"""
        v_cmp_ne_u32 vcc, 0, v6
        s_cbranch_vccz L_qdone
        s_cmp_lt_u32 s32, {SPIN_MAX}
        s_cbranch_scc1 L_qhint
        L_qdone:
        v_cvt_pk_bf16_f32 v44, v44, v45
        v_lshlrev_b32 v22, 4, v2
        v_lshl_add_u32 v22, v3, 2, v22
        s_cmp_eq_u32 s3, 0
        s_cbranch_scc1 L_c0
        """)
        A(f"""
        v_mov_b32_dpp v45, v44 row_ror:8 row_mask:0xf bank_mask:0xf
        v_lshlrev_b32 v46, 16, v44
        v_and_b32 v47, 0xffff0000, v44
        v_mov_b32 v50, {GELU_K1}
        v_mul_f32 v48, v46, v46
        v_mul_f32 v49, v47, v47
        v_mul_f32 v48, v48, v46
        v_mul_f32 v49, v49, v47
        v_fma_f32 v48, v48, v50, v46
        v_fma_f32 v49, v49, v50, v47
        v_mul_f32 v48, {GELU_C}, v48
        v_mul_f32 v49, {GELU_C}, v49
        v_exp_f32 v48, v48
        v_exp_f32 v49, v49
        s_nop 0
        v_add_f32 v48, 1.0, v48
        v_add_f32 v49, 1.0, v49
        v_rcp_f32 v48, v48
        v_rcp_f32 v49, v49
        s_nop 0
        v_mul_f32 v46, v46, v48
        v_mul_f32 v47, v47, v49
        v_cvt_pk_bf16_f32 v44, v46, v47
        v_lshlrev_b32 v46, 16, v44
        v_and_b32 v47, 0xffff0000, v44
        v_lshlrev_b32 v48, 16, v45
        v_and_b32 v49, 0xffff0000, v45
        v_cmp_gt_u32 vcc, s53, v2
        v_mul_f32 v46, v46, v48
        v_mul_f32 v47, v47, v49
        v_cvt_pk_bf16_f32 v44, v46, v47
        v_cndmask_b32 v44, 0, v44, vcc
        ds_write_b32 v22, v44 offset:{L_H}
        s_waitcnt lgkmcnt(0)
        s_endpgm
        """)
        A(f"""
        L_c0:
        v_mov_b32 v20, {L_FLAG}
        v_mov_b32 v6, 1
        v_mov_b32 v7, s31
        ds_write_b32 v22, v44 offset:{L_Q}
        ds_write_b64 v20, v[6:7]
        """)
        self.stamp(3)
        A(f"""
        v_and_b32 v23, 7, v0
        v_lshlrev_b32 v4, 3, v23
        s_lshl_b32 s54, s30, 7
        s_add_u32 s54, s54, {WS_ML}
        v_mov_b32 v24, s54
        s_lshl_b32 s54, s28, 10
        s_add_u32 s54, s54, {WS_ML}
        v_lshl_add_u32 v25, v23, 7, s54
        s_lshl_b32 s54, s30, 10
        s_add_u32 s54, s54, {WS_O}
        v_lshl_add_u32 v26, v0, 4, s54
        s_lshl_b32 s54, s28, 13
        s_add_u32 s54, s54, {WS_O + 4096}
        v_lshl_add_u32 v27, v0, 4, s54
        s_sub_u32 s54, s54, {4096 - 1020}
        v_lshl_add_u32 v23, v23, 10, s54
        s_lshl_b32 s54, s29, 15
        s_lshl_b32 s55, s28, 5
        s_add_u32 s54, s54, s55
        s_add_u32 s54, s54, {WS_Y}
        v_lshrrev_b32 v5, 1, v0
        v_lshlrev_b32 v5, 10, v5
        v_and_b32 v6, 1, v0
        v_lshl_add_u32 v5, v6, 4, v5
        v_add_u32 v28, s54, v5
        s_lshl_b32 s54, s29, 7
        s_lshl_b32 s55, s28, 2
        s_add_u32 s54, s54, s55
        v_lshl_add_u32 v29, v0, 1, s54
        v_lshlrev_b32 v30, 3, v0
        v_mov_b32 v31, {LOG2E}
        v_cmp_eq_u32 vcc, 0, v6
        s_waitcnt lgkmcnt(0)
        s_lshl_b32 s54, s33, 16
        s_and_b32 s55, s33, 0xffff0000
        v_mov_b32 v20, s55
        v_mov_b32 v21, s54
        v_cndmask_b32 v20, v20, v21, vcc
        s_barrier
        """)
        self.stamp(4)
        A(f"""
        ds_read_b64 v[8:9], v4 offset:{L_ML}
        s_waitcnt lgkmcnt(0)
        v_mov_b32 v12, v8
        """)
        self.oct_allreduce("v_max_f32", 12)
        A("""
        v_sub_f32 v8, v8, v12
        v_mul_f32 v8, v8, v31
        v_exp_f32 v8, v8
        v_mov_b32 v13, s31
        v_mul_f32 v14, v8, v9
        """)
        self.oct_allreduce("v_add_f32", 14)
        A(f"""
        v_mov_b32 v15, s31
        {"s_mov_b32 s43, 1" if self.opt.get("nolocal") else ""}
        s_mov_b64 exec, 1
        s_cmp_eq_u32 s43, 0
        s_cbranch_scc1 L_ml_local
        global_store_dwordx4 v24, v[12:15], s[26:27] sc1
        s_branch L_ml_done
        L_ml_local:
        global_store_dwordx4 v24, v[12:15], s[26:27]
        L_ml_done:
        s_mov_b64 exec, -1
        v_mov_b32 v41, s31
        v_mov_b32 v43, s31
        s_mov_b32 s32, 0
        s_barrier
        """)
        self.stamp(5)
        if self.opt.get("x_notail"):
            self.stamp(6)
            A("s_barrier")
            A("s_branch L_c0_end")
        for k in range(4):
            A(f"ds_read2st64_b64 v[{64+4*k}:{67+4*k}], v30 offset0:{L_OS//512+2*k} offset1:{L_OS//512+2*k+1}")
        A("""
        s_waitcnt lgkmcnt(2)
        v_pk_add_f32 v[64:65], v[64:65], v[66:67]
        v_pk_add_f32 v[68:69], v[68:69], v[70:71]
        s_waitcnt lgkmcnt(0)
        v_pk_add_f32 v[72:73], v[72:73], v[74:75]
        v_pk_add_f32 v[76:77], v[76:77], v[78:79]
        v_pk_add_f32 v[64:65], v[64:65], v[68:69]
        v_pk_add_f32 v[72:73], v[72:73], v[76:77]
        v_add_f32 v40, v64, v72
        v_add_f32 v42, v65, v73
        s_cmp_eq_u32 s43, 0
        s_cbranch_scc1 L_o_local
        global_store_dwordx4 v26, v[40:43], s[26:27] sc1
        s_branch L_opoll
        L_o_local:
        global_store_dwordx4 v26, v[40:43], s[26:27]
        L_opoll:
        global_load_dwordx4 v[8:11], v25, s[26:27] sc1
        """)
        for k in range(8):
            A(f"global_load_dwordx4 v[{64+4*k}:{67+4*k}], v27, s[26:27] offset:{1024*k-4096} sc1")
        A("""
        s_add_u32 s32, s32, 1
        s_waitcnt vmcnt(8)
        v_mov_b32 v12, v8
        v_xor_b32 v6, s31, v9
        v_bitop3_b32 v6, v11, s31, v6 bitop3:0xbe
        """)
        self.row_allreduce("v_max_f32", 12, ("quad_perm:[1,0,3,2]",))
        self.row_allreduce("v_max_f32", 12, ("quad_perm:[2,3,0,1]", "row_half_mirror"))
        A("""
        v_sub_f32 v8, v8, v12
        v_mul_f32 v8, v8, v31
        v_exp_f32 v8, v8
        s_nop 0
        v_mul_f32 v14, v8, v10
        """)
        self.oct_allreduce("v_add_f32", 14)
        A("""
        v_rcp_f32 v14, v14
        s_nop 0
        v_mul_f32 v8, v8, v14
        s_nop 0
        """)
        for k in range(8):
            A(f"v_readlane_b32 s{56+k}, v8, {k}")
        for k in range(8):
            r = 64 + 4 * k
            A(f"s_waitcnt vmcnt({7-k})")
            A(f"v_bitop3_b32 v6, v{r+1}, s31, v6 bitop3:0xbe")
            A(f"v_bitop3_b32 v6, v{r+3}, s31, v6 bitop3:0xbe")
            if k == 0:
                A(f"v_mul_f32 v44, s56, v{r}")
                A(f"v_mul_f32 v45, s56, v{r+2}")
            else:
                A(f"v_fmac_f32 v44, s{56+k}, v{r}")
                A(f"v_fmac_f32 v45, s{56+k}, v{r+2}")
        A(f"""
        v_cmp_ne_u32 vcc, 0, v6
        v_cvt_pk_bf16_f32 v44, v44, v45
        s_cbranch_vccz L_odone
        s_mov_b64 vcc, 0xff
        L_oprobe:
        s_mov_b64 exec, vcc
        global_load_dword v8, v23, s[26:27] sc1
        s_add_u32 s32, s32, 1
        s_cmp_ge_u32 s32, {SPIN_MAX}
        s_cbranch_scc1 L_ogiveup
        s_waitcnt vmcnt(0)
        v_cmp_ne_u32 vcc, s31, v8
        s_cbranch_vccnz L_oprobe
        s_mov_b64 exec, -1
        s_branch L_opoll
        L_ogiveup:
        s_mov_b64 exec, -1
        s_waitcnt vmcnt(0)
        L_odone:
        ds_write_b32 v22, v44 offset:{L_OB}
        s_mov_b32 s34, s32
        s_mov_b32 s32, 0
        """)
        self.stamp(6)
        A("""
        s_waitcnt lgkmcnt(0)
        s_barrier
        """)
        A(f"""
        s_mov_b64 vcc, -1
        L_ypoll:
        s_mov_b64 exec, vcc
        global_load_dwordx4 v[8:11], v28, s[26:27] sc1
        s_add_u32 s32, s32, 1
        s_waitcnt vmcnt(0)
        v_xor_b32 v6, s31, v9
        v_bitop3_b32 v6, v11, s31, v6 bitop3:0xbe
        v_cmp_ne_u32 vcc, 0, v6
        s_cbranch_vccz L_ydone
        s_cmp_ge_u32 s32, {SPIN_MAX}
        s_cbranch_scc1 L_ydone
        s_bcnt1_i32_b64 s48, vcc
        s_cmp_le_u32 s48, {self.opt.get("yth", 16)}
        s_cbranch_scc1 L_ypoll
        s_sleep {self.opt.get("ysleep", 4)}
        s_branch L_ypoll
        L_ydone:
        s_mov_b64 exec, -1
        v_permlane32_swap_b32 v8, v10
        s_nop 1
        v_add_f32 v8, v8, v10
        v_mov_b32 v10, v8
        s_nop 1
        v_permlane16_swap_b32 v8, v10
        s_nop 1
        v_add_f32 v8, v8, v10
        """)
        self.row_allreduce("v_add_f32", 8, ("quad_perm:[2,3,0,1]", "row_ror:4", "row_ror:8"))
        self.round_bf16(8, 8)
        A("""
        v_add_f32 v12, v20, v8
        v_mov_b32 v10, v8
        """)
        self.round_bf16(12, 12)
        A("""
        v_permlane32_swap_b32 v8, v10
        s_nop 1
        v_add_f32 v12, v12, v10
        v_cvt_pk_bf16_f32 v12, v12, v12
        s_mov_b64 exec, 3
        global_store_short v29, v12, s[22:23] %s
        s_cmp_lg_u32 s30, 0
        s_cbranch_scc1 L_c0_end
        s_mov_b64 exec, 1
        v_mov_b32 v4, 0
        v_mov_b32 v5, s31
        global_store_dword v4, v5, s[26:27] sc1
        L_c0_end:
        """ % self.opt.get("outpol", ""))
        self.stamp(7)
        self.dump_stamps(0, 8)
        if self.diag:
            A("""
            s_lshl_b32 s34, s34, 10
            s_lshl_b32 s32, s32, 20
            s_or_b32 s35, s35, s34
            s_or_b32 s35, s35, s32
            v_mov_b32 v2, s35
            v_mov_b32 v3, 0
            global_store_dwordx2 v1, v[2:3], s[26:27] offset:120
            """)
        A("s_endpgm")

    def dma(self, WPOL):
        A = self.A
        A(f"""
        s_mov_b32 s56, s12
        s_mov_b32 s57, s13
        s_mov_b32 s58, 0x400000
        s_mov_b32 s59, 0x20000
        s_mov_b32 s44, s20
        s_mov_b32 s45, s21
        s_mov_b32 s46, 1409024
        s_mov_b32 s47, 0x20000
        v_lshrrev_b32 v24, 3, v0
        v_and_b32 v25, 1, v3
        v_lshlrev_b32 v25, 1, v25
        v_and_b32 v26, 7, v0
        v_xor_b32 v25, v25, v26
        v_lshlrev_b32 v25, 4, v25
        v_lshl_add_u32 v25, v24, 10, v25
        v_xor_b32 v26, 64, v25
        s_lshl_b32 s49, s29, 7
        s_lshl_b32 s50, s28, 17
        s_add_u32 s50, s50, s49
        s_lshl_b32 s48, s34, 15
        s_add_u32 s50, s50, s48
        s_lshl_b32 s51, s34, 1
        s_add_u32 s48, s52, s51
        s_lshl_b32 s48, s48, 13
        s_add_u32 s48, s48, s49
        s_add_u32 s49, s48, 0x2000
        s_cmp_lt_u32 s51, s53
        s_cselect_b32 s54, 0, 0x40000000
        v_or_b32 v27, s54, v25
        s_add_u32 s51, s51, 1
        s_cmp_lt_u32 s51, s53
        s_cselect_b32 s54, 0, 0x40000000
        v_or_b32 v28, s54, v26
        s_lshl_b32 s51, s34, 11
        s_add_u32 m0, s51, {L_W + 16384}
        s_lshl_b32 s54, s34, 12
        buffer_load_dwordx4 v27, s[44:47], s48 offen {WPOL} lds
        s_add_u32 m0, s51, {L_W + 16384 + 1024}
        s_nop 0
        buffer_load_dwordx4 v28, s[44:47], s49 offen {WPOL} lds
        """)
        for jj in range(4):
            A(f"s_add_u32 m0, s54, {L_W + 1024*jj}")
            A(f"s_add_u32 s49, s50, {jj*0x2000}")
            A(f"buffer_load_dwordx4 v{25 + (jj & 1)}, s[56:59], s49 offen {WPOL} lds")

    def kv(self, KVPOL, WPOL):
        A = self.A
        pat = self.opt.get("pattern", "wave")
        A("L_kv:")
        A("s_sub_u32 s34, s3, 2")
        A("s_lshl_b32 s48, s28, 20")
        A("s_lshl_b32 s49, s29, 17")
        A("s_add_u32 s48, s48, s49")
        if pat == "wave":
            A("s_lshl_b32 s49, s34, 14")
            step = 1024
        else:
            A("s_lshr_b32 s49, s34, 2")
            A("s_lshl_b32 s49, s49, 16")
            A("s_add_u32 s48, s48, s49")
            A("s_and_b32 s49, s34, 3")
            A("s_lshl_b32 s49, s49, 10")
            step = 4096
        A("""
        s_add_u32 s48, s48, s49
        v_lshl_add_u32 v1, v0, 4, s48
        s_waitcnt lgkmcnt(0)
        s_mov_b32 s36, s6
        s_mov_b32 s37, s7
        s_mov_b32 s38, 0x2000000
        s_mov_b32 s39, 0x20000
        s_mov_b32 s40, s8
        s_mov_b32 s41, s9
        s_mov_b32 s42, 0x2000000
        s_mov_b32 s43, 0x20000
        s_barrier
        """)

        def load(reg, srd, j):
            off = j * step
            if off & ~0xFFF != getattr(self, "_soff", None):
                self._soff = off & ~0xFFF
                A(f"s_mov_b32 s48, {self._soff}")
            A(f"buffer_load_dwordx4 v[{reg}:{reg+3}], v1, {srd}, s48 offen offset:{off & 0xFFF} {KVPOL}")
        dmapos = self.opt.get("dma", "late")
        bs = int(self.opt.get("bsplit", 8))
        kfirst = int(self.opt.get("kfirst", 1))

        def early(tag):
            if dmapos == tag:
                A("s_cmp_ge_u32 s34, 4")
                A("s_cbranch_scc1 L_nodma0")
                self.dma(WPOL)
                A("L_nodma0:")
                self._soff = None
        self._soff = None
        if kfirst:
            A("s_setprio 1")
        early("first")
        for j in range(16):
            load(32 + 4 * j, "s[36:39]", j)
        if kfirst:
            A("s_setprio 0")
        early("mid")
        for j in range(bs):
            load(96 + 4 * j, "s[40:43]", j)
        if bs < 16:
            A("s_cmp_ge_u32 s34, 4")
            A("s_cbranch_scc1 L_vsplit")
            self._soff = None
            for j in range(bs, 16):
                load(96 + 4 * j, "s[40:43]", j)
            A("L_vsplit:")
        early("endA")
        self.stamp(0)
        A(f"""
        v_and_b32 v4, 2, v2
        v_cmp_eq_u32 vcc, 0, v4
        v_mov_b32 v5, 0xffff0000
        v_mov_b32 v6, 0xffff
        v_cndmask_b32 v5, v5, v6, vcc
        v_and_b32 v4, 13, v2
        """)
        for d in range(4):
            A(f"v_cmp_eq_u32 vcc, {4*d}, v4")
            self.nop(2)
            A(f"v_cndmask_b32 v{8+d}, 0, v5, vcc")
        A(f"""
        v_and_b32 v4, 2, v0
        v_cmp_ne_u32 s[50:51], 0, v4
        v_and_b32 v4, 1, v0
        v_cmp_ne_u32 s[54:55], 0, v4
        v_mov_b32 v20, {L_FLAG}
        v_lshlrev_b32 v21, 4, v2
        s_mov_b32 s32, 0
        {"s_branch L_qready" if self.opt.get("x_nospin") else ""}
        L_qwait:
        ds_read_b64 v[22:23], v20
        s_add_u32 s32, s32, 1
        s_waitcnt lgkmcnt(0)
        v_readfirstlane_b32 s48, v22
        v_readfirstlane_b32 s31, v23
        s_cmp_lg_u32 s48, 0
        s_cbranch_scc1 L_qready
        s_sleep 2
        s_cmp_lt_u32 s32, {SPIN_MAX}
        s_cbranch_scc1 L_qwait
        L_qready:
        ds_read_b128 v[4:7], v21 offset:{L_Q}
        s_waitcnt vmcnt(16) lgkmcnt(0)
        s_cmp_lt_u32 s34, 4
        s_cbranch_scc1 L_kready
        s_waitcnt vmcnt({bs})
        L_kready:
        """)
        self.stamp(1)
        for d in range(4):
            for j in range(16):
                r = 32 + 4 * j
                A(f"v_dot2_f32_bf16 v{r}, v{r+d}, v{4+d}, {'0' if d == 0 else 'v%d' % r}")
        P = lambda j: 32 + 4 * j
        for j in range(8):
            A(f"v_add_f32_dpp v{P(j)}, v{P(j)}, v{P(j)} row_ror:8 row_mask:0xf bank_mask:0x3")
        for j in range(8):
            A(f"v_add_f32_dpp v{P(j)}, v{P(j+8)}, v{P(j+8)} row_ror:8 row_mask:0xf bank_mask:0xc")
        for j in range(4):
            A(f"v_add_f32_dpp v{P(j)}, v{P(j)}, v{P(j)} row_shl:4 row_mask:0xf bank_mask:0x5")
        for j in range(4):
            A(f"v_add_f32_dpp v{P(j)}, v{P(j+4)}, v{P(j+4)} row_shr:4 row_mask:0xf bank_mask:0xa")
        for j in range(2):
            A(f"v_cndmask_b32 v{16+j}, v{P(j)}, v{P(j+2)}, s[50:51]")
            A(f"v_cndmask_b32 v{18+j}, v{P(j+2)}, v{P(j)}, s[50:51]")
        self.nop(1)
        A("v_add_f32_dpp v16, v18, v16 quad_perm:[2,3,0,1] row_mask:0xf bank_mask:0xf")
        A("v_add_f32_dpp v17, v19, v17 quad_perm:[2,3,0,1] row_mask:0xf bank_mask:0xf")
        A("v_cndmask_b32 v19, v17, v16, s[54:55]")
        A("v_cndmask_b32 v18, v16, v17, s[54:55]")
        self.nop(1)
        A("v_add_f32_dpp v16, v19, v18 quad_perm:[1,0,3,2] row_mask:0xf bank_mask:0xf")
        self.round_bf16(16, 16)
        A(f"v_mul_f32 v16, {SCALE}, v16")
        self.round_bf16(16, 16)
        A("v_mov_b32 v17, v16")
        self.wave_reduce_to_sgpr("v_max_f32", 17, 49)
        A(f"""
        v_mov_b32 v31, {LOG2E}
        s_nop 0
        v_subrev_f32 v17, s49, v16
        v_mul_f32 v17, v17, v31
        v_exp_f32 v17, v17
        s_nop 0
        """)
        self.row_allreduce("v_add_f32", 17)
        self.nop(2)
        A("v_add_f32_dpp v17, v17, v17 row_bcast:15 row_mask:0xa bank_mask:0xf")
        self.nop(2)
        A("v_add_f32_dpp v17, v17, v17 row_bcast:31 row_mask:0xc bank_mask:0xf")
        A(f"""
        s_lshl_b32 s48, s34, 3
        v_mov_b32 v18, s48
        v_mov_b32 v19, s49
        s_mov_b32 exec_lo, 0
        s_mov_b32 exec_hi, 0x80000000
        ds_write2_b32 v18, v19, v17 offset0:{L_ML//4} offset1:{L_ML//4+1}
        s_mov_b64 exec, -1
        """)
        self.stamp(2)
        A(f"""
        v_and_b32 v18, 7, v0
        v_lshlrev_b32 v18, 3, v18
        s_waitcnt lgkmcnt(0)
        s_barrier
        ds_read_b32 v17, v18 offset:{L_ML}
        """)
        if bs < 16:
            A("s_cmp_lt_u32 s34, 4")
            A("s_cbranch_scc1 L_vdone")
            A("s_setprio 1")
            self._soff = None
            for j in range(bs, 16):
                load(96 + 4 * j, "s[40:43]", j)
            A("L_vdone:")
        self.stamp(3)
        A("s_waitcnt lgkmcnt(0)")
        self.oct_allreduce("v_max_f32", 17)
        A(f"""
        v_sub_f32 v17, v16, v17
        v_mul_f32 v17, v17, v31
        v_exp_f32 v17, v17
        s_lshl_b32 s48, s34, 9
        s_add_u32 s48, s48, {L_OS}
        v_lshl_add_u32 v18, v0, 3, s48
        v_cvt_pk_bf16_f32 v17, v17, v17
        """)
        self.nop(2)
        for j in range(16):
            for d in range(4):
                A(f"v_and_b32_dpp v{32+4*j+d}, v17, v{8+d} row_newbcast:{j} row_mask:0xf bank_mask:0xf")
        if self.opt.get("diagwave", 7) >= 4:
            self.stamp(6)
        A("s_cmp_ge_u32 s34, 4")
        A("s_cbranch_scc1 L_pv_b")
        A(f"s_waitcnt vmcnt({6 if dmapos == 'endA' else 0})")
        for j in range(16):
            c = "0" if j == 0 else "v[12:15]"
            A(f"v_mfma_f32_16x16x32_bf16 v[12:15], v[{32+4*j}:{35+4*j}], v[{96+4*j}:{99+4*j}], {c}")
        if dmapos == "late":
            self.dma(WPOL)
        A("s_branch L_pv_done")
        A("L_pv_b:")
        for j in range(16):
            A(f"s_waitcnt vmcnt({15-j})")
            if j == 15:
                self.stamp(5)
            c = "0" if j == 0 else "v[12:15]"
            A(f"v_mfma_f32_16x16x32_bf16 v[12:15], v[{32+4*j}:{35+4*j}], v[{96+4*j}:{99+4*j}], {c}")
        A("""
        L_pv_done:
        s_nop 7
        ds_write2_b32 v18, v12, v14 offset0:0 offset1:1
        s_waitcnt lgkmcnt(0)
        s_barrier
        """)
        self.stamp(4)
        A("s_cmp_ge_u32 s34, 4")
        A("s_cbranch_scc1 L_kv_end")
        A(f"""
        v_bfe_u32 v24, v2, 3, 1
        v_and_b32 v25, 1, v3
        v_lshl_add_u32 v24, v25, 1, v24
        v_xor_b32 v24, s34, v24
        v_lshlrev_b32 v24, 5, v24
        v_lshl_add_u32 v24, v3, 10, v24
        v_lshrrev_b32 v25, 2, v2
        v_lshl_add_u32 v24, v25, 7, v24
        v_and_b32 v25, 3, v2
        v_lshl_add_u32 v24, v25, 3, v24
        v_lshlrev_b32 v27, 4, v3
        v_mov_b32 v25, {L_FLAG + 8}
        v_mov_b32 v26, 1
        ds_read_b128 v[48:51], v27 offset:{L_H}
        ds_read_b128 v[52:55], v27 offset:{L_H + 64}
        s_lshl_b32 s48, s29, 15
        s_lshl_b32 s49, s28, 10
        s_add_u32 s48, s48, s49
        s_lshl_b32 s49, s34, 8
        s_add_u32 s48, s48, s49
        s_add_u32 s48, s48, {WS_Y}
        v_lshl_add_u32 v29, v0, 4, s48
        s_mov_b32 s32, 0
        s_mov_b64 exec, 1
        s_waitcnt vmcnt(0)
        ds_add_u32 v25, v26
        s_mov_b64 exec, -1
        L_wwait:
        ds_read_b32 v26, v25
        s_add_u32 s32, s32, 1
        s_waitcnt lgkmcnt(0)
        v_readfirstlane_b32 s48, v26
        s_cmp_ge_u32 s48, 4
        s_cbranch_scc1 L_wready
        s_cmp_lt_u32 s32, {SPIN_MAX}
        s_cbranch_scc1 L_wwait
        L_wready:
        """)
        for kk in range(2):
            A(f"ds_read_b64_tr_b16 v[{112+4*kk}:{113+4*kk}], v24 offset:{L_W + 16384 + 4096*kk}")
            A(f"ds_read_b64_tr_b16 v[{114+4*kk}:{115+4*kk}], v24 offset:{L_W + 16384 + 4096*kk + 512}")
        for kk in range(4):
            A(f"ds_read_b64_tr_b16 v[{96+4*kk}:{97+4*kk}], v24 offset:{L_W + 4096*kk}")
            A(f"ds_read_b64_tr_b16 v[{98+4*kk}:{99+4*kk}], v24 offset:{L_W + 4096*kk + 512}")
        A("""
        s_waitcnt lgkmcnt(8)
        v_mfma_f32_16x16x32_bf16 v[20:23], v[48:51], v[112:115], 0
        v_mfma_f32_16x16x32_bf16 v[20:23], v[52:55], v[116:119], v[20:23]
        v_mov_b32 v5, s31
        v_mov_b32 v7, s31
        s_nop 5
        v_mov_b32 v6, v20
        s_waitcnt lgkmcnt(0)
        """)
        self.stamp(6)
        A("s_barrier")
        for kk in range(4):
            A(f"ds_read_b128 v[{32+4*kk}:{35+4*kk}], v27 offset:{L_OB + 64*kk}")
        for kk in range(4):
            A(f"s_waitcnt lgkmcnt({3-kk})")
            c = "0" if kk == 0 else "v[16:19]"
            A(f"v_mfma_f32_16x16x32_bf16 v[16:19], v[{32+4*kk}:{35+4*kk}], v[{96+4*kk}:{99+4*kk}], {c}")
        A("""
        s_nop 6
        s_mov_b64 exec, 0xffff
        v_mov_b32 v4, v16
        global_store_dwordx4 v29, v[4:7], s[26:27] sc1
        L_kv_end:
        """)
        if self.diag:
            A("s_cmp_lg_u32 s34, %d" % self.opt.get("diagwave", 7))
            A("s_cbranch_scc1 L_end")
            if self.opt.get("diagwave", 7) < 4:
                self.stamp(5)
            self.dump_stamps(8, 7)


if __name__ == "__main__":
    out = sys.argv[1] if len(sys.argv) > 1 else "k1.s"
    opts = dict(a.split("=") for a in sys.argv[2:])
    diag = bool(int(opts.pop("diag", "0")))
    if "diagwave" in opts:
        opts["diagwave"] = int(opts["diagwave"])
    open(out, "w").write(Gen(diag, **opts).build())
```

```python
import sys

NAME = "parallel_sum__gqa_block_cached__geglu_ffn__decode"

WS_EPOCH = 0x0
WS_HINT = 0x4000
WS_Q = 0x10000
WS_G = 0x50000
WS_ML = 0x90000
WS_O = 0xA0000
WS_Y = 0xE0000
WS_STAMP = 0x8000000
L_Q = 0x000
L_H = 0x100
L_OB = 0x200
L_FLAG = 0x300
L_ML = 0x340
L_OS = 0x400
L_W = 0x2000
LDS_BYTES = 98304
SPIN_MAX = 1 << 20

LOG2E = 0x3FB8AA3B
SCALE = 0x3DB504F3
EPS = 0x3727C5AC
INV512 = 0x3B000000
GELU_K1 = 0x3D372713
GELU_C = 0xC0135761


class Gen:
    def __init__(self, diag=False, **opt):
        self.L = []
        self.diag = diag
        self.opt = opt

    def A(self, s):
        for line in s.split("\n"):
            line = line.strip()
            if line:
                self.L.append(line)

    def nop(self, n):
        if n > 0:
            self.A(f"s_nop {n-1}")

    def stamp(self, i):
        if self.diag:
            self.A(f"s_memrealtime s[{64+2*i}:{65+2*i}]")

    def dump_stamps(self, first, n):
        if not self.diag:
            return
        A = self.A
        A("s_waitcnt lgkmcnt(0)")
        A("s_mov_b64 exec, 1")
        if self.opt.get("dbgstamp"):
            A("v_mov_b32 v1, 0")
            if first == 0:
                A("s_not_b32 s48, s64")
                A("v_mov_b32 v2, s48")
                A("global_atomic_umax v1, v2, s[24:25] offset:60 sc1")
            for k in range(n):
                if first + k < 15:
                    A(f"v_mov_b32 v2, s{64+2*k}")
                    A(f"global_atomic_umax v1, v2, s[24:25] offset:{4*(first+k)} sc1")
        A(f"s_lshl_b32 s48, s2, 7")
        A(f"s_add_u32 s48, s48, {WS_STAMP + 8*first}")
        A("v_mov_b32 v1, s48")
        for k in range(n):
            A(f"v_mov_b32 v2, s{64+2*k}")
            A(f"v_mov_b32 v3, s{65+2*k}")
            A(f"global_store_dwordx2 v1, v[2:3], s[26:27] offset:{8*k}")
            A("s_nop 1")

    def row_allreduce(self, op, v, steps=("row_ror:8", "row_ror:4", "row_ror:2", "row_ror:1")):
        for st in steps:
            self.nop(2)
            self.A(f"{op}_dpp v{v}, v{v}, v{v} {st} row_mask:0xf bank_mask:0xf")

    def wave_reduce_to_sgpr(self, op, v, s):
        self.row_allreduce(op, v)
        self.nop(2)
        self.A(f"{op}_dpp v{v}, v{v}, v{v} row_bcast:15 row_mask:0xa bank_mask:0xf")
        self.nop(2)
        self.A(f"{op}_dpp v{v}, v{v}, v{v} row_bcast:31 row_mask:0xc bank_mask:0xf")
        self.nop(1)
        self.A(f"v_readlane_b32 s{s}, v{v}, 63")

    def oct_allreduce(self, op, v):
        self.row_allreduce(op, v, ("quad_perm:[1,0,3,2]", "quad_perm:[2,3,0,1]", "row_half_mirror"))

    def round_bf16(self, dst, src):
        self.A(f"v_cvt_pk_bf16_f32 v{dst}, v{src}, v{src}")
        self.A(f"v_and_b32 v{dst}, 0xffff0000, v{dst}")

    def build(self):
        A = self.A
        o = self.opt
        KVPOL = o.get("kvpol", "nt")
        WPOL = o.get("wpol", "nt")
        A(f"; @launch grid=(256,1,1) block=(640,1,1) lds={self.opt.get('lds', LDS_BYTES)}")
        A('.amdgcn_target "amdgcn-amd-amdhsa--gfx950"')
        A(".text")
        A(f".globl {NAME}_kernel")
        A(".p2align 8")
        A(f".type {NAME}_kernel,@function")
        A(f"{NAME}_kernel:")
        self.stamp(0)
        A("""
        s_cmp_ge_u32 s2, 0x100
        s_cbranch_scc1 L_end
        s_load_dwordx16 s[4:19], s[0:1], 0
        s_load_dwordx8 s[20:27], s[0:1], 64
        v_lshrrev_b32 v1, 6, v0
        v_and_b32 v0, 63, v0
        s_and_b32 s28, s2, 7
        s_lshl_b32 s28, s28, 2
        v_readfirstlane_b32 s3, v1
        s_bfe_u32 s29, s2, 0x20003
        s_add_u32 s28, s28, s29
        s_lshr_b32 s29, s2, 5
        s_lshl_b32 s30, s28, 3
        s_add_u32 s30, s30, s29
        s_mul_i32 s52, s28, 43
        s_add_u32 s53, s52, 43
        s_lshr_b32 s52, s52, 3
        s_lshr_b32 s53, s53, 3
        s_sub_u32 s53, s53, s52
        v_and_b32 v2, 15, v0
        v_lshrrev_b32 v3, 4, v0
        s_cmp_ge_u32 s3, 2
        s_cbranch_scc1 L_kv
        """)
        self.ctrl(WPOL)
        self.kv(KVPOL, WPOL)
        A("L_end:")
        A("s_endpgm")
        A('.section .rodata,"a"')
        A(".p2align 6")
        A(f".amdhsa_kernel {NAME}_kernel")
        A("  .amdhsa_next_free_vgpr 160")
        A("  .amdhsa_next_free_sgpr 102")
        A("  .amdhsa_accum_offset 160")
        A("  .amdhsa_group_segment_fixed_size 0")
        A("  .amdhsa_kernarg_size 96")
        A("  .amdhsa_user_sgpr_count 2")
        A("  .amdhsa_user_sgpr_kernarg_segment_ptr 1")
        A("  .amdhsa_system_sgpr_workgroup_id_x 1")
        A(".end_amdhsa_kernel")
        return "\n".join(self.L) + "\n"

    def ctrl(self, WPOL):
        A = self.A
        A(f"""
        s_setprio {self.opt.get('cprio', 2)}
        s_movk_i32 s48, 2752
        s_mov_b32 s49, 0
        s_sub_u32 s50, s53, 1
        s_cmp_eq_u32 s3, 0
        s_cselect_b32 s48, 0x2000, s48
        s_cselect_b32 s50, 7, s50
        s_lshl_b32 s51, s29, 6
        v_lshl_add_u32 v4, v3, 4, s51
        v_and_b32 v5, 7, v2
        v_min_u32 v5, s50, v5
        v_mul_lo_u32 v6, v4, s48
        v_lshl_add_u32 v6, v5, 4, v6
        v_lshlrev_b32 v4, 1, v4
        v_lshlrev_b32 v5, 4, v0
        v_mov_b32 v7, 0
        v_mov_b32 v20, {L_FLAG}
        v_cmp_gt_u32 vcc, 8, v2
        s_lshl_b32 s54, s28, 8
        s_lshl_b32 s55, s52, 4
        ds_write2_b32 v20, v7, v7 offset0:0 offset1:2
        s_waitcnt lgkmcnt(0)
        {"s_barrier" if self.opt.get("binit", "late") == "early" else ""}
        global_load_dword v21, v7, s[26:27] sc1
        global_load_dwordx4 v[16:19], v5, s[4:5]
        global_load_dwordx4 v[8:11], v4, s[4:5]
        global_load_dwordx4 v[12:15], v4, s[4:5] offset:16
        s_cmp_eq_u32 s3, 0
        s_cbranch_scc0 L_c1_ptr
        s_add_u32 s56, s10, s54
        s_addc_u32 s57, s11, 0
        s_add_u32 s58, s56, 128
        s_addc_u32 s59, s57, 0
        s_branch L_c_ptr_done
        L_c1_ptr:
        s_add_u32 s56, s16, s55
        s_addc_u32 s57, s17, 0
        s_add_u32 s58, s18, s55
        s_addc_u32 s59, s19, 0
        L_c_ptr_done:
        v_mov_b32 v22, s58
        v_mov_b32 v23, s59
        v_mov_b32 v24, s56
        v_mov_b32 v25, s57
        v_cndmask_b32 v22, v22, v24, vcc
        v_cndmask_b32 v23, v23, v25, vcc
        v_lshl_add_u64 v[22:23], v[6:7], 0, v[22:23]
        """)
        if self.opt.get("x_noq"):
            A("s_mov_b32 s48, 0")
        if self.opt.get("x_nog"):
            A("s_cmp_eq_u32 s3, 0")
            A("s_cselect_b32 s48, s48, 0")
        for j in range(16):
            A(f"global_load_dwordx4 v[{64+4*j}:{67+4*j}], v[22:23], off {WPOL}")
            if j < 15:
                A("v_lshl_add_u64 v[22:23], v[22:23], 0, s[48:49]")
        if self.opt.get("binit", "late") == "late":
            A("s_barrier")
        self.stamp(1)
        A("""
        s_lshl_b32 s54, s29, 7
        s_lshl_b32 s55, s28, 2
        s_add_u32 s54, s54, s55
        s_load_dword s33, s[4:5], s54
        """)
        A("""
        v_and_b32 v4, 2, v2
        v_cmp_eq_u32 vcc, 0, v4
        v_mov_b32 v5, 0x01000c0c
        v_mov_b32 v6, 0x0c0c0100
        v_cndmask_b32 v5, v5, v6, vcc
        v_mov_b32 v6, 0x03020c0c
        v_mov_b32 v7, 0x0c0c0302
        v_cndmask_b32 v6, v6, v7, vcc
        v_and_b32 v4, 13, v2
        v_mov_b32 v7, 0x0c0c0c0c
        """)
        for d in range(4):
            A(f"v_cmp_eq_u32 vcc, {4*d}, v4")
            self.nop(2)
            A(f"v_cndmask_b32 v{24+2*d}, v7, v5, vcc")
            A(f"v_cndmask_b32 v{25+2*d}, v7, v6, vcc")
        A("s_waitcnt vmcnt(18)")
        A("v_or_b32 v21, 15, v21")
        A("v_add_u32 v21, 1, v21")
        for k in range(4):
            A(f"v_lshlrev_b32 v{44+2*k}, 16, v{16+k}")
            A(f"v_and_b32 v{45+2*k}, 0xffff0000, v{16+k}")
        A("v_readfirstlane_b32 s31, v21")
        A("""
        v_add_f32 v4, v44, v45
        v_add_f32 v5, v46, v47
        v_add_f32 v6, v48, v49
        v_add_f32 v7, v50, v51
        v_add_f32 v4, v4, v5
        v_add_f32 v6, v6, v7
        v_add_f32 v4, v4, v6
        """)
        self.wave_reduce_to_sgpr("v_add_f32", 4, 54)
        A(f"v_mov_b32 v5, {INV512}")
        self.nop(1)
        A("v_mul_f32 v20, s54, v5")
        for k in range(8):
            A(f"v_sub_f32 v{44+k}, v{44+k}, v20")
        A("v_mul_f32 v4, v44, v44")
        for k in range(1, 8):
            A(f"v_fmac_f32 v4, v{44+k}, v{44+k}")
        self.wave_reduce_to_sgpr("v_add_f32", 4, 54)
        self.round_bf16(20, 20)
        A("v_mul_f32 v4, s54, v5")
        self.round_bf16(4, 4)
        A(f"v_add_f32 v4, {EPS}, v4")
        self.round_bf16(4, 4)
        A("v_sqrt_f32 v4, v4")
        self.nop(1)
        self.round_bf16(4, 4)
        A("v_rcp_f32 v6, v4")
        A("v_mov_b32 v21, v20")
        A("v_mov_b32 v5, v4")
        A("v_mov_b32 v7, v6")
        A("s_waitcnt vmcnt(16)")
        for k in range(8):
            x = 8 + k
            A(f"""
            v_lshlrev_b32 v44, 16, v{x}
            v_and_b32 v45, 0xffff0000, v{x}
            v_pk_add_f32 v[44:45], v[44:45], v[20:21] neg_lo:[0,1] neg_hi:[0,1]
            v_cvt_pk_bf16_f32 v46, v44, v45
            v_lshlrev_b32 v44, 16, v46
            v_and_b32 v45, 0xffff0000, v46
            v_pk_mul_f32 v[46:47], v[44:45], v[6:7]
            v_pk_fma_f32 v[44:45], v[46:47], v[4:5], v[44:45] neg_lo:[1,0,0] neg_hi:[1,0,0]
            v_pk_fma_f32 v[46:47], v[44:45], v[6:7], v[46:47]
            v_cvt_pk_bf16_f32 v{x}, v46, v47
            """)

        def perms(j):
            a = 32 + 4 * (j & 1)
            for d in range(4):
                A(f"v_perm_b32 v{a+d}, v{8+(j>>1)}, v{8+(j>>1)}, v{24+2*d+(j&1)}")
        perms(0)
        for j in range(16):
            if j < 15:
                perms(j + 1)
            else:
                self.nop(2)
            A(f"s_waitcnt vmcnt({15-j})")
            a = 32 + 4 * (j & 1)
            c = "0" if j == 0 else "v[40:43]"
            A(f"v_mfma_f32_16x16x32_bf16 v[40:43], v[{a}:{a+3}], v[{64+4*j}:{67+4*j}], {c}")
        A(f"""
        s_mul_i32 s54, s3, {WS_G - WS_Q}
        s_add_u32 s54, s54, {WS_Q}
        s_lshl_b32 s55, s30, 10
        s_add_u32 s55, s55, s54
        v_lshl_add_u32 v4, v0, 4, s55
        s_lshl_b32 s55, s28, 13
        s_add_u32 s55, s55, s54
        s_add_u32 s55, s55, 4096
        v_lshl_add_u32 v5, v0, 4, s55
        s_lshl_b32 s54, s28, 8
        s_lshl_b32 s55, s3, 7
        s_add_u32 s54, s54, s55
        s_add_u32 s54, s54, {WS_HINT}
        v_mov_b32 v41, s31
        v_mov_b32 v43, s31
        global_store_dwordx4 v4, v[40:43], s[26:27] sc1
        s_add_u32 s46, s26, s54
        s_addc_u32 s47, s27, 0
        s_lshl_b32 s55, s29, 2
        v_mov_b32 v6, s55
        s_getreg_b32 s44, hwreg(HW_REG_XCC_ID, 0, 4)
        s_or_b32 s44, s44, s31
        v_mov_b32 v7, s44
        s_mov_b64 exec, 1
        global_store_dword v6, v7, s[46:47] sc1
        s_mov_b64 exec, -1
        s_mov_b32 s32, 0
        s_mov_b32 s45, s44
        s_mov_b32 s43, 1
        s_mov_b32 s35, 0
        """)
        self.stamp(2)
        if self.opt.get("x_nopoll"):
            A("s_branch L_qdone")
        if self.opt.get("x_nopoll1"):
            A("s_cmp_eq_u32 s3, 1")
            A("s_cbranch_scc1 L_qdone")
        A(f"""
        L_qhint:
        s_load_dwordx8 s[56:63], s[46:47], 0 glc
        s_add_u32 s32, s32, 1
        s_cmp_ge_u32 s32, {SPIN_MAX}
        s_cbranch_scc1 L_qpoll
        s_waitcnt lgkmcnt(0)
        s_xor_b64 s[56:57], s[56:57], s[44:45]
        s_xor_b64 s[58:59], s[58:59], s[44:45]
        s_xor_b64 s[60:61], s[60:61], s[44:45]
        s_xor_b64 s[62:63], s[62:63], s[44:45]
        s_or_b64 s[56:57], s[56:57], s[58:59]
        s_or_b64 s[60:61], s[60:61], s[62:63]
        s_or_b64 s[56:57], s[56:57], s[60:61]
        s_or_b32 s43, s56, s57
        s_cmp_lt_u32 s43, 16
        s_cbranch_scc1 L_qpoll
        s_sleep {self.opt.get("hintsleep", 4)}
        s_branch L_qhint
        """)
        A("L_qpoll:")
        if self.opt.get("x_hintonly"):
            A("s_branch L_qdone")
        if self.diag:
            A("s_add_u32 s35, s35, 1")
        for k in range(8):
            A(f"global_load_dwordx4 v[{64+4*k}:{67+4*k}], v5, s[26:27] offset:{1024*k-4096} sc1")
        A("s_add_u32 s32, s32, 1")
        for k in range(8):
            r = 64 + 4 * k
            A(f"s_waitcnt vmcnt({7-k})")
            if k == 0:
                A(f"v_xor_b32 v6, s31, v{r+1}")
                A(f"v_mov_b32 v44, v{r}")
                A(f"v_mov_b32 v45, v{r+2}")
            else:
                A(f"v_bitop3_b32 v6, v{r+1}, s31, v6 bitop3:0xbe")
                A(f"v_add_f32 v44, v44, v{r}")
                A(f"v_add_f32 v45, v45, v{r+2}")
            A(f"v_bitop3_b32 v6, v{r+3}, s31, v6 bitop3:0xbe")
        A(f"""
        v_cmp_ne_u32 vcc, 0, v6
        s_cbranch_vccz L_qdone
        s_cmp_lt_u32 s32, {SPIN_MAX}
        s_cbranch_scc1 L_qhint
        L_qdone:
        v_cvt_pk_bf16_f32 v44, v44, v45
        v_lshlrev_b32 v22, 4, v2
        v_lshl_add_u32 v22, v3, 2, v22
        s_cmp_eq_u32 s3, 0
        s_cbranch_scc1 L_c0
        """)
        A(f"""
        v_mov_b32_dpp v45, v44 row_ror:8 row_mask:0xf bank_mask:0xf
        v_lshlrev_b32 v46, 16, v44
        v_and_b32 v47, 0xffff0000, v44
        v_mov_b32 v50, {GELU_K1}
        v_mul_f32 v48, v46, v46
        v_mul_f32 v49, v47, v47
        v_mul_f32 v48, v48, v46
        v_mul_f32 v49, v49, v47
        v_fma_f32 v48, v48, v50, v46
        v_fma_f32 v49, v49, v50, v47
        v_mul_f32 v48, {GELU_C}, v48
        v_mul_f32 v49, {GELU_C}, v49
        v_exp_f32 v48, v48
        v_exp_f32 v49, v49
        s_nop 0
        v_add_f32 v48, 1.0, v48
        v_add_f32 v49, 1.0, v49
        v_rcp_f32 v48, v48
        v_rcp_f32 v49, v49
        s_nop 0
        v_mul_f32 v46, v46, v48
        v_mul_f32 v47, v47, v49
        v_cvt_pk_bf16_f32 v44, v46, v47
        v_lshlrev_b32 v46, 16, v44
        v_and_b32 v47, 0xffff0000, v44
        v_lshlrev_b32 v48, 16, v45
        v_and_b32 v49, 0xffff0000, v45
        v_cmp_gt_u32 vcc, s53, v2
        v_mul_f32 v46, v46, v48
        v_mul_f32 v47, v47, v49
        v_cvt_pk_bf16_f32 v44, v46, v47
        v_cndmask_b32 v44, 0, v44, vcc
        ds_write_b32 v22, v44 offset:{L_H}
        s_waitcnt lgkmcnt(0)
        s_endpgm
        """)
        A(f"""
        L_c0:
        v_mov_b32 v20, {L_FLAG}
        v_mov_b32 v6, 1
        v_mov_b32 v7, s31
        ds_write_b32 v22, v44 offset:{L_Q}
        ds_write_b64 v20, v[6:7]
        """)
        self.stamp(3)
        A(f"""
        v_and_b32 v23, 7, v0
        v_lshlrev_b32 v4, 3, v23
        s_lshl_b32 s54, s30, 7
        s_add_u32 s54, s54, {WS_ML}
        v_mov_b32 v24, s54
        s_lshl_b32 s54, s28, 10
        s_add_u32 s54, s54, {WS_ML}
        v_lshl_add_u32 v25, v23, 7, s54
        s_lshl_b32 s54, s30, 10
        s_add_u32 s54, s54, {WS_O}
        v_lshl_add_u32 v26, v0, 4, s54
        s_lshl_b32 s54, s28, 13
        s_add_u32 s54, s54, {WS_O + 4096}
        v_lshl_add_u32 v27, v0, 4, s54
        s_sub_u32 s54, s54, {4096 - 1020}
        v_lshl_add_u32 v23, v23, 10, s54
        s_lshl_b32 s54, s29, 15
        s_lshl_b32 s55, s28, 5
        s_add_u32 s54, s54, s55
        s_add_u32 s54, s54, {WS_Y}
        v_lshrrev_b32 v5, 1, v0
        v_lshlrev_b32 v5, 10, v5
        v_and_b32 v6, 1, v0
        v_lshl_add_u32 v5, v6, 4, v5
        v_add_u32 v28, s54, v5
        s_lshl_b32 s54, s29, 7
        s_lshl_b32 s55, s28, 2
        s_add_u32 s54, s54, s55
        v_lshl_add_u32 v29, v0, 1, s54
        v_lshlrev_b32 v30, 3, v0
        v_mov_b32 v31, {LOG2E}
        v_cmp_eq_u32 vcc, 0, v6
        s_waitcnt lgkmcnt(0)
        s_lshl_b32 s54, s33, 16
        s_and_b32 s55, s33, 0xffff0000
        v_mov_b32 v20, s55
        v_mov_b32 v21, s54
        v_cndmask_b32 v20, v20, v21, vcc
        s_barrier
        """)
        self.stamp(4)
        A(f"""
        ds_read_b64 v[8:9], v4 offset:{L_ML}
        s_waitcnt lgkmcnt(0)
        v_mov_b32 v12, v8
        """)
        self.oct_allreduce("v_max_f32", 12)
        A("""
        v_sub_f32 v8, v8, v12
        v_mul_f32 v8, v8, v31
        v_exp_f32 v8, v8
        v_mov_b32 v13, s31
        v_mul_f32 v14, v8, v9
        """)
        self.oct_allreduce("v_add_f32", 14)
        A(f"""
        v_mov_b32 v15, s31
        {"s_mov_b32 s43, 1" if self.opt.get("nolocal") else ""}
        s_mov_b64 exec, 1
        s_cmp_eq_u32 s43, 0
        s_cbranch_scc1 L_ml_local
        global_store_dwordx4 v24, v[12:15], s[26:27] sc1
        s_branch L_ml_done
        L_ml_local:
        global_store_dwordx4 v24, v[12:15], s[26:27]
        L_ml_done:
        s_mov_b64 exec, -1
        v_mov_b32 v41, s31
        v_mov_b32 v43, s31
        s_mov_b32 s32, 0
        s_barrier
        """)
        self.stamp(5)
        if self.opt.get("x_notail"):
            self.stamp(6)
            A("s_barrier")
            A("s_branch L_c0_end")
        for k in range(4):
            A(f"ds_read2st64_b64 v[{64+4*k}:{67+4*k}], v30 offset0:{L_OS//512+2*k} offset1:{L_OS//512+2*k+1}")
        A("""
        s_waitcnt lgkmcnt(2)
        v_pk_add_f32 v[64:65], v[64:65], v[66:67]
        v_pk_add_f32 v[68:69], v[68:69], v[70:71]
        s_waitcnt lgkmcnt(0)
        v_pk_add_f32 v[72:73], v[72:73], v[74:75]
        v_pk_add_f32 v[76:77], v[76:77], v[78:79]
        v_pk_add_f32 v[64:65], v[64:65], v[68:69]
        v_pk_add_f32 v[72:73], v[72:73], v[76:77]
        v_add_f32 v40, v64, v72
        v_add_f32 v42, v65, v73
        s_cmp_eq_u32 s43, 0
        s_cbranch_scc1 L_o_local
        global_store_dwordx4 v26, v[40:43], s[26:27] sc1
        s_branch L_opoll
        L_o_local:
        global_store_dwordx4 v26, v[40:43], s[26:27]
        L_opoll:
        global_load_dwordx4 v[8:11], v25, s[26:27] sc1
        """)
        for k in range(8):
            A(f"global_load_dwordx4 v[{64+4*k}:{67+4*k}], v27, s[26:27] offset:{1024*k-4096} sc1")
        A("""
        s_add_u32 s32, s32, 1
        s_waitcnt vmcnt(8)
        v_mov_b32 v12, v8
        v_xor_b32 v6, s31, v9
        v_bitop3_b32 v6, v11, s31, v6 bitop3:0xbe
        """)
        self.row_allreduce("v_max_f32", 12, ("quad_perm:[1,0,3,2]",))
        self.row_allreduce("v_max_f32", 12, ("quad_perm:[2,3,0,1]", "row_half_mirror"))
        A("""
        v_sub_f32 v8, v8, v12
        v_mul_f32 v8, v8, v31
        v_exp_f32 v8, v8
        s_nop 0
        v_mul_f32 v14, v8, v10
        """)
        self.oct_allreduce("v_add_f32", 14)
        A("""
        v_rcp_f32 v14, v14
        s_nop 0
        v_mul_f32 v8, v8, v14
        s_nop 0
        """)
        for k in range(8):
            A(f"v_readlane_b32 s{56+k}, v8, {k}")
        for k in range(8):
            r = 64 + 4 * k
            A(f"s_waitcnt vmcnt({7-k})")
            A(f"v_bitop3_b32 v6, v{r+1}, s31, v6 bitop3:0xbe")
            A(f"v_bitop3_b32 v6, v{r+3}, s31, v6 bitop3:0xbe")
            if k == 0:
                A(f"v_mul_f32 v44, s56, v{r}")
                A(f"v_mul_f32 v45, s56, v{r+2}")
            else:
                A(f"v_fmac_f32 v44, s{56+k}, v{r}")
                A(f"v_fmac_f32 v45, s{56+k}, v{r+2}")
        A(f"""
        v_cmp_ne_u32 vcc, 0, v6
        v_cvt_pk_bf16_f32 v44, v44, v45
        s_cbranch_vccz L_odone
        s_mov_b64 vcc, 0xff
        L_oprobe:
        s_mov_b64 exec, vcc
        global_load_dword v8, v23, s[26:27] sc1
        s_add_u32 s32, s32, 1
        s_cmp_ge_u32 s32, {SPIN_MAX}
        s_cbranch_scc1 L_ogiveup
        s_waitcnt vmcnt(0)
        v_cmp_ne_u32 vcc, s31, v8
        s_cbranch_vccnz L_oprobe
        s_mov_b64 exec, -1
        s_branch L_opoll
        L_ogiveup:
        s_mov_b64 exec, -1
        s_waitcnt vmcnt(0)
        L_odone:
        ds_write_b32 v22, v44 offset:{L_OB}
        s_mov_b32 s34, s32
        s_mov_b32 s32, 0
        """)
        self.stamp(6)
        A("""
        s_waitcnt lgkmcnt(0)
        s_barrier
        """)
        A(f"""
        s_mov_b64 vcc, -1
        L_ypoll:
        s_mov_b64 exec, vcc
        global_load_dwordx4 v[8:11], v28, s[26:27] sc1
        s_add_u32 s32, s32, 1
        s_waitcnt vmcnt(0)
        v_xor_b32 v6, s31, v9
        v_bitop3_b32 v6, v11, s31, v6 bitop3:0xbe
        v_cmp_ne_u32 vcc, 0, v6
        s_cbranch_vccz L_ydone
        s_cmp_ge_u32 s32, {SPIN_MAX}
        s_cbranch_scc1 L_ydone
        s_bcnt1_i32_b64 s48, vcc
        s_cmp_le_u32 s48, {self.opt.get("yth", 16)}
        s_cbranch_scc1 L_ypoll
        s_sleep {self.opt.get("ysleep", 4)}
        s_branch L_ypoll
        L_ydone:
        s_mov_b64 exec, -1
        v_permlane32_swap_b32 v8, v10
        s_nop 1
        v_add_f32 v8, v8, v10
        v_mov_b32 v10, v8
        s_nop 1
        v_permlane16_swap_b32 v8, v10
        s_nop 1
        v_add_f32 v8, v8, v10
        """)
        self.row_allreduce("v_add_f32", 8, ("quad_perm:[2,3,0,1]", "row_ror:4", "row_ror:8"))
        self.round_bf16(8, 8)
        A("""
        v_add_f32 v12, v20, v8
        v_mov_b32 v10, v8
        """)
        self.round_bf16(12, 12)
        A("""
        v_permlane32_swap_b32 v8, v10
        s_nop 1
        v_add_f32 v12, v12, v10
        v_cvt_pk_bf16_f32 v12, v12, v12
        s_mov_b64 exec, 3
        global_store_short v29, v12, s[22:23] %s
        s_cmp_lg_u32 s30, 0
        s_cbranch_scc1 L_c0_end
        s_mov_b64 exec, 1
        v_mov_b32 v4, 0
        v_mov_b32 v5, s31
        global_store_dword v4, v5, s[26:27] sc1
        L_c0_end:
        """ % self.opt.get("outpol", ""))
        self.stamp(7)
        self.dump_stamps(0, 8)
        if self.diag:
            A("""
            s_lshl_b32 s34, s34, 10
            s_lshl_b32 s32, s32, 20
            s_or_b32 s35, s35, s34
            s_or_b32 s35, s35, s32
            v_mov_b32 v2, s35
            v_mov_b32 v3, 0
            global_store_dwordx2 v1, v[2:3], s[26:27] offset:120
            """)
        A("s_endpgm")

    def dma(self, WPOL):
        A = self.A
        A(f"""
        s_mov_b32 s56, s12
        s_mov_b32 s57, s13
        s_mov_b32 s58, 0x400000
        s_mov_b32 s59, 0x20000
        s_mov_b32 s44, s20
        s_mov_b32 s45, s21
        s_mov_b32 s46, 1409024
        s_mov_b32 s47, 0x20000
        v_lshrrev_b32 v24, 3, v0
        v_and_b32 v25, 1, v3
        v_lshlrev_b32 v25, 1, v25
        v_and_b32 v26, 7, v0
        v_xor_b32 v25, v25, v26
        v_lshlrev_b32 v25, 4, v25
        v_lshl_add_u32 v25, v24, 10, v25
        v_xor_b32 v26, 64, v25
        s_lshl_b32 s49, s29, 7
        s_lshl_b32 s50, s28, 17
        s_add_u32 s50, s50, s49
        s_lshl_b32 s48, s34, 15
        s_add_u32 s50, s50, s48
        s_lshl_b32 s51, s34, 1
        s_add_u32 s48, s52, s51
        s_lshl_b32 s48, s48, 13
        s_add_u32 s48, s48, s49
        s_add_u32 s49, s48, 0x2000
        s_cmp_lt_u32 s51, s53
        s_cselect_b32 s54, 0, 0x40000000
        v_or_b32 v27, s54, v25
        s_add_u32 s51, s51, 1
        s_cmp_lt_u32 s51, s53
        s_cselect_b32 s54, 0, 0x40000000
        v_or_b32 v28, s54, v26
        s_lshl_b32 s51, s34, 11
        s_add_u32 m0, s51, {L_W + 16384}
        s_lshl_b32 s54, s34, 12
        buffer_load_dwordx4 v27, s[44:47], s48 offen {WPOL} lds
        s_add_u32 m0, s51, {L_W + 16384 + 1024}
        s_nop 0
        buffer_load_dwordx4 v28, s[44:47], s49 offen {WPOL} lds
        """)
        for jj in range(4):
            A(f"s_add_u32 m0, s54, {L_W + 1024*jj}")
            A(f"s_add_u32 s49, s50, {jj*0x2000}")
            A(f"buffer_load_dwordx4 v{25 + (jj & 1)}, s[56:59], s49 offen {WPOL} lds")

    def kv(self, KVPOL, WPOL):
        A = self.A
        pat = self.opt.get("pattern", "wave")
        A("L_kv:")
        A("s_sub_u32 s34, s3, 2")
        A("s_lshl_b32 s48, s28, 20")
        A("s_lshl_b32 s49, s29, 17")
        A("s_add_u32 s48, s48, s49")
        if pat == "wave":
            A("s_lshl_b32 s49, s34, 14")
            step = 1024
        else:
            A("s_lshr_b32 s49, s34, 2")
            A("s_lshl_b32 s49, s49, 16")
            A("s_add_u32 s48, s48, s49")
            A("s_and_b32 s49, s34, 3")
            A("s_lshl_b32 s49, s49, 10")
            step = 4096
        A("""
        s_add_u32 s48, s48, s49
        v_lshl_add_u32 v1, v0, 4, s48
        s_waitcnt lgkmcnt(0)
        s_mov_b32 s36, s6
        s_mov_b32 s37, s7
        s_mov_b32 s38, 0x2000000
        s_mov_b32 s39, 0x20000
        s_mov_b32 s40, s8
        s_mov_b32 s41, s9
        s_mov_b32 s42, 0x2000000
        s_mov_b32 s43, 0x20000
        s_barrier
        """)

        def load(reg, srd, j):
            off = j * step
            if off & ~0xFFF != getattr(self, "_soff", None):
                self._soff = off & ~0xFFF
                A(f"s_mov_b32 s48, {self._soff}")
            A(f"buffer_load_dwordx4 v[{reg}:{reg+3}], v1, {srd}, s48 offen offset:{off & 0xFFF} {KVPOL}")
        dmapos = self.opt.get("dma", "late")
        bs = int(self.opt.get("bsplit", 8))
        kfirst = int(self.opt.get("kfirst", 1))

        def early(tag):
            if dmapos == tag:
                A("s_cmp_ge_u32 s34, 4")
                A("s_cbranch_scc1 L_nodma0")
                self.dma(WPOL)
                A("L_nodma0:")
                self._soff = None
        self._soff = None
        if kfirst:
            A("s_setprio 1")
        early("first")
        for j in range(16):
            load(32 + 4 * j, "s[36:39]", j)
        if kfirst:
            A("s_setprio 0")
        early("mid")
        for j in range(bs):
            load(96 + 4 * j, "s[40:43]", j)
        if bs < 16:
            A("s_cmp_ge_u32 s34, 4")
            A("s_cbranch_scc1 L_vsplit")
            self._soff = None
            for j in range(bs, 16):
                load(96 + 4 * j, "s[40:43]", j)
            A("L_vsplit:")
        early("endA")
        self.stamp(0)
        A(f"""
        v_and_b32 v4, 2, v2
        v_cmp_eq_u32 vcc, 0, v4
        v_mov_b32 v5, 0xffff0000
        v_mov_b32 v6, 0xffff
        v_cndmask_b32 v5, v5, v6, vcc
        v_and_b32 v4, 13, v2
        """)
        for d in range(4):
            A(f"v_cmp_eq_u32 vcc, {4*d}, v4")
            self.nop(2)
            A(f"v_cndmask_b32 v{8+d}, 0, v5, vcc")
        A(f"""
        v_and_b32 v4, 2, v0
        v_cmp_ne_u32 s[50:51], 0, v4
        v_and_b32 v4, 1, v0
        v_cmp_ne_u32 s[54:55], 0, v4
        v_mov_b32 v20, {L_FLAG}
        v_lshlrev_b32 v21, 4, v2
        s_mov_b32 s32, 0
        {"s_branch L_qready" if self.opt.get("x_nospin") else ""}
        L_qwait:
        ds_read_b64 v[22:23], v20
        s_add_u32 s32, s32, 1
        s_waitcnt lgkmcnt(0)
        v_readfirstlane_b32 s48, v22
        v_readfirstlane_b32 s31, v23
        s_cmp_lg_u32 s48, 0
        s_cbranch_scc1 L_qready
        s_sleep 2
        s_cmp_lt_u32 s32, {SPIN_MAX}
        s_cbranch_scc1 L_qwait
        L_qready:
        ds_read_b128 v[4:7], v21 offset:{L_Q}
        s_waitcnt vmcnt(16) lgkmcnt(0)
        s_cmp_lt_u32 s34, 4
        s_cbranch_scc1 L_kready
        s_waitcnt vmcnt({bs})
        L_kready:
        """)
        self.stamp(1)
        for d in range(4):
            for j in range(16):
                r = 32 + 4 * j
                A(f"v_dot2_f32_bf16 v{r}, v{r+d}, v{4+d}, {'0' if d == 0 else 'v%d' % r}")
        P = lambda j: 32 + 4 * j
        for j in range(8):
            A(f"v_add_f32_dpp v{P(j)}, v{P(j)}, v{P(j)} row_ror:8 row_mask:0xf bank_mask:0x3")
        for j in range(8):
            A(f"v_add_f32_dpp v{P(j)}, v{P(j+8)}, v{P(j+8)} row_ror:8 row_mask:0xf bank_mask:0xc")
        for j in range(4):
            A(f"v_add_f32_dpp v{P(j)}, v{P(j)}, v{P(j)} row_shl:4 row_mask:0xf bank_mask:0x5")
        for j in range(4):
            A(f"v_add_f32_dpp v{P(j)}, v{P(j+4)}, v{P(j+4)} row_shr:4 row_mask:0xf bank_mask:0xa")
        for j in range(2):
            A(f"v_cndmask_b32 v{16+j}, v{P(j)}, v{P(j+2)}, s[50:51]")
            A(f"v_cndmask_b32 v{18+j}, v{P(j+2)}, v{P(j)}, s[50:51]")
        self.nop(1)
        A("v_add_f32_dpp v16, v18, v16 quad_perm:[2,3,0,1] row_mask:0xf bank_mask:0xf")
        A("v_add_f32_dpp v17, v19, v17 quad_perm:[2,3,0,1] row_mask:0xf bank_mask:0xf")
        A("v_cndmask_b32 v19, v17, v16, s[54:55]")
        A("v_cndmask_b32 v18, v16, v17, s[54:55]")
        self.nop(1)
        A("v_add_f32_dpp v16, v19, v18 quad_perm:[1,0,3,2] row_mask:0xf bank_mask:0xf")
        self.round_bf16(16, 16)
        A(f"v_mul_f32 v16, {SCALE}, v16")
        self.round_bf16(16, 16)
        A("v_mov_b32 v17, v16")
        self.wave_reduce_to_sgpr("v_max_f32", 17, 49)
        A(f"""
        v_mov_b32 v31, {LOG2E}
        s_nop 0
        v_subrev_f32 v17, s49, v16
        v_mul_f32 v17, v17, v31
        v_exp_f32 v17, v17
        s_nop 0
        """)
        self.row_allreduce("v_add_f32", 17)
        self.nop(2)
        A("v_add_f32_dpp v17, v17, v17 row_bcast:15 row_mask:0xa bank_mask:0xf")
        self.nop(2)
        A("v_add_f32_dpp v17, v17, v17 row_bcast:31 row_mask:0xc bank_mask:0xf")
        A(f"""
        s_lshl_b32 s48, s34, 3
        v_mov_b32 v18, s48
        v_mov_b32 v19, s49
        s_mov_b32 exec_lo, 0
        s_mov_b32 exec_hi, 0x80000000
        ds_write2_b32 v18, v19, v17 offset0:{L_ML//4} offset1:{L_ML//4+1}
        s_mov_b64 exec, -1
        """)
        self.stamp(2)
        A(f"""
        v_and_b32 v18, 7, v0
        v_lshlrev_b32 v18, 3, v18
        s_waitcnt lgkmcnt(0)
        s_barrier
        ds_read_b32 v17, v18 offset:{L_ML}
        """)
        if bs < 16:
            A("s_cmp_lt_u32 s34, 4")
            A("s_cbranch_scc1 L_vdone")
            A("s_setprio 1")
            self._soff = None
            for j in range(bs, 16):
                load(96 + 4 * j, "s[40:43]", j)
            A("L_vdone:")
        self.stamp(3)
        A("s_waitcnt lgkmcnt(0)")
        self.oct_allreduce("v_max_f32", 17)
        A(f"""
        v_sub_f32 v17, v16, v17
        v_mul_f32 v17, v17, v31
        v_exp_f32 v17, v17
        s_lshl_b32 s48, s34, 9
        s_add_u32 s48, s48, {L_OS}
        v_lshl_add_u32 v18, v0, 3, s48
        v_cvt_pk_bf16_f32 v17, v17, v17
        """)
        self.nop(2)
        for j in range(16):
            for d in range(4):
                A(f"v_and_b32_dpp v{32+4*j+d}, v17, v{8+d} row_newbcast:{j} row_mask:0xf bank_mask:0xf")
        if self.opt.get("diagwave", 7) >= 4:
            self.stamp(6)
        A("s_cmp_ge_u32 s34, 4")
        A("s_cbranch_scc1 L_pv_b")
        A(f"s_waitcnt vmcnt({6 if dmapos == 'endA' else 0})")
        for j in range(16):
            c = "0" if j == 0 else "v[12:15]"
            A(f"v_mfma_f32_16x16x32_bf16 v[12:15], v[{32+4*j}:{35+4*j}], v[{96+4*j}:{99+4*j}], {c}")
        if dmapos == "late":
            self.dma(WPOL)
        A("s_branch L_pv_done")
        A("L_pv_b:")
        for j in range(16):
            A(f"s_waitcnt vmcnt({15-j})")
            if j == 15:
                self.stamp(5)
            c = "0" if j == 0 else "v[12:15]"
            A(f"v_mfma_f32_16x16x32_bf16 v[12:15], v[{32+4*j}:{35+4*j}], v[{96+4*j}:{99+4*j}], {c}")
        A("""
        L_pv_done:
        s_nop 7
        ds_write2_b32 v18, v12, v14 offset0:0 offset1:1
        s_waitcnt lgkmcnt(0)
        s_barrier
        """)
        self.stamp(4)
        A("s_cmp_ge_u32 s34, 4")
        A("s_cbranch_scc1 L_kv_end")
        A(f"""
        v_bfe_u32 v24, v2, 3, 1
        v_and_b32 v25, 1, v3
        v_lshl_add_u32 v24, v25, 1, v24
        v_xor_b32 v24, s34, v24
        v_lshlrev_b32 v24, 5, v24
        v_lshl_add_u32 v24, v3, 10, v24
        v_lshrrev_b32 v25, 2, v2
        v_lshl_add_u32 v24, v25, 7, v24
        v_and_b32 v25, 3, v2
        v_lshl_add_u32 v24, v25, 3, v24
        v_lshlrev_b32 v27, 4, v3
        v_mov_b32 v25, {L_FLAG + 8}
        v_mov_b32 v26, 1
        ds_read_b128 v[48:51], v27 offset:{L_H}
        ds_read_b128 v[52:55], v27 offset:{L_H + 64}
        s_lshl_b32 s48, s29, 15
        s_lshl_b32 s49, s28, 10
        s_add_u32 s48, s48, s49
        s_lshl_b32 s49, s34, 8
        s_add_u32 s48, s48, s49
        s_add_u32 s48, s48, {WS_Y}
        v_lshl_add_u32 v29, v0, 4, s48
        s_mov_b32 s32, 0
        s_mov_b64 exec, 1
        s_waitcnt vmcnt(0)
        ds_add_u32 v25, v26
        s_mov_b64 exec, -1
        L_wwait:
        ds_read_b32 v26, v25
        s_add_u32 s32, s32, 1
        s_waitcnt lgkmcnt(0)
        v_readfirstlane_b32 s48, v26
        s_cmp_ge_u32 s48, 4
        s_cbranch_scc1 L_wready
        s_cmp_lt_u32 s32, {SPIN_MAX}
        s_cbranch_scc1 L_wwait
        L_wready:
        """)
        for kk in range(2):
            A(f"ds_read_b64_tr_b16 v[{112+4*kk}:{113+4*kk}], v24 offset:{L_W + 16384 + 4096*kk}")
            A(f"ds_read_b64_tr_b16 v[{114+4*kk}:{115+4*kk}], v24 offset:{L_W + 16384 + 4096*kk + 512}")
        for kk in range(4):
            A(f"ds_read_b64_tr_b16 v[{96+4*kk}:{97+4*kk}], v24 offset:{L_W + 4096*kk}")
            A(f"ds_read_b64_tr_b16 v[{98+4*kk}:{99+4*kk}], v24 offset:{L_W + 4096*kk + 512}")
        A("""
        s_waitcnt lgkmcnt(8)
        v_mfma_f32_16x16x32_bf16 v[20:23], v[48:51], v[112:115], 0
        v_mfma_f32_16x16x32_bf16 v[20:23], v[52:55], v[116:119], v[20:23]
        v_mov_b32 v5, s31
        v_mov_b32 v7, s31
        s_nop 5
        v_mov_b32 v6, v20
        s_waitcnt lgkmcnt(0)
        """)
        self.stamp(6)
        A("s_barrier")
        for kk in range(4):
            A(f"ds_read_b128 v[{32+4*kk}:{35+4*kk}], v27 offset:{L_OB + 64*kk}")
        for kk in range(4):
            A(f"s_waitcnt lgkmcnt({3-kk})")
            c = "0" if kk == 0 else "v[16:19]"
            A(f"v_mfma_f32_16x16x32_bf16 v[16:19], v[{32+4*kk}:{35+4*kk}], v[{96+4*kk}:{99+4*kk}], {c}")
        A("""
        s_nop 6
        s_mov_b64 exec, 0xffff
        v_mov_b32 v4, v16
        global_store_dwordx4 v29, v[4:7], s[26:27] sc1
        L_kv_end:
        """)
        if self.diag:
            A("s_cmp_lg_u32 s34, %d" % self.opt.get("diagwave", 7))
            A("s_cbranch_scc1 L_end")
            if self.opt.get("diagwave", 7) < 4:
                self.stamp(5)
            self.dump_stamps(8, 7)


if __name__ == "__main__":
    out = sys.argv[1] if len(sys.argv) > 1 else "k1.s"
    opts = dict(a.split("=") for a in sys.argv[2:])
    diag = bool(int(opts.pop("diag", "0")))
    if "diagwave" in opts:
        opts["diagwave"] = int(opts["diagwave"])
    open(out, "w").write(Gen(diag, **opts).build())
```

```python
import sys

NAME = "parallel_sum__gqa_block_cached__geglu_ffn__decode"

WS_EPOCH = 0x0
WS_HINT = 0x4000
WS_Q = 0x10000
WS_G = 0x50000
WS_ML = 0x90000
WS_O = 0xA0000
WS_Y = 0xE0000
WS_STAMP = 0x8000000
L_Q = 0x000
L_H = 0x100
L_OB = 0x200
L_FLAG = 0x300
L_ML = 0x340
L_OS = 0x400
L_W = 0x2000
LDS_BYTES = 98304
SPIN_MAX = 1 << 20

LOG2E = 0x3FB8AA3B
SCALE = 0x3DB504F3
EPS = 0x3727C5AC
INV512 = 0x3B000000
GELU_K1 = 0x3D372713
GELU_C = 0xC0135761


class Gen:
    def __init__(self, diag=False, **opt):
        self.L = []
        self.diag = diag
        self.opt = opt

    def A(self, s):
        for line in s.split("\n"):
            line = line.strip()
            if line:
                self.L.append(line)

    def nop(self, n):
        if n > 0:
            self.A(f"s_nop {n-1}")

    def stamp(self, i):
        if self.diag:
            self.A(f"s_memrealtime s[{64+2*i}:{65+2*i}]")

    def dump_stamps(self, first, n):
        if not self.diag:
            return
        A = self.A
        A("s_waitcnt lgkmcnt(0)")
        A("s_mov_b64 exec, 1")
        A(f"s_lshl_b32 s48, s2, 7")
        A(f"s_add_u32 s48, s48, {WS_STAMP + 8*first}")
        A("v_mov_b32 v1, s48")
        for k in range(n):
            A(f"v_mov_b32 v2, s{64+2*k}")
            A(f"v_mov_b32 v3, s{65+2*k}")
            A(f"global_store_dwordx2 v1, v[2:3], s[26:27] offset:{8*k} sc1")
            A("s_nop 1")

    def row_allreduce(self, op, v, steps=("row_ror:8", "row_ror:4", "row_ror:2", "row_ror:1")):
        for st in steps:
            self.nop(2)
            self.A(f"{op}_dpp v{v}, v{v}, v{v} {st} row_mask:0xf bank_mask:0xf")

    def wave_reduce_to_sgpr(self, op, v, s):
        self.row_allreduce(op, v)
        self.nop(2)
        self.A(f"{op}_dpp v{v}, v{v}, v{v} row_bcast:15 row_mask:0xa bank_mask:0xf")
        self.nop(2)
        self.A(f"{op}_dpp v{v}, v{v}, v{v} row_bcast:31 row_mask:0xc bank_mask:0xf")
        self.nop(1)
        self.A(f"v_readlane_b32 s{s}, v{v}, 63")

    def oct_allreduce(self, op, v):
        self.row_allreduce(op, v, ("quad_perm:[1,0,3,2]", "quad_perm:[2,3,0,1]", "row_half_mirror"))

    def round_bf16(self, dst, src):
        self.A(f"v_cvt_pk_bf16_f32 v{dst}, v{src}, v{src}")
        self.A(f"v_and_b32 v{dst}, 0xffff0000, v{dst}")

    def build(self):
        A = self.A
        o = self.opt
        KVPOL = o.get("kvpol", "nt")
        WPOL = o.get("wpol", "nt")
        A(f"; @launch grid=(256,1,1) block=(640,1,1) lds={self.opt.get('lds', LDS_BYTES)}")
        A('.amdgcn_target "amdgcn-amd-amdhsa--gfx950"')
        A(".text")
        A(f".globl {NAME}_kernel")
        A(".p2align 8")
        A(f".type {NAME}_kernel,@function")
        A(f"{NAME}_kernel:")
        self.stamp(0)
        A("""
        s_cmp_ge_u32 s2, 0x100
        s_cbranch_scc1 L_end
        s_load_dwordx16 s[4:19], s[0:1], 0
        s_load_dwordx8 s[20:27], s[0:1], 64
        v_lshrrev_b32 v1, 6, v0
        v_and_b32 v0, 63, v0
        s_and_b32 s28, s2, 7
        s_lshl_b32 s28, s28, 2
        v_readfirstlane_b32 s3, v1
        s_bfe_u32 s29, s2, 0x20003
        s_add_u32 s28, s28, s29
        s_lshr_b32 s29, s2, 5
        s_lshl_b32 s30, s28, 3
        s_add_u32 s30, s30, s29
        s_mul_i32 s52, s28, 43
        s_add_u32 s53, s52, 43
        s_lshr_b32 s52, s52, 3
        s_lshr_b32 s53, s53, 3
        s_sub_u32 s53, s53, s52
        v_and_b32 v2, 15, v0
        v_lshrrev_b32 v3, 4, v0
        s_cmp_ge_u32 s3, 2
        s_cbranch_scc1 L_kv
        """)
        self.ctrl(WPOL)
        self.kv(KVPOL, WPOL)
        A("L_end:")
        A("s_endpgm")
        A('.section .rodata,"a"')
        A(".p2align 6")
        A(f".amdhsa_kernel {NAME}_kernel")
        A("  .amdhsa_next_free_vgpr 160")
        A("  .amdhsa_next_free_sgpr 102")
        A("  .amdhsa_accum_offset 160")
        A("  .amdhsa_group_segment_fixed_size 0")
        A("  .amdhsa_kernarg_size 96")
        A("  .amdhsa_user_sgpr_count 2")
        A("  .amdhsa_user_sgpr_kernarg_segment_ptr 1")
        A("  .amdhsa_system_sgpr_workgroup_id_x 1")
        A(".end_amdhsa_kernel")
        return "\n".join(self.L) + "\n"

    def ctrl(self, WPOL):
        A = self.A
        A(f"""
        s_setprio {self.opt.get('cprio', 2)}
        s_movk_i32 s48, 2752
        s_mov_b32 s49, 0
        s_sub_u32 s50, s53, 1
        s_cmp_eq_u32 s3, 0
        s_cselect_b32 s48, 0x2000, s48
        s_cselect_b32 s50, 7, s50
        s_lshl_b32 s51, s29, 6
        v_lshl_add_u32 v4, v3, 4, s51
        v_and_b32 v5, 7, v2
        v_min_u32 v5, s50, v5
        v_mul_lo_u32 v6, v4, s48
        v_lshl_add_u32 v6, v5, 4, v6
        v_lshlrev_b32 v4, 1, v4
        v_lshlrev_b32 v5, 4, v0
        v_mov_b32 v7, 0
        v_mov_b32 v20, {L_FLAG}
        v_cmp_gt_u32 vcc, 8, v2
        s_lshl_b32 s54, s28, 8
        s_lshl_b32 s55, s52, 4
        ds_write2_b32 v20, v7, v7 offset0:0 offset1:2
        s_waitcnt lgkmcnt(0)
        {"s_barrier" if self.opt.get("binit", "late") == "early" else ""}
        global_load_dword v21, v7, s[26:27] sc1
        global_load_dwordx4 v[16:19], v5, s[4:5]
        global_load_dwordx4 v[8:11], v4, s[4:5]
        global_load_dwordx4 v[12:15], v4, s[4:5] offset:16
        s_cmp_eq_u32 s3, 0
        s_cbranch_scc0 L_c1_ptr
        s_add_u32 s56, s10, s54
        s_addc_u32 s57, s11, 0
        s_add_u32 s58, s56, 128
        s_addc_u32 s59, s57, 0
        s_branch L_c_ptr_done
        L_c1_ptr:
        s_add_u32 s56, s16, s55
        s_addc_u32 s57, s17, 0
        s_add_u32 s58, s18, s55
        s_addc_u32 s59, s19, 0
        L_c_ptr_done:
        v_mov_b32 v22, s58
        v_mov_b32 v23, s59
        v_mov_b32 v24, s56
        v_mov_b32 v25, s57
        v_cndmask_b32 v22, v22, v24, vcc
        v_cndmask_b32 v23, v23, v25, vcc
        v_lshl_add_u64 v[22:23], v[6:7], 0, v[22:23]
        """)
        if self.opt.get("x_noq"):
            A("s_mov_b32 s48, 0")
        if self.opt.get("x_nog"):
            A("s_cmp_eq_u32 s3, 0")
            A("s_cselect_b32 s48, s48, 0")
        for j in range(16):
            A(f"global_load_dwordx4 v[{64+4*j}:{67+4*j}], v[22:23], off {WPOL}")
            if j < 15:
                A("v_lshl_add_u64 v[22:23], v[22:23], 0, s[48:49]")
        if self.opt.get("binit", "late") == "late":
            A("s_barrier")
        self.stamp(1)
        A("""
        s_lshl_b32 s54, s29, 7
        s_lshl_b32 s55, s28, 2
        s_add_u32 s54, s54, s55
        s_load_dword s33, s[4:5], s54
        """)
        A("""
        v_and_b32 v4, 2, v2
        v_cmp_eq_u32 vcc, 0, v4
        v_mov_b32 v5, 0x01000c0c
        v_mov_b32 v6, 0x0c0c0100
        v_cndmask_b32 v5, v5, v6, vcc
        v_mov_b32 v6, 0x03020c0c
        v_mov_b32 v7, 0x0c0c0302
        v_cndmask_b32 v6, v6, v7, vcc
        v_and_b32 v4, 13, v2
        v_mov_b32 v7, 0x0c0c0c0c
        """)
        for d in range(4):
            A(f"v_cmp_eq_u32 vcc, {4*d}, v4")
            self.nop(2)
            A(f"v_cndmask_b32 v{24+2*d}, v7, v5, vcc")
            A(f"v_cndmask_b32 v{25+2*d}, v7, v6, vcc")
        A("s_waitcnt vmcnt(18)")
        A("v_or_b32 v21, 15, v21")
        A("v_add_u32 v21, 1, v21")
        for k in range(4):
            A(f"v_lshlrev_b32 v{44+2*k}, 16, v{16+k}")
            A(f"v_and_b32 v{45+2*k}, 0xffff0000, v{16+k}")
        A("v_readfirstlane_b32 s31, v21")
        A("""
        v_add_f32 v4, v44, v45
        v_add_f32 v5, v46, v47
        v_add_f32 v6, v48, v49
        v_add_f32 v7, v50, v51
        v_add_f32 v4, v4, v5
        v_add_f32 v6, v6, v7
        v_add_f32 v4, v4, v6
        """)
        self.wave_reduce_to_sgpr("v_add_f32", 4, 54)
        A(f"v_mov_b32 v5, {INV512}")
        self.nop(1)
        A("v_mul_f32 v20, s54, v5")
        for k in range(8):
            A(f"v_sub_f32 v{44+k}, v{44+k}, v20")
        A("v_mul_f32 v4, v44, v44")
        for k in range(1, 8):
            A(f"v_fmac_f32 v4, v{44+k}, v{44+k}")
        self.wave_reduce_to_sgpr("v_add_f32", 4, 54)
        self.round_bf16(20, 20)
        A("v_mul_f32 v4, s54, v5")
        self.round_bf16(4, 4)
        A(f"v_add_f32 v4, {EPS}, v4")
        self.round_bf16(4, 4)
        A("v_sqrt_f32 v4, v4")
        self.nop(1)
        self.round_bf16(4, 4)
        A("v_rcp_f32 v6, v4")
        A("v_mov_b32 v21, v20")
        A("v_mov_b32 v5, v4")
        A("v_mov_b32 v7, v6")
        A("s_waitcnt vmcnt(16)")
        for k in range(8):
            x = 8 + k
            A(f"""
            v_lshlrev_b32 v44, 16, v{x}
            v_and_b32 v45, 0xffff0000, v{x}
            v_pk_add_f32 v[44:45], v[44:45], v[20:21] neg_lo:[0,1] neg_hi:[0,1]
            v_cvt_pk_bf16_f32 v46, v44, v45
            v_lshlrev_b32 v44, 16, v46
            v_and_b32 v45, 0xffff0000, v46
            v_pk_mul_f32 v[46:47], v[44:45], v[6:7]
            v_pk_fma_f32 v[44:45], v[46:47], v[4:5], v[44:45] neg_lo:[1,0,0] neg_hi:[1,0,0]
            v_pk_fma_f32 v[46:47], v[44:45], v[6:7], v[46:47]
            v_cvt_pk_bf16_f32 v{x}, v46, v47
            """)

        def perms(j):
            a = 32 + 4 * (j & 1)
            for d in range(4):
                A(f"v_perm_b32 v{a+d}, v{8+(j>>1)}, v{8+(j>>1)}, v{24+2*d+(j&1)}")
        perms(0)
        for j in range(16):
            if j < 15:
                perms(j + 1)
            else:
                self.nop(2)
            A(f"s_waitcnt vmcnt({15-j})")
            a = 32 + 4 * (j & 1)
            c = "0" if j == 0 else "v[40:43]"
            A(f"v_mfma_f32_16x16x32_bf16 v[40:43], v[{a}:{a+3}], v[{64+4*j}:{67+4*j}], {c}")
        A(f"""
        s_mul_i32 s54, s3, {WS_G - WS_Q}
        s_add_u32 s54, s54, {WS_Q}
        s_lshl_b32 s55, s30, 10
        s_add_u32 s55, s55, s54
        v_lshl_add_u32 v4, v0, 4, s55
        s_lshl_b32 s55, s28, 13
        s_add_u32 s55, s55, s54
        s_add_u32 s55, s55, 4096
        v_lshl_add_u32 v5, v0, 4, s55
        s_lshl_b32 s54, s28, 8
        s_lshl_b32 s55, s3, 7
        s_add_u32 s54, s54, s55
        s_add_u32 s54, s54, {WS_HINT}
        v_mov_b32 v41, s31
        v_mov_b32 v43, s31
        global_store_dwordx4 v4, v[40:43], s[26:27] sc1
        s_add_u32 s46, s26, s54
        s_addc_u32 s47, s27, 0
        s_lshl_b32 s55, s29, 2
        v_mov_b32 v6, s55
        s_getreg_b32 s44, hwreg(HW_REG_XCC_ID, 0, 4)
        s_or_b32 s44, s44, s31
        v_mov_b32 v7, s44
        s_mov_b64 exec, 1
        global_store_dword v6, v7, s[46:47] sc1
        s_mov_b64 exec, -1
        s_mov_b32 s32, 0
        s_mov_b32 s45, s44
        s_mov_b32 s43, 1
        s_mov_b32 s35, 0
        """)
        self.stamp(2)
        if self.opt.get("x_nopoll"):
            A("s_branch L_qdone")
        if self.opt.get("x_nopoll1"):
            A("s_cmp_eq_u32 s3, 1")
            A("s_cbranch_scc1 L_qdone")
        A(f"""
        L_qhint:
        s_load_dwordx8 s[56:63], s[46:47], 0 glc
        s_add_u32 s32, s32, 1
        s_cmp_ge_u32 s32, {SPIN_MAX}
        s_cbranch_scc1 L_qpoll
        s_waitcnt lgkmcnt(0)
        s_xor_b64 s[56:57], s[56:57], s[44:45]
        s_xor_b64 s[58:59], s[58:59], s[44:45]
        s_xor_b64 s[60:61], s[60:61], s[44:45]
        s_xor_b64 s[62:63], s[62:63], s[44:45]
        s_or_b64 s[56:57], s[56:57], s[58:59]
        s_or_b64 s[60:61], s[60:61], s[62:63]
        s_or_b64 s[56:57], s[56:57], s[60:61]
        s_or_b32 s43, s56, s57
        s_cmp_lt_u32 s43, 16
        s_cbranch_scc1 L_qpoll
        s_sleep {self.opt.get("hintsleep", 4)}
        s_branch L_qhint
        """)
        A("L_qpoll:")
        if self.opt.get("x_hintonly"):
            A("s_branch L_qdone")
        if self.diag:
            A("s_add_u32 s35, s35, 1")
        for k in range(8):
            A(f"global_load_dwordx4 v[{64+4*k}:{67+4*k}], v5, s[26:27] offset:{1024*k-4096} sc1")
        A("s_add_u32 s32, s32, 1")
        for k in range(8):
            r = 64 + 4 * k
            A(f"s_waitcnt vmcnt({7-k})")
            if k == 0:
                A(f"v_xor_b32 v6, s31, v{r+1}")
                A(f"v_mov_b32 v44, v{r}")
                A(f"v_mov_b32 v45, v{r+2}")
            else:
                A(f"v_bitop3_b32 v6, v{r+1}, s31, v6 bitop3:0xbe")
                A(f"v_add_f32 v44, v44, v{r}")
                A(f"v_add_f32 v45, v45, v{r+2}")
            A(f"v_bitop3_b32 v6, v{r+3}, s31, v6 bitop3:0xbe")
        A(f"""
        v_cmp_ne_u32 vcc, 0, v6
        s_cbranch_vccz L_qdone
        s_cmp_lt_u32 s32, {SPIN_MAX}
        s_cbranch_scc1 L_qhint
        L_qdone:
        v_cvt_pk_bf16_f32 v44, v44, v45
        v_lshlrev_b32 v22, 4, v2
        v_lshl_add_u32 v22, v3, 2, v22
        s_cmp_eq_u32 s3, 0
        s_cbranch_scc1 L_c0
        """)
        A(f"""
        v_mov_b32_dpp v45, v44 row_ror:8 row_mask:0xf bank_mask:0xf
        v_lshlrev_b32 v46, 16, v44
        v_and_b32 v47, 0xffff0000, v44
        v_mov_b32 v50, {GELU_K1}
        v_mul_f32 v48, v46, v46
        v_mul_f32 v49, v47, v47
        v_mul_f32 v48, v48, v46
        v_mul_f32 v49, v49, v47
        v_fma_f32 v48, v48, v50, v46
        v_fma_f32 v49, v49, v50, v47
        v_mul_f32 v48, {GELU_C}, v48
        v_mul_f32 v49, {GELU_C}, v49
        v_exp_f32 v48, v48
        v_exp_f32 v49, v49
        s_nop 0
        v_add_f32 v48, 1.0, v48
        v_add_f32 v49, 1.0, v49
        v_rcp_f32 v48, v48
        v_rcp_f32 v49, v49
        s_nop 0
        v_mul_f32 v46, v46, v48
        v_mul_f32 v47, v47, v49
        v_cvt_pk_bf16_f32 v44, v46, v47
        v_lshlrev_b32 v46, 16, v44
        v_and_b32 v47, 0xffff0000, v44
        v_lshlrev_b32 v48, 16, v45
        v_and_b32 v49, 0xffff0000, v45
        v_cmp_gt_u32 vcc, s53, v2
        v_mul_f32 v46, v46, v48
        v_mul_f32 v47, v47, v49
        v_cvt_pk_bf16_f32 v44, v46, v47
        v_cndmask_b32 v44, 0, v44, vcc
        ds_write_b32 v22, v44 offset:{L_H}
        s_waitcnt lgkmcnt(0)
        s_endpgm
        """)
        A(f"""
        L_c0:
        v_mov_b32 v20, {L_FLAG}
        v_mov_b32 v6, 1
        v_mov_b32 v7, s31
        ds_write_b32 v22, v44 offset:{L_Q}
        ds_write_b64 v20, v[6:7]
        """)
        self.stamp(3)
        A(f"""
        v_and_b32 v23, 7, v0
        v_lshlrev_b32 v4, 3, v23
        s_lshl_b32 s54, s30, 7
        s_add_u32 s54, s54, {WS_ML}
        v_mov_b32 v24, s54
        s_lshl_b32 s54, s28, 10
        s_add_u32 s54, s54, {WS_ML}
        v_lshl_add_u32 v25, v23, 7, s54
        s_lshl_b32 s54, s30, 10
        s_add_u32 s54, s54, {WS_O}
        v_lshl_add_u32 v26, v0, 4, s54
        s_lshl_b32 s54, s28, 13
        s_add_u32 s54, s54, {WS_O + 4096}
        v_lshl_add_u32 v27, v0, 4, s54
        s_sub_u32 s54, s54, {4096 - 1020}
        v_lshl_add_u32 v23, v23, 10, s54
        s_lshl_b32 s54, s29, 15
        s_lshl_b32 s55, s28, 5
        s_add_u32 s54, s54, s55
        s_add_u32 s54, s54, {WS_Y}
        v_lshrrev_b32 v5, 1, v0
        v_lshlrev_b32 v5, 10, v5
        v_and_b32 v6, 1, v0
        v_lshl_add_u32 v5, v6, 4, v5
        v_add_u32 v28, s54, v5
        s_lshl_b32 s54, s29, 7
        s_lshl_b32 s55, s28, 2
        s_add_u32 s54, s54, s55
        v_lshl_add_u32 v29, v0, 1, s54
        v_lshlrev_b32 v30, 3, v0
        v_mov_b32 v31, {LOG2E}
        v_cmp_eq_u32 vcc, 0, v6
        s_waitcnt lgkmcnt(0)
        s_lshl_b32 s54, s33, 16
        s_and_b32 s55, s33, 0xffff0000
        v_mov_b32 v20, s55
        v_mov_b32 v21, s54
        v_cndmask_b32 v20, v20, v21, vcc
        s_barrier
        """)
        self.stamp(4)
        A(f"""
        ds_read_b64 v[8:9], v4 offset:{L_ML}
        s_waitcnt lgkmcnt(0)
        v_mov_b32 v12, v8
        """)
        self.oct_allreduce("v_max_f32", 12)
        A("""
        v_sub_f32 v8, v8, v12
        v_mul_f32 v8, v8, v31
        v_exp_f32 v8, v8
        v_mov_b32 v13, s31
        v_mul_f32 v14, v8, v9
        """)
        self.oct_allreduce("v_add_f32", 14)
        A(f"""
        v_mov_b32 v15, s31
        {"s_mov_b32 s43, 1" if self.opt.get("nolocal") else ""}
        s_mov_b64 exec, 1
        s_cmp_eq_u32 s43, 0
        s_cbranch_scc1 L_ml_local
        global_store_dwordx4 v24, v[12:15], s[26:27] sc1
        s_branch L_ml_done
        L_ml_local:
        global_store_dwordx4 v24, v[12:15], s[26:27]
        L_ml_done:
        s_mov_b64 exec, -1
        v_mov_b32 v41, s31
        v_mov_b32 v43, s31
        s_mov_b32 s32, 0
        s_barrier
        """)
        self.stamp(5)
        if self.opt.get("x_notail"):
            self.stamp(6)
            A("s_barrier")
            A("s_branch L_c0_end")
        for k in range(4):
            A(f"ds_read2st64_b64 v[{64+4*k}:{67+4*k}], v30 offset0:{L_OS//512+2*k} offset1:{L_OS//512+2*k+1}")
        A("""
        s_waitcnt lgkmcnt(2)
        v_pk_add_f32 v[64:65], v[64:65], v[66:67]
        v_pk_add_f32 v[68:69], v[68:69], v[70:71]
        s_waitcnt lgkmcnt(0)
        v_pk_add_f32 v[72:73], v[72:73], v[74:75]
        v_pk_add_f32 v[76:77], v[76:77], v[78:79]
        v_pk_add_f32 v[64:65], v[64:65], v[68:69]
        v_pk_add_f32 v[72:73], v[72:73], v[76:77]
        v_add_f32 v40, v64, v72
        v_add_f32 v42, v65, v73
        s_cmp_eq_u32 s43, 0
        s_cbranch_scc1 L_o_local
        global_store_dwordx4 v26, v[40:43], s[26:27] sc1
        s_branch L_opoll
        L_o_local:
        global_store_dwordx4 v26, v[40:43], s[26:27]
        L_opoll:
        global_load_dwordx4 v[8:11], v25, s[26:27] sc1
        """)
        for k in range(8):
            A(f"global_load_dwordx4 v[{64+4*k}:{67+4*k}], v27, s[26:27] offset:{1024*k-4096} sc1")
        A("""
        s_add_u32 s32, s32, 1
        s_waitcnt vmcnt(8)
        v_mov_b32 v12, v8
        v_xor_b32 v6, s31, v9
        v_bitop3_b32 v6, v11, s31, v6 bitop3:0xbe
        """)
        self.row_allreduce("v_max_f32", 12, ("quad_perm:[1,0,3,2]",))
        self.row_allreduce("v_max_f32", 12, ("quad_perm:[2,3,0,1]", "row_half_mirror"))
        A("""
        v_sub_f32 v8, v8, v12
        v_mul_f32 v8, v8, v31
        v_exp_f32 v8, v8
        s_nop 0
        v_mul_f32 v14, v8, v10
        """)
        self.oct_allreduce("v_add_f32", 14)
        A("""
        v_rcp_f32 v14, v14
        s_nop 0
        v_mul_f32 v8, v8, v14
        s_nop 0
        """)
        for k in range(8):
            A(f"v_readlane_b32 s{56+k}, v8, {k}")
        for k in range(8):
            r = 64 + 4 * k
            A(f"s_waitcnt vmcnt({7-k})")
            A(f"v_bitop3_b32 v6, v{r+1}, s31, v6 bitop3:0xbe")
            A(f"v_bitop3_b32 v6, v{r+3}, s31, v6 bitop3:0xbe")
            if k == 0:
                A(f"v_mul_f32 v44, s56, v{r}")
                A(f"v_mul_f32 v45, s56, v{r+2}")
            else:
                A(f"v_fmac_f32 v44, s{56+k}, v{r}")
                A(f"v_fmac_f32 v45, s{56+k}, v{r+2}")
        A(f"""
        v_cmp_ne_u32 vcc, 0, v6
        v_cvt_pk_bf16_f32 v44, v44, v45
        s_cbranch_vccz L_odone
        s_mov_b64 vcc, 0xff
        L_oprobe:
        s_mov_b64 exec, vcc
        global_load_dword v8, v23, s[26:27] sc1
        s_add_u32 s32, s32, 1
        s_cmp_ge_u32 s32, {SPIN_MAX}
        s_cbranch_scc1 L_ogiveup
        s_waitcnt vmcnt(0)
        v_cmp_ne_u32 vcc, s31, v8
        s_cbranch_vccnz L_oprobe
        s_mov_b64 exec, -1
        s_branch L_opoll
        L_ogiveup:
        s_mov_b64 exec, -1
        s_waitcnt vmcnt(0)
        L_odone:
        ds_write_b32 v22, v44 offset:{L_OB}
        s_mov_b32 s34, s32
        s_mov_b32 s32, 0
        """)
        self.stamp(6)
        A("""
        s_waitcnt lgkmcnt(0)
        s_barrier
        """)
        A(f"""
        s_mov_b64 vcc, -1
        L_ypoll:
        s_mov_b64 exec, vcc
        global_load_dwordx4 v[8:11], v28, s[26:27] sc1
        s_add_u32 s32, s32, 1
        s_waitcnt vmcnt(0)
        v_xor_b32 v6, s31, v9
        v_bitop3_b32 v6, v11, s31, v6 bitop3:0xbe
        v_cmp_ne_u32 vcc, 0, v6
        s_cbranch_vccz L_ydone
        s_cmp_ge_u32 s32, {SPIN_MAX}
        s_cbranch_scc1 L_ydone
        s_bcnt1_i32_b64 s48, vcc
        s_cmp_le_u32 s48, {self.opt.get("yth", 16)}
        s_cbranch_scc1 L_ypoll
        s_sleep {self.opt.get("ysleep", 4)}
        s_branch L_ypoll
        L_ydone:
        s_mov_b64 exec, -1
        v_permlane32_swap_b32 v8, v10
        s_nop 1
        v_add_f32 v8, v8, v10
        v_mov_b32 v10, v8
        s_nop 1
        v_permlane16_swap_b32 v8, v10
        s_nop 1
        v_add_f32 v8, v8, v10
        """)
        self.row_allreduce("v_add_f32", 8, ("quad_perm:[2,3,0,1]", "row_ror:4", "row_ror:8"))
        self.round_bf16(8, 8)
        A("""
        v_add_f32 v12, v20, v8
        v_mov_b32 v10, v8
        """)
        self.round_bf16(12, 12)
        A("""
        v_permlane32_swap_b32 v8, v10
        s_nop 1
        v_add_f32 v12, v12, v10
        v_cvt_pk_bf16_f32 v12, v12, v12
        s_mov_b64 exec, 3
        global_store_short v29, v12, s[22:23] %s
        s_cmp_lg_u32 s30, 0
        s_cbranch_scc1 L_c0_end
        s_mov_b64 exec, 1
        v_mov_b32 v4, 0
        v_mov_b32 v5, s31
        global_store_dword v4, v5, s[26:27] sc1
        L_c0_end:
        """ % self.opt.get("outpol", ""))
        self.stamp(7)
        self.dump_stamps(0, 8)
        if self.diag:
            A("""
            s_lshl_b32 s34, s34, 10
            s_lshl_b32 s32, s32, 20
            s_or_b32 s35, s35, s34
            s_or_b32 s35, s35, s32
            v_mov_b32 v2, s35
            v_mov_b32 v3, 0
            global_store_dwordx2 v1, v[2:3], s[26:27] offset:120
            """)
        if self.opt.get("dbgstamp"):
            A(f"""
            s_waitcnt vmcnt(0)
            v_mov_b32 v1, 0
            v_mov_b32 v2, 1
            global_atomic_add v3, v1, v2, s[24:25] offset:252 sc0 sc1
            s_waitcnt vmcnt(0)
            v_readfirstlane_b32 s48, v3
            s_cmp_lg_u32 s48, 255
            s_cbranch_scc1 L_end
            s_mov_b64 exec, -1
            v_mov_b32 v1, 0
            s_mov_b32 s48, {WS_STAMP}
            v_lshl_add_u32 v4, v0, 7, s48
            """)
            for k in range(16):
                src = 0 if k == 15 else k
                for q in range(4):
                    A(f"v_add_u32 v5, {q*8192 + 8*src}, v4")
                    A(f"global_load_dword v{8+q}, v5, s[26:27] sc1")
                A("s_waitcnt vmcnt(0)")
                op = "v_min_u32" if k == 15 else "v_max_u32"
                A(f"{op} v8, v8, v9")
                A(f"{op} v10, v10, v11")
                A(f"{op} v8, v8, v10")
                self.wave_reduce_to_sgpr(op, 8, 49)
                self.nop(2)
                A("v_mov_b32 v6, s49")
                A(f"global_store_dword v1, v6, s[24:25] offset:{4*k}")
        A("s_endpgm")

    def dma(self, WPOL):
        A = self.A
        A(f"""
        s_mov_b32 s56, s12
        s_mov_b32 s57, s13
        s_mov_b32 s58, 0x400000
        s_mov_b32 s59, 0x20000
        s_mov_b32 s44, s20
        s_mov_b32 s45, s21
        s_mov_b32 s46, 1409024
        s_mov_b32 s47, 0x20000
        v_lshrrev_b32 v24, 3, v0
        v_and_b32 v25, 1, v3
        v_lshlrev_b32 v25, 1, v25
        v_and_b32 v26, 7, v0
        v_xor_b32 v25, v25, v26
        v_lshlrev_b32 v25, 4, v25
        v_lshl_add_u32 v25, v24, 10, v25
        v_xor_b32 v26, 64, v25
        s_lshl_b32 s49, s29, 7
        s_lshl_b32 s50, s28, 17
        s_add_u32 s50, s50, s49
        s_lshl_b32 s48, s34, 15
        s_add_u32 s50, s50, s48
        s_lshl_b32 s51, s34, 1
        s_add_u32 s48, s52, s51
        s_lshl_b32 s48, s48, 13
        s_add_u32 s48, s48, s49
        s_add_u32 s49, s48, 0x2000
        s_cmp_lt_u32 s51, s53
        s_cselect_b32 s54, 0, 0x40000000
        v_or_b32 v27, s54, v25
        s_add_u32 s51, s51, 1
        s_cmp_lt_u32 s51, s53
        s_cselect_b32 s54, 0, 0x40000000
        v_or_b32 v28, s54, v26
        s_lshl_b32 s51, s34, 11
        s_add_u32 m0, s51, {L_W + 16384}
        s_lshl_b32 s54, s34, 12
        buffer_load_dwordx4 v27, s[44:47], s48 offen {WPOL} lds
        s_add_u32 m0, s51, {L_W + 16384 + 1024}
        s_nop 0
        buffer_load_dwordx4 v28, s[44:47], s49 offen {WPOL} lds
        """)
        for jj in range(4):
            A(f"s_add_u32 m0, s54, {L_W + 1024*jj}")
            A(f"s_add_u32 s49, s50, {jj*0x2000}")
            A(f"buffer_load_dwordx4 v{25 + (jj & 1)}, s[56:59], s49 offen {WPOL} lds")

    def kv(self, KVPOL, WPOL):
        A = self.A
        pat = self.opt.get("pattern", "wave")
        A("L_kv:")
        A("s_sub_u32 s34, s3, 2")
        A("s_lshl_b32 s48, s28, 20")
        A("s_lshl_b32 s49, s29, 17")
        A("s_add_u32 s48, s48, s49")
        if pat == "wave":
            A("s_lshl_b32 s49, s34, 14")
            step = 1024
        else:
            A("s_lshr_b32 s49, s34, 2")
            A("s_lshl_b32 s49, s49, 16")
            A("s_add_u32 s48, s48, s49")
            A("s_and_b32 s49, s34, 3")
            A("s_lshl_b32 s49, s49, 10")
            step = 4096
        A("""
        s_add_u32 s48, s48, s49
        v_lshl_add_u32 v1, v0, 4, s48
        s_waitcnt lgkmcnt(0)
        s_mov_b32 s36, s6
        s_mov_b32 s37, s7
        s_mov_b32 s38, 0x2000000
        s_mov_b32 s39, 0x20000
        s_mov_b32 s40, s8
        s_mov_b32 s41, s9
        s_mov_b32 s42, 0x2000000
        s_mov_b32 s43, 0x20000
        s_barrier
        """)

        def load(reg, srd, j):
            off = j * step
            if off & ~0xFFF != getattr(self, "_soff", None):
                self._soff = off & ~0xFFF
                A(f"s_mov_b32 s48, {self._soff}")
            A(f"buffer_load_dwordx4 v[{reg}:{reg+3}], v1, {srd}, s48 offen offset:{off & 0xFFF} {KVPOL}")
        dmapos = self.opt.get("dma", "late")
        bs = int(self.opt.get("bsplit", 8))
        kfirst = int(self.opt.get("kfirst", 1))

        def early(tag):
            if dmapos == tag:
                A("s_cmp_ge_u32 s34, 4")
                A("s_cbranch_scc1 L_nodma0")
                self.dma(WPOL)
                A("L_nodma0:")
                self._soff = None
        self._soff = None
        if kfirst:
            A("s_setprio 1")
        early("first")
        for j in range(16):
            load(32 + 4 * j, "s[36:39]", j)
        if kfirst:
            A("s_setprio 0")
        early("mid")
        for j in range(bs):
            load(96 + 4 * j, "s[40:43]", j)
        if bs < 16:
            A("s_cmp_ge_u32 s34, 4")
            A("s_cbranch_scc1 L_vsplit")
            self._soff = None
            for j in range(bs, 16):
                load(96 + 4 * j, "s[40:43]", j)
            A("L_vsplit:")
        early("endA")
        self.stamp(0)
        A(f"""
        v_and_b32 v4, 2, v2
        v_cmp_eq_u32 vcc, 0, v4
        v_mov_b32 v5, 0xffff0000
        v_mov_b32 v6, 0xffff
        v_cndmask_b32 v5, v5, v6, vcc
        v_and_b32 v4, 13, v2
        """)
        for d in range(4):
            A(f"v_cmp_eq_u32 vcc, {4*d}, v4")
            self.nop(2)
            A(f"v_cndmask_b32 v{8+d}, 0, v5, vcc")
        A(f"""
        v_and_b32 v4, 2, v0
        v_cmp_ne_u32 s[50:51], 0, v4
        v_and_b32 v4, 1, v0
        v_cmp_ne_u32 s[54:55], 0, v4
        v_mov_b32 v20, {L_FLAG}
        v_lshlrev_b32 v21, 4, v2
        s_mov_b32 s32, 0
        {"s_branch L_qready" if self.opt.get("x_nospin") else ""}
        L_qwait:
        ds_read_b64 v[22:23], v20
        s_add_u32 s32, s32, 1
        s_waitcnt lgkmcnt(0)
        v_readfirstlane_b32 s48, v22
        v_readfirstlane_b32 s31, v23
        s_cmp_lg_u32 s48, 0
        s_cbranch_scc1 L_qready
        s_sleep 2
        s_cmp_lt_u32 s32, {SPIN_MAX}
        s_cbranch_scc1 L_qwait
        L_qready:
        ds_read_b128 v[4:7], v21 offset:{L_Q}
        s_waitcnt vmcnt(16) lgkmcnt(0)
        s_cmp_lt_u32 s34, 4
        s_cbranch_scc1 L_kready
        s_waitcnt vmcnt({bs})
        L_kready:
        """)
        self.stamp(1)
        for d in range(4):
            for j in range(16):
                r = 32 + 4 * j
                A(f"v_dot2_f32_bf16 v{r}, v{r+d}, v{4+d}, {'0' if d == 0 else 'v%d' % r}")
        P = lambda j: 32 + 4 * j
        for j in range(8):
            A(f"v_add_f32_dpp v{P(j)}, v{P(j)}, v{P(j)} row_ror:8 row_mask:0xf bank_mask:0x3")
        for j in range(8):
            A(f"v_add_f32_dpp v{P(j)}, v{P(j+8)}, v{P(j+8)} row_ror:8 row_mask:0xf bank_mask:0xc")
        for j in range(4):
            A(f"v_add_f32_dpp v{P(j)}, v{P(j)}, v{P(j)} row_shl:4 row_mask:0xf bank_mask:0x5")
        for j in range(4):
            A(f"v_add_f32_dpp v{P(j)}, v{P(j+4)}, v{P(j+4)} row_shr:4 row_mask:0xf bank_mask:0xa")
        for j in range(2):
            A(f"v_cndmask_b32 v{16+j}, v{P(j)}, v{P(j+2)}, s[50:51]")
            A(f"v_cndmask_b32 v{18+j}, v{P(j+2)}, v{P(j)}, s[50:51]")
        self.nop(1)
        A("v_add_f32_dpp v16, v18, v16 quad_perm:[2,3,0,1] row_mask:0xf bank_mask:0xf")
        A("v_add_f32_dpp v17, v19, v17 quad_perm:[2,3,0,1] row_mask:0xf bank_mask:0xf")
        A("v_cndmask_b32 v19, v17, v16, s[54:55]")
        A("v_cndmask_b32 v18, v16, v17, s[54:55]")
        self.nop(1)
        A("v_add_f32_dpp v16, v19, v18 quad_perm:[1,0,3,2] row_mask:0xf bank_mask:0xf")
        self.round_bf16(16, 16)
        A(f"v_mul_f32 v16, {SCALE}, v16")
        self.round_bf16(16, 16)
        A("v_mov_b32 v17, v16")
        self.wave_reduce_to_sgpr("v_max_f32", 17, 49)
        A(f"""
        v_mov_b32 v31, {LOG2E}
        s_nop 0
        v_subrev_f32 v17, s49, v16
        v_mul_f32 v17, v17, v31
        v_exp_f32 v17, v17
        s_nop 0
        """)
        self.row_allreduce("v_add_f32", 17)
        self.nop(2)
        A("v_add_f32_dpp v17, v17, v17 row_bcast:15 row_mask:0xa bank_mask:0xf")
        self.nop(2)
        A("v_add_f32_dpp v17, v17, v17 row_bcast:31 row_mask:0xc bank_mask:0xf")
        A(f"""
        s_lshl_b32 s48, s34, 3
        v_mov_b32 v18, s48
        v_mov_b32 v19, s49
        s_mov_b32 exec_lo, 0
        s_mov_b32 exec_hi, 0x80000000
        ds_write2_b32 v18, v19, v17 offset0:{L_ML//4} offset1:{L_ML//4+1}
        s_mov_b64 exec, -1
        """)
        self.stamp(2)
        A(f"""
        v_and_b32 v18, 7, v0
        v_lshlrev_b32 v18, 3, v18
        s_waitcnt lgkmcnt(0)
        s_barrier
        ds_read_b32 v17, v18 offset:{L_ML}
        """)
        if bs < 16:
            A("s_cmp_lt_u32 s34, 4")
            A("s_cbranch_scc1 L_vdone")
            A("s_setprio 1")
            self._soff = None
            for j in range(bs, 16):
                load(96 + 4 * j, "s[40:43]", j)
            A("L_vdone:")
        self.stamp(3)
        A("s_waitcnt lgkmcnt(0)")
        self.oct_allreduce("v_max_f32", 17)
        A(f"""
        v_sub_f32 v17, v16, v17
        v_mul_f32 v17, v17, v31
        v_exp_f32 v17, v17
        s_lshl_b32 s48, s34, 9
        s_add_u32 s48, s48, {L_OS}
        v_lshl_add_u32 v18, v0, 3, s48
        v_cvt_pk_bf16_f32 v17, v17, v17
        """)
        self.nop(2)
        for j in range(16):
            for d in range(4):
                A(f"v_and_b32_dpp v{32+4*j+d}, v17, v{8+d} row_newbcast:{j} row_mask:0xf bank_mask:0xf")
        if self.opt.get("diagwave", 7) >= 4:
            self.stamp(6)
        A("s_cmp_ge_u32 s34, 4")
        A("s_cbranch_scc1 L_pv_b")
        A(f"s_waitcnt vmcnt({6 if dmapos == 'endA' else 0})")
        for j in range(16):
            c = "0" if j == 0 else "v[12:15]"
            A(f"v_mfma_f32_16x16x32_bf16 v[12:15], v[{32+4*j}:{35+4*j}], v[{96+4*j}:{99+4*j}], {c}")
        if dmapos == "late":
            self.dma(WPOL)
        A("s_branch L_pv_done")
        A("L_pv_b:")
        for j in range(16):
            A(f"s_waitcnt vmcnt({15-j})")
            if j == 15:
                self.stamp(5)
            c = "0" if j == 0 else "v[12:15]"
            A(f"v_mfma_f32_16x16x32_bf16 v[12:15], v[{32+4*j}:{35+4*j}], v[{96+4*j}:{99+4*j}], {c}")
        A("""
        L_pv_done:
        s_nop 7
        ds_write2_b32 v18, v12, v14 offset0:0 offset1:1
        s_waitcnt lgkmcnt(0)
        s_barrier
        """)
        self.stamp(4)
        A("s_cmp_ge_u32 s34, 4")
        A("s_cbranch_scc1 L_kv_end")
        A(f"""
        v_bfe_u32 v24, v2, 3, 1
        v_and_b32 v25, 1, v3
        v_lshl_add_u32 v24, v25, 1, v24
        v_xor_b32 v24, s34, v24
        v_lshlrev_b32 v24, 5, v24
        v_lshl_add_u32 v24, v3, 10, v24
        v_lshrrev_b32 v25, 2, v2
        v_lshl_add_u32 v24, v25, 7, v24
        v_and_b32 v25, 3, v2
        v_lshl_add_u32 v24, v25, 3, v24
        v_lshlrev_b32 v27, 4, v3
        v_mov_b32 v25, {L_FLAG + 8}
        v_mov_b32 v26, 1
        ds_read_b128 v[48:51], v27 offset:{L_H}
        ds_read_b128 v[52:55], v27 offset:{L_H + 64}
        s_lshl_b32 s48, s29, 15
        s_lshl_b32 s49, s28, 10
        s_add_u32 s48, s48, s49
        s_lshl_b32 s49, s34, 8
        s_add_u32 s48, s48, s49
        s_add_u32 s48, s48, {WS_Y}
        v_lshl_add_u32 v29, v0, 4, s48
        s_mov_b32 s32, 0
        s_mov_b64 exec, 1
        s_waitcnt vmcnt(0)
        ds_add_u32 v25, v26
        s_mov_b64 exec, -1
        L_wwait:
        ds_read_b32 v26, v25
        s_add_u32 s32, s32, 1
        s_waitcnt lgkmcnt(0)
        v_readfirstlane_b32 s48, v26
        s_cmp_ge_u32 s48, 4
        s_cbranch_scc1 L_wready
        s_cmp_lt_u32 s32, {SPIN_MAX}
        s_cbranch_scc1 L_wwait
        L_wready:
        """)
        for kk in range(2):
            A(f"ds_read_b64_tr_b16 v[{112+4*kk}:{113+4*kk}], v24 offset:{L_W + 16384 + 4096*kk}")
            A(f"ds_read_b64_tr_b16 v[{114+4*kk}:{115+4*kk}], v24 offset:{L_W + 16384 + 4096*kk + 512}")
        for kk in range(4):
            A(f"ds_read_b64_tr_b16 v[{96+4*kk}:{97+4*kk}], v24 offset:{L_W + 4096*kk}")
            A(f"ds_read_b64_tr_b16 v[{98+4*kk}:{99+4*kk}], v24 offset:{L_W + 4096*kk + 512}")
        A("""
        s_waitcnt lgkmcnt(8)
        v_mfma_f32_16x16x32_bf16 v[20:23], v[48:51], v[112:115], 0
        v_mfma_f32_16x16x32_bf16 v[20:23], v[52:55], v[116:119], v[20:23]
        v_mov_b32 v5, s31
        v_mov_b32 v7, s31
        s_nop 5
        v_mov_b32 v6, v20
        s_waitcnt lgkmcnt(0)
        """)
        self.stamp(6)
        A("s_barrier")
        for kk in range(4):
            A(f"ds_read_b128 v[{32+4*kk}:{35+4*kk}], v27 offset:{L_OB + 64*kk}")
        for kk in range(4):
            A(f"s_waitcnt lgkmcnt({3-kk})")
            c = "0" if kk == 0 else "v[16:19]"
            A(f"v_mfma_f32_16x16x32_bf16 v[16:19], v[{32+4*kk}:{35+4*kk}], v[{96+4*kk}:{99+4*kk}], {c}")
        A("""
        s_nop 6
        s_mov_b64 exec, 0xffff
        v_mov_b32 v4, v16
        global_store_dwordx4 v29, v[4:7], s[26:27] sc1
        L_kv_end:
        """)
        if self.diag:
            A("s_cmp_lg_u32 s34, %d" % self.opt.get("diagwave", 7))
            A("s_cbranch_scc1 L_end")
            if self.opt.get("diagwave", 7) < 4:
                self.stamp(5)
            self.dump_stamps(8, 7)


if __name__ == "__main__":
    out = sys.argv[1] if len(sys.argv) > 1 else "k1.s"
    opts = dict(a.split("=") for a in sys.argv[2:])
    diag = bool(int(opts.pop("diag", "0")))
    if "diagwave" in opts:
        opts["diagwave"] = int(opts["diagwave"])
    open(out, "w").write(Gen(diag, **opts).build())
```

```python
import sys

NAME = "parallel_sum__gqa_block_cached__geglu_ffn__decode"

WS_EPOCH = 0x0
WS_HINT = 0x4000
WS_XT = 0x8000
WS_Q = 0x10000
WS_G = 0x50000
WS_ML = 0x90000
WS_O = 0xA0000
WS_Y = 0xE0000
WS_STAMP = 0x8000000
L_Q = 0x000
L_H = 0x100
L_OB = 0x200
L_FLAG = 0x300
L_ML = 0x340
L_OS = 0x400
L_W = 0x2000
LDS_BYTES = 98304
SPIN_MAX = 1 << 20

LOG2E = 0x3FB8AA3B
SCALE = 0x3DB504F3
EPS = 0x3727C5AC
INV512 = 0x3B000000
GELU_K1 = 0x3D372713
GELU_C = 0xC0135761


class Gen:
    def __init__(self, diag=False, **opt):
        self.L = []
        self.diag = diag
        self.opt = opt

    def A(self, s):
        for line in s.split("\n"):
            line = line.strip()
            if line:
                self.L.append(line)

    def nop(self, n):
        if n > 0:
            self.A(f"s_nop {n-1}")

    def stamp(self, i):
        if self.diag:
            self.A(f"s_memrealtime s[{84+2*i}:{85+2*i}]")

    def dump_stamps(self, first, n):
        if not self.diag:
            return
        A = self.A
        A("s_waitcnt lgkmcnt(0)")
        A("s_mov_b64 exec, 1")
        A(f"s_lshl_b32 s48, s2, 7")
        A(f"s_add_u32 s48, s48, {WS_STAMP + 8*first}")
        A("v_mov_b32 v1, s48")
        for k in range(n):
            A(f"v_mov_b32 v2, s{84+2*k}")
            A(f"v_mov_b32 v3, s{85+2*k}")
            A(f"global_store_dwordx2 v1, v[2:3], s[26:27] offset:{8*k} sc1")
            A("s_nop 1")

    def row_allreduce(self, op, v, steps=("row_ror:8", "row_ror:4", "row_ror:2", "row_ror:1")):
        for st in steps:
            self.nop(2)
            self.A(f"{op}_dpp v{v}, v{v}, v{v} {st} row_mask:0xf bank_mask:0xf")

    def wave_reduce_to_sgpr(self, op, v, s):
        self.row_allreduce(op, v)
        self.nop(2)
        self.A(f"{op}_dpp v{v}, v{v}, v{v} row_bcast:15 row_mask:0xa bank_mask:0xf")
        self.nop(2)
        self.A(f"{op}_dpp v{v}, v{v}, v{v} row_bcast:31 row_mask:0xc bank_mask:0xf")
        self.nop(1)
        self.A(f"v_readlane_b32 s{s}, v{v}, 63")

    def oct_allreduce(self, op, v):
        self.row_allreduce(op, v, ("quad_perm:[1,0,3,2]", "quad_perm:[2,3,0,1]", "row_half_mirror"))

    def round_bf16(self, dst, src):
        self.A(f"v_cvt_pk_bf16_f32 v{dst}, v{src}, v{src}")
        self.A(f"v_and_b32 v{dst}, 0xffff0000, v{dst}")

    def build(self):
        A = self.A
        o = self.opt
        KVPOL = o.get("kvpol", "nt")
        WPOL = o.get("wpol", "nt")
        A(f"; @launch grid=(256,1,1) block=(640,1,1) lds={self.opt.get('lds', LDS_BYTES)}")
        A('.amdgcn_target "amdgcn-amd-amdhsa--gfx950"')
        A(".text")
        A(f".globl {NAME}_kernel")
        A(".p2align 8")
        A(f".type {NAME}_kernel,@function")
        A(f"{NAME}_kernel:")
        self.stamp(0)
        A("""
        s_cmp_ge_u32 s2, 0x100
        s_cbranch_scc1 L_end
        s_load_dwordx16 s[4:19], s[0:1], 0
        s_load_dwordx8 s[20:27], s[0:1], 64
        v_lshrrev_b32 v1, 6, v0
        v_and_b32 v0, 63, v0
        """)
        if o.get("map", "xcd") == "xcd":
            A("""
            s_and_b32 s28, s2, 7
            s_lshl_b32 s28, s28, 2
            v_readfirstlane_b32 s3, v1
            s_bfe_u32 s29, s2, 0x20003
            s_add_u32 s28, s28, s29
            s_lshr_b32 s29, s2, 5
            s_lshl_b32 s30, s28, 3
            s_add_u32 s30, s30, s29
            s_and_b32 s48, s2, 7
            s_mul_i32 s52, s48, 43
            s_add_u32 s53, s52, 43
            s_lshr_b32 s52, s52, 3
            s_lshr_b32 s53, s53, 3
            s_sub_u32 s53, s53, s52
            s_and_b32 s48, s28, 3
            s_mul_i32 s48, s48, s53
            s_lshl_b32 s52, s52, 2
            s_add_u32 s52, s52, s48
            """)
        else:
            A("""
            s_lshr_b32 s28, s2, 3
            s_and_b32 s29, s2, 7
            v_readfirstlane_b32 s3, v1
            s_mov_b32 s30, s2
            s_mul_i32 s52, s28, 43
            s_add_u32 s53, s52, 43
            s_lshr_b32 s52, s52, 3
            s_lshr_b32 s53, s53, 3
            s_sub_u32 s53, s53, s52
            """)
        A("""
        v_and_b32 v2, 15, v0
        v_lshrrev_b32 v3, 4, v0
        s_cmp_lt_u32 s3, 2
        s_cbranch_scc1 L_ctrl
        """)
        self.kv(KVPOL, WPOL)
        A("s_endpgm")
        A("L_ctrl:")
        self.ctrl(WPOL)
        A("L_end:")
        A("s_endpgm")
        A('.section .rodata,"a"')
        A(".p2align 6")
        A(f".amdhsa_kernel {NAME}_kernel")
        A("  .amdhsa_next_free_vgpr 160")
        A("  .amdhsa_next_free_sgpr 102")
        A("  .amdhsa_accum_offset 160")
        A("  .amdhsa_group_segment_fixed_size 0")
        A("  .amdhsa_kernarg_size 96")
        A("  .amdhsa_user_sgpr_count 2")
        A("  .amdhsa_user_sgpr_kernarg_segment_ptr 1")
        A("  .amdhsa_system_sgpr_workgroup_id_x 1")
        A(".end_amdhsa_kernel")
        return "\n".join(self.L) + "\n"

    def ctrl(self, WPOL):
        A = self.A
        A(f"""
        s_setprio {self.opt.get('cprio', 2)}
        s_movk_i32 s48, 2752
        s_mov_b32 s49, 0
        s_sub_u32 s50, s53, 1
        s_cmp_eq_u32 s3, 0
        s_cselect_b32 s48, 0x2000, s48
        s_cselect_b32 s50, 7, s50
        s_lshl_b32 s51, s29, 6
        v_lshl_add_u32 v4, v3, 4, s51
        v_and_b32 v5, 7, v2
        v_min_u32 v5, s50, v5
        v_mul_lo_u32 v6, v4, s48
        v_lshl_add_u32 v6, v5, 4, v6
        v_lshlrev_b32 v4, 1, v4
        v_lshlrev_b32 v5, 4, v0
        v_mov_b32 v7, 0
        v_mov_b32 v20, {L_FLAG}
        v_cmp_gt_u32 vcc, 8, v2
        s_lshl_b32 s54, s28, 8
        s_lshl_b32 s55, s52, 4
        ds_write_b32 v20, v7 offset:8
        s_waitcnt lgkmcnt(0)
        {"s_barrier" if self.opt.get("binit", "late") == "early" else ""}
        {"s_memrealtime s[88:89]" if self.diag and self.opt.get("st2") == "s" else ""}
        global_load_dword v21, v7, s[26:27] sc1
        global_load_dwordx4 v[16:19], v5, s[4:5]
        global_load_dwordx4 v[8:11], v4, s[4:5]
        global_load_dwordx4 v[12:15], v4, s[4:5] offset:16
        s_cmp_eq_u32 s3, 0
        s_cbranch_scc0 L_c1_ptr
        s_add_u32 s56, s10, s54
        s_addc_u32 s57, s11, 0
        s_add_u32 s58, s56, 128
        s_addc_u32 s59, s57, 0
        s_branch L_c_ptr_done
        L_c1_ptr:
        s_add_u32 s56, s16, s55
        s_addc_u32 s57, s17, 0
        s_add_u32 s58, s18, s55
        s_addc_u32 s59, s19, 0
        L_c_ptr_done:
        v_mov_b32 v22, s58
        v_mov_b32 v23, s59
        v_mov_b32 v24, s56
        v_mov_b32 v25, s57
        v_cndmask_b32 v22, v22, v24, vcc
        v_cndmask_b32 v23, v23, v25, vcc
        v_lshl_add_u64 v[22:23], v[6:7], 0, v[22:23]
        """)
        if self.opt.get("x_noq"):
            A("s_mov_b32 s48, 0")
        if self.opt.get("x_nog"):
            A("s_cmp_eq_u32 s3, 0")
            A("s_cselect_b32 s48, s48, 0")
        for j in range(16):
            A(f"global_load_dwordx4 v[{64+4*j}:{67+4*j}], v[22:23], off {WPOL}")
            if j < 15:
                A("v_lshl_add_u64 v[22:23], v[22:23], 0, s[48:49]")
        if self.opt.get("st2") == "s":
            self.stamp(3)
        if self.opt.get("binit", "late") == "late":
            A("s_barrier")
        NT = 0
        if int(self.opt.get("touch", 0)):
            NT = 4
            A("""
            s_lshl_b32 s54, s30, 17
            v_mov_b32 v4, s54
            s_lshl_b32 s54, s28, 17
            v_mov_b32 v5, s54
            s_lshl_b32 s54, s52, 13
            v_mov_b32 v6, s54
            s_mov_b64 exec, 1
            global_load_dword v56, v4, s[8:9] nt
            global_load_dword v57, v5, s[12:13] nt
            global_load_dword v58, v6, s[20:21] nt
            global_load_dword v59, v7, s[22:23] nt
            s_mov_b64 exec, -1
            """)
        self.stamp(1)
        A("""
        s_lshl_b32 s54, s29, 7
        s_lshl_b32 s55, s28, 2
        s_add_u32 s54, s54, s55
        s_load_dword s33, s[4:5], s54
        """)
        A("""
        v_and_b32 v4, 2, v2
        v_cmp_eq_u32 vcc, 0, v4
        v_mov_b32 v5, 0x01000c0c
        v_mov_b32 v6, 0x0c0c0100
        v_cndmask_b32 v5, v5, v6, vcc
        v_mov_b32 v6, 0x03020c0c
        v_mov_b32 v7, 0x0c0c0302
        v_cndmask_b32 v6, v6, v7, vcc
        v_and_b32 v4, 13, v2
        v_mov_b32 v7, 0x0c0c0c0c
        """)
        for d in range(4):
            A(f"v_cmp_eq_u32 vcc, {4*d}, v4")
            self.nop(2)
            A(f"v_cndmask_b32 v{24+2*d}, v7, v5, vcc")
            A(f"v_cndmask_b32 v{25+2*d}, v7, v6, vcc")
        A(f"s_waitcnt vmcnt({18+NT})")
        A("v_or_b32 v21, 15, v21")
        A("v_add_u32 v21, 1, v21")
        for k in range(4):
            A(f"v_lshlrev_b32 v{44+2*k}, 16, v{16+k}")
            A(f"v_and_b32 v{45+2*k}, 0xffff0000, v{16+k}")
        A("v_readfirstlane_b32 s31, v21")
        A("""
        v_add_f32 v4, v44, v45
        v_add_f32 v5, v46, v47
        v_add_f32 v6, v48, v49
        v_add_f32 v7, v50, v51
        v_add_f32 v4, v4, v5
        v_add_f32 v6, v6, v7
        v_add_f32 v4, v4, v6
        """)
        self.wave_reduce_to_sgpr("v_add_f32", 4, 54)
        A(f"v_mov_b32 v5, {INV512}")
        self.nop(1)
        A("v_mul_f32 v20, s54, v5")
        for k in range(8):
            A(f"v_sub_f32 v{44+k}, v{44+k}, v20")
        A("v_mul_f32 v4, v44, v44")
        for k in range(1, 8):
            A(f"v_fmac_f32 v4, v{44+k}, v{44+k}")
        self.wave_reduce_to_sgpr("v_add_f32", 4, 54)
        self.round_bf16(20, 20)
        A("v_mul_f32 v4, s54, v5")
        self.round_bf16(4, 4)
        A(f"v_add_f32 v4, {EPS}, v4")
        self.round_bf16(4, 4)
        A("v_sqrt_f32 v4, v4")
        self.nop(1)
        self.round_bf16(4, 4)
        A("v_rcp_f32 v6, v4")
        A("v_mov_b32 v21, v20")
        A("v_mov_b32 v5, v4")
        A("v_mov_b32 v7, v6")
        A(f"s_waitcnt vmcnt({16+NT})")
        for k in range(8):
            x = 8 + k
            A(f"""
            v_lshlrev_b32 v44, 16, v{x}
            v_and_b32 v45, 0xffff0000, v{x}
            v_pk_add_f32 v[44:45], v[44:45], v[20:21] neg_lo:[0,1] neg_hi:[0,1]
            v_cvt_pk_bf16_f32 v46, v44, v45
            v_lshlrev_b32 v44, 16, v46
            v_and_b32 v45, 0xffff0000, v46
            v_pk_mul_f32 v[46:47], v[44:45], v[6:7]
            v_pk_fma_f32 v[44:45], v[46:47], v[4:5], v[44:45] neg_lo:[1,0,0] neg_hi:[1,0,0]
            v_pk_fma_f32 v[46:47], v[44:45], v[6:7], v[46:47]
            v_cvt_pk_bf16_f32 v{x}, v46, v47
            """)

        def perms(j):
            a = 32 + 4 * (j & 1)
            for d in range(4):
                A(f"v_perm_b32 v{a+d}, v{8+(j>>1)}, v{8+(j>>1)}, v{24+2*d+(j&1)}")
        perms(0)
        for j in range(16):
            if j < 15:
                perms(j + 1)
            else:
                self.nop(2)
            A(f"s_waitcnt vmcnt({15-j+NT})")
            a = 32 + 4 * (j & 1)
            c = "0" if j == 0 else "v[40:43]"
            A(f"v_mfma_f32_16x16x32_bf16 v[40:43], v[{a}:{a+3}], v[{64+4*j}:{67+4*j}], {c}")
        A(f"""
        s_mul_i32 s54, s3, {WS_G - WS_Q}
        s_add_u32 s54, s54, {WS_Q}
        s_lshl_b32 s55, s30, 10
        s_add_u32 s55, s55, s54
        v_lshl_add_u32 v4, v0, 4, s55
        s_lshl_b32 s55, s28, 13
        s_add_u32 s55, s55, s54
        s_add_u32 s55, s55, 4096
        v_lshl_add_u32 v5, v0, 4, s55
        s_lshl_b32 s54, s28, 8
        s_lshl_b32 s55, s3, 7
        s_add_u32 s54, s54, s55
        s_add_u32 s54, s54, {WS_HINT}
        v_mov_b32 v41, s31
        v_mov_b32 v43, s31
        global_store_dwordx4 v4, v[40:43], s[26:27] sc1
        s_add_u32 s46, s26, s54
        s_addc_u32 s47, s27, 0
        s_lshl_b32 s55, s29, 2
        v_mov_b32 v6, s55
        s_getreg_b32 s44, hwreg(HW_REG_XCC_ID, 0, 4)
        s_or_b32 s44, s44, s31
        v_mov_b32 v7, s44
        s_mov_b64 exec, 1
        global_store_dword v6, v7, s[46:47] sc1
        s_mov_b64 exec, -1
        s_mov_b32 s32, 0
        s_mov_b32 s45, s44
        s_mov_b32 s43, 1
        s_mov_b32 s35, 0
        """)
        if self.opt.get("st2") != "s":
            self.stamp(2)
        if self.opt.get("x_nopoll"):
            A("s_branch L_qdone")
        if self.opt.get("x_nopoll1"):
            A("s_cmp_eq_u32 s3, 1")
            A("s_cbranch_scc1 L_qdone")
        A(f"""
        L_qhint:
        s_load_dwordx8 s[56:63], s[46:47], 0 glc
        s_add_u32 s32, s32, 1
        s_cmp_ge_u32 s32, {SPIN_MAX}
        s_cbranch_scc1 L_qpoll
        s_waitcnt lgkmcnt(0)
        s_xor_b64 s[56:57], s[56:57], s[44:45]
        s_xor_b64 s[58:59], s[58:59], s[44:45]
        s_xor_b64 s[60:61], s[60:61], s[44:45]
        s_xor_b64 s[62:63], s[62:63], s[44:45]
        s_or_b64 s[56:57], s[56:57], s[58:59]
        s_or_b64 s[60:61], s[60:61], s[62:63]
        s_or_b64 s[56:57], s[56:57], s[60:61]
        s_or_b32 s43, s56, s57
        s_cmp_lt_u32 s43, 16
        s_cbranch_scc1 L_qpoll
        s_sleep {self.opt.get("hintsleep", 4)}
        s_branch L_qhint
        """)
        A("L_qpoll:")
        if self.opt.get("x_hintonly"):
            A("s_branch L_qdone")
        if self.diag:
            A("s_add_u32 s35, s35, 1")
        for k in range(8):
            A(f"global_load_dwordx4 v[{64+4*k}:{67+4*k}], v5, s[26:27] offset:{1024*k-4096} {self.opt.get('x_qpol', 'sc1')}")
        A("s_add_u32 s32, s32, 1")
        for k in range(8):
            r = 64 + 4 * k
            A(f"s_waitcnt vmcnt({7-k})")
            if k == 0:
                A(f"v_xor_b32 v6, s31, v{r+1}")
                A(f"v_mov_b32 v44, v{r}")
                A(f"v_mov_b32 v45, v{r+2}")
            else:
                A(f"v_bitop3_b32 v6, v{r+1}, s31, v6 bitop3:0xbe")
                A(f"v_add_f32 v44, v44, v{r}")
                A(f"v_add_f32 v45, v45, v{r+2}")
            A(f"v_bitop3_b32 v6, v{r+3}, s31, v6 bitop3:0xbe")
        A(f"""
        v_cmp_ne_u32 vcc, 0, v6
        s_cbranch_vccz L_qdone
        s_cmp_lt_u32 s32, {SPIN_MAX}
        s_cbranch_scc1 L_qhint
        L_qdone:
        v_cvt_pk_bf16_f32 v44, v44, v45
        v_lshlrev_b32 v22, 4, v2
        v_lshl_add_u32 v22, v3, 2, v22
        s_cmp_eq_u32 s3, 0
        s_cbranch_scc1 L_c0
        """)
        A(f"""
        v_mov_b32_dpp v45, v44 row_ror:8 row_mask:0xf bank_mask:0xf
        v_lshlrev_b32 v46, 16, v44
        v_and_b32 v47, 0xffff0000, v44
        v_mov_b32 v50, {GELU_K1}
        v_mul_f32 v48, v46, v46
        v_mul_f32 v49, v47, v47
        v_mul_f32 v48, v48, v46
        v_mul_f32 v49, v49, v47
        v_fma_f32 v48, v48, v50, v46
        v_fma_f32 v49, v49, v50, v47
        v_mul_f32 v48, {GELU_C}, v48
        v_mul_f32 v49, {GELU_C}, v49
        v_exp_f32 v48, v48
        v_exp_f32 v49, v49
        s_nop 0
        v_add_f32 v48, 1.0, v48
        v_add_f32 v49, 1.0, v49
        v_rcp_f32 v48, v48
        v_rcp_f32 v49, v49
        s_nop 0
        v_mul_f32 v46, v46, v48
        v_mul_f32 v47, v47, v49
        v_cvt_pk_bf16_f32 v44, v46, v47
        v_lshlrev_b32 v46, 16, v44
        v_and_b32 v47, 0xffff0000, v44
        v_lshlrev_b32 v48, 16, v45
        v_and_b32 v49, 0xffff0000, v45
        v_cmp_gt_u32 vcc, s53, v2
        v_mul_f32 v46, v46, v48
        v_mul_f32 v47, v47, v49
        v_cvt_pk_bf16_f32 v44, v46, v47
        v_cndmask_b32 v44, 0, v44, vcc
        ds_write_b32 v22, v44 offset:{L_H}
        s_waitcnt lgkmcnt(0)
        s_endpgm
        """)
        A(f"""
        L_c0:
        v_mov_b32 v20, {L_FLAG}
        v_mov_b32 v7, s31
        ds_write_b32 v22, v44 offset:{L_Q}
        ds_write_b32 v20, v7
        """)
        if self.opt.get("st2") != "s":
            self.stamp(3)
        A(f"""
        s_waitcnt lgkmcnt(0)
        s_barrier
        v_and_b32 v23, 7, v0
        v_lshlrev_b32 v4, 3, v23
        s_lshl_b32 s54, s28, 7
        s_add_u32 s54, s54, {WS_ML}
        s_add_u32 s46, s26, s54
        s_addc_u32 s47, s27, 0
        s_lshl_b32 s54, s29, 4
        v_mov_b32 v24, s54
        s_lshl_b32 s54, s30, 10
        s_add_u32 s54, s54, {WS_O}
        v_lshl_add_u32 v26, v0, 4, s54
        s_lshl_b32 s54, s28, 13
        s_add_u32 s54, s54, {WS_O + 4096}
        v_lshl_add_u32 v27, v0, 4, s54
        s_sub_u32 s54, s54, {4096 - 1020}
        v_lshl_add_u32 v23, v23, 10, s54
        s_lshl_b32 s54, s29, 15
        s_lshl_b32 s55, s28, 5
        s_add_u32 s54, s54, s55
        s_add_u32 s54, s54, {WS_Y}
        v_lshrrev_b32 v5, 1, v0
        v_lshlrev_b32 v5, 10, v5
        v_and_b32 v6, 1, v0
        v_lshl_add_u32 v5, v6, 4, v5
        v_add_u32 v28, s54, v5
        s_lshl_b32 s54, s29, 7
        s_lshl_b32 s55, s28, 2
        s_add_u32 s54, s54, s55
        v_lshl_add_u32 v29, v0, 1, s54
        v_lshlrev_b32 v30, 3, v0
        v_mov_b32 v31, {LOG2E}
        v_cmp_eq_u32 vcc, 0, v6
        s_lshl_b32 s54, s33, 16
        s_and_b32 s55, s33, 0xffff0000
        v_mov_b32 v20, s55
        v_mov_b32 v21, s54
        v_cndmask_b32 v20, v20, v21, vcc
        """)
        warm = self.opt.get("warm", "n")
        if "o" in warm:
            A(f"global_load_dwordx4 v[64:67], v26, s[26:27] {self.opt.get('warmpol', 'sc1')}")
            A(f"global_load_dword v68, v24, s[46:47] {self.opt.get('warmpol', 'sc1')}")
        if "y" in warm:
            A(f"global_load_dwordx4 v[72:75], v28, s[26:27] {self.opt.get('warmpol', 'sc1')}")
        A("s_barrier")
        self.stamp(4)
        A(f"""
        ds_read_b64 v[8:9], v4 offset:{L_ML}
        s_waitcnt lgkmcnt(0)
        v_mov_b32 v12, v8
        """)
        self.oct_allreduce("v_max_f32", 12)
        A("""
        v_sub_f32 v8, v8, v12
        v_mul_f32 v8, v8, v31
        v_exp_f32 v8, v8
        v_mov_b32 v13, s31
        v_mul_f32 v14, v8, v9
        """)
        self.oct_allreduce("v_add_f32", 14)
        A(f"""
        v_mov_b32 v15, s31
        {"s_mov_b32 s43, 1" if self.opt.get("nolocal") else ""}
        s_mov_b64 exec, 1
        s_cmp_eq_u32 s43, 0
        s_cbranch_scc1 L_ml_local
        global_store_dwordx4 v24, v[12:15], s[46:47] sc1
        s_branch L_ml_done
        L_ml_local:
        global_store_dwordx4 v24, v[12:15], s[46:47]
        L_ml_done:
        s_mov_b64 exec, -1
        v_mov_b32 v41, s31
        v_mov_b32 v43, s31
        v_lshlrev_b32 v25, 1, v4
        s_mov_b32 s32, 0
        {"s_waitcnt vmcnt(1)" if warm != "n" else ""}
        s_barrier
        """)
        self.stamp(5)
        if self.opt.get("x_notail"):
            self.stamp(6)
            A("s_barrier")
            A("s_branch L_c0_end")
        for k in range(4):
            A(f"ds_read2st64_b64 v[{64+4*k}:{67+4*k}], v30 offset0:{L_OS//512+2*k} offset1:{L_OS//512+2*k+1}")
        A("""
        s_waitcnt lgkmcnt(2)
        v_pk_add_f32 v[64:65], v[64:65], v[66:67]
        v_pk_add_f32 v[68:69], v[68:69], v[70:71]
        s_waitcnt lgkmcnt(0)
        v_pk_add_f32 v[72:73], v[72:73], v[74:75]
        v_pk_add_f32 v[76:77], v[76:77], v[78:79]
        v_pk_add_f32 v[64:65], v[64:65], v[68:69]
        v_pk_add_f32 v[72:73], v[72:73], v[76:77]
        s_cmp_eq_u32 s43, 0
        v_add_f32 v40, v64, v72
        v_add_f32 v42, v65, v73
        s_cbranch_scc0 L_o_remote
        global_store_dwordx4 v26, v[40:43], s[26:27]
        L_opoll:
        """)
        if self.opt.get("st2") == "o":
            self.stamp(1)
        A("global_load_dwordx4 v[8:11], v25, s[46:47] sc1")
        for k in range(8):
            A(f"global_load_dwordx4 v[{64+4*k}:{67+4*k}], v27, s[26:27] offset:{1024*k-4096} sc1")
        A("s_add_u32 s32, s32, 1")
        A("s_waitcnt vmcnt(8)")
        if self.opt.get("st2") == "o":
            self.stamp(2)

        def chk(k, wait=True):
            r = 64 + 4 * k
            if wait:
                A(f"s_waitcnt vmcnt({7-k})")
            A(f"v_xor_b32 v7, s31, v{r+1}")
            A(f"v_bitop3_b32 v7, v{r+3}, s31, v7 bitop3:0xbe")
            A(f"v_cmp_ne_u32 s[{64+2*k}:{65+2*k}], 0, v7")
        dpp = lambda op, v, c: A(f"{op}_dpp v{v}, v{v}, v{v} {c} row_mask:0xf bank_mask:0xf")
        A("""
        v_mov_b32 v12, v8
        v_xor_b32 v6, s31, v9
        v_bitop3_b32 v6, v11, s31, v6 bitop3:0xbe
        """)
        dpp("v_max_f32", 12, "quad_perm:[1,0,3,2]")
        A("v_cmp_ne_u32 s[38:39], 0, v6")
        A("s_nop 0")
        dpp("v_max_f32", 12, "quad_perm:[2,3,0,1]")
        chk(0)
        dpp("v_max_f32", 12, "row_half_mirror")
        A("""
        v_sub_f32 v8, v8, v12
        v_mul_f32 v8, v8, v31
        v_exp_f32 v8, v8
        """)
        chk(1)
        A("v_mul_f32 v14, v8, v10")
        chk(2)
        dpp("v_add_f32", 14, "quad_perm:[1,0,3,2]")
        chk(3)
        dpp("v_add_f32", 14, "quad_perm:[2,3,0,1]")
        chk(4)
        dpp("v_add_f32", 14, "row_half_mirror")
        A("v_rcp_f32 v14, v14")
        chk(5)
        A("v_mul_f32 v8, v8, v14")
        A("s_cmp_eq_u64 s[38:39], 0")
        A("s_cbranch_scc0 L_mlretry")
        for k in range(8):
            A(f"v_readlane_b32 s{56+k}, v8, {k}")
        chk(6)
        chk(7)

        def ortree():
            A("s_or_b64 s[36:37], s[64:65], s[66:67]")
            A("s_or_b64 s[38:39], s[68:69], s[70:71]")
            A("s_or_b64 s[40:41], s[72:73], s[74:75]")
            A("s_or_b64 s[36:37], s[36:37], s[38:39]")
            A("s_or_b64 s[36:37], s[36:37], s[40:41]")
            A("s_or_b64 s[36:37], s[36:37], s[76:77]")
            A("s_or_b64 s[36:37], s[36:37], s[78:79]")

        def reload():
            for k in range(8):
                A(f"s_mov_b64 exec, s[{64+2*k}:{65+2*k}]")
                A(f"global_load_dwordx4 v[{64+4*k}:{67+4*k}], v27, s[26:27] offset:{1024*k-4096} sc1")
            A("s_mov_b64 exec, -1")
        ortree()
        if self.opt.get("st2") == "o":
            self.stamp(3)
        A("s_cbranch_scc0 L_osum")
        reload()
        A("L_oround:")
        reload()
        A("s_waitcnt vmcnt(8)")
        for k in range(8):
            chk(k, False)
        A(f"""
        s_add_u32 s32, s32, 1
        s_cmp_lt_u32 s32, {SPIN_MAX}
        s_cbranch_scc0 L_osum
        """)
        ortree()
        A("""
        s_cbranch_scc1 L_oround
        L_osum:
        s_waitcnt vmcnt(0)
        v_mul_f32 v44, s56, v64
        v_mul_f32 v45, s56, v66
        """)
        for k in range(1, 8):
            A(f"v_fmac_f32 v44, s{56+k}, v{64+4*k}")
            A(f"v_fmac_f32 v45, s{56+k}, v{66+4*k}")
        A(f"""
        v_cvt_pk_bf16_f32 v44, v44, v45
        L_odone:
        ds_write_b32 v22, v44 offset:{L_OB}
        s_mov_b32 s34, s32
        s_mov_b32 s32, 0
        """)
        self.stamp(6)
        A(f"""
        s_waitcnt lgkmcnt(0)
        s_barrier
        s_mov_b64 vcc, -1
        global_load_dwordx4 v[8:11], v28, s[26:27] sc1
        L_ypoll:
        s_mov_b64 exec, vcc
        global_load_dwordx4 v[8:11], v28, s[26:27] sc1
        s_mov_b64 exec, -1
        s_add_u32 s32, s32, 1
        s_waitcnt vmcnt(1)
        v_xor_b32 v6, s31, v9
        v_bitop3_b32 v6, v11, s31, v6 bitop3:0xbe
        v_cmp_ne_u32 vcc, 0, v6
        s_bcnt1_i32_b64 s48, vcc
        s_cbranch_scc0 L_ydone
        s_cmp_ge_u32 s32, {SPIN_MAX}
        s_cbranch_scc1 L_ydone
        s_cmp_le_u32 s48, {self.opt.get("yth", 16)}
        s_cbranch_scc1 L_ypoll
        s_sleep {self.opt.get("ysleep", 4)}
        s_branch L_ypoll
        L_ydone:
        {"s_memrealtime s[88:89]" if self.diag and self.opt.get("st2") == "y" else ""}
        s_waitcnt vmcnt(0)
        v_permlane32_swap_b32 v8, v10
        v_add_f32 v16, v8, v10
        v_add_f32 v18, v8, v10
        s_nop 1
        v_permlane16_swap_b32 v16, v18
        v_add_f32 v16, v16, v18
        """)
        self.row_allreduce("v_add_f32", 16, ("quad_perm:[2,3,0,1]", "row_ror:4", "row_ror:8"))
        self.round_bf16(16, 16)
        A("""
        v_add_f32 v12, v20, v16
        v_mov_b32 v18, v16
        """)
        self.round_bf16(12, 12)
        A("""
        v_permlane32_swap_b32 v16, v18
        v_add_f32 v12, v12, v18
        v_cvt_pk_bf16_f32 v12, v12, v12
        s_mov_b64 exec, 3
        global_store_short v29, v12, s[22:23] %s
        s_cmp_lg_u32 s30, 0
        s_cbranch_scc1 L_c0_end
        s_mov_b64 exec, 1
        v_mov_b32 v4, 0
        v_mov_b32 v5, s31
        global_store_dword v4, v5, s[26:27] sc1
        L_c0_end:
        """ % self.opt.get("outpol", ""))
        self.stamp(7)
        self.dump_stamps(0, 8)
        if self.diag:
            A("""
            s_lshl_b32 s34, s34, 10
            s_lshl_b32 s32, s32, 20
            s_or_b32 s35, s35, s34
            s_or_b32 s35, s35, s32
            v_mov_b32 v2, s35
            v_mov_b32 v3, 0
            global_store_dwordx2 v1, v[2:3], s[26:27] offset:120
            """)
        if self.opt.get("dbgstamp"):
            A(f"""
            s_waitcnt vmcnt(0)
            v_mov_b32 v1, 0
            v_mov_b32 v2, 1
            global_atomic_add v3, v1, v2, s[24:25] offset:252 sc0 sc1
            s_waitcnt vmcnt(0)
            v_readfirstlane_b32 s48, v3
            s_cmp_lg_u32 s48, 255
            s_cbranch_scc1 L_end
            s_mov_b64 exec, -1
            v_mov_b32 v1, 0
            s_mov_b32 s48, {WS_STAMP}
            v_lshl_add_u32 v4, v0, 7, s48
            """)
            for k in range(16):
                src = 0 if k == 15 else k
                for q in range(4):
                    A(f"v_add_u32 v5, {q*8192 + 8*src}, v4")
                    A(f"global_load_dword v{8+q}, v5, s[26:27] sc1")
                A("s_waitcnt vmcnt(0)")
                op = "v_min_u32" if k == 15 else "v_max_u32"
                A(f"{op} v8, v8, v9")
                A(f"{op} v10, v10, v11")
                A(f"{op} v8, v8, v10")
                self.wave_reduce_to_sgpr(op, 8, 49)
                self.nop(2)
                A("v_mov_b32 v6, s49")
                A(f"global_store_dword v1, v6, s[24:25] offset:{4*k}")
        A(f"""
        s_endpgm
        L_mlretry:
        s_waitcnt vmcnt(0)
        s_sleep 2
        s_cmp_lt_u32 s32, {SPIN_MAX}
        s_cbranch_scc1 L_opoll
        s_branch L_odone
        L_o_remote:
        global_store_dwordx4 v26, v[40:43], s[26:27] sc1
        s_branch L_opoll
        """)

    def dma(self, WPOL):
        A = self.A
        A(f"""
        s_mov_b32 s56, s12
        s_mov_b32 s57, s13
        s_mov_b32 s58, 0x400000
        s_mov_b32 s59, 0x20000
        s_mov_b32 s44, s20
        s_mov_b32 s45, s21
        s_mov_b32 s46, 1409024
        s_mov_b32 s47, 0x20000
        v_lshrrev_b32 v24, 3, v0
        v_and_b32 v25, 1, v3
        v_lshlrev_b32 v25, 1, v25
        v_and_b32 v26, 7, v0
        v_xor_b32 v25, v25, v26
        v_lshlrev_b32 v25, 4, v25
        v_lshl_add_u32 v25, v24, 10, v25
        v_xor_b32 v26, 64, v25
        s_lshl_b32 s49, s29, 7
        s_lshl_b32 s50, s28, 17
        s_add_u32 s50, s50, s49
        s_lshl_b32 s48, s34, 15
        s_add_u32 s50, s50, s48
        s_lshl_b32 s51, s34, 1
        s_add_u32 s48, s52, s51
        s_lshl_b32 s48, s48, 13
        s_add_u32 s48, s48, s49
        s_add_u32 s49, s48, 0x2000
        s_cmp_lt_u32 s51, s53
        s_cselect_b32 s54, 0, 0x40000000
        v_or_b32 v27, s54, v25
        s_add_u32 s51, s51, 1
        s_cmp_lt_u32 s51, s53
        s_cselect_b32 s54, 0, 0x40000000
        v_or_b32 v28, s54, v26
        s_lshl_b32 s51, s34, 11
        s_add_u32 m0, s51, {L_W + 16384}
        s_lshl_b32 s54, s34, 12
        buffer_load_dwordx4 v27, s[44:47], s48 offen {WPOL} lds
        s_add_u32 m0, s51, {L_W + 16384 + 1024}
        s_nop 0
        buffer_load_dwordx4 v28, s[44:47], s49 offen {WPOL} lds
        """)
        for jj in range(4):
            A(f"s_add_u32 m0, s54, {L_W + 1024*jj}")
            A(f"s_add_u32 s49, s50, {jj*0x2000}")
            A(f"buffer_load_dwordx4 v{25 + (jj & 1)}, s[56:59], s49 offen {WPOL} lds")

    def kv(self, KVPOL, WPOL):
        A = self.A
        pat = self.opt.get("pattern", "wave")
        A("s_sub_u32 s34, s3, 2")
        A("s_lshl_b32 s48, s28, 20")
        A("s_lshl_b32 s49, s29, 17")
        A("s_add_u32 s48, s48, s49")
        if pat == "wave":
            A("s_lshl_b32 s49, s34, 14")
            step = 1024
        else:
            A("s_lshr_b32 s49, s34, 2")
            A("s_lshl_b32 s49, s49, 16")
            A("s_add_u32 s48, s48, s49")
            A("s_and_b32 s49, s34, 3")
            A("s_lshl_b32 s49, s49, 10")
            step = 4096
        A("""
        s_add_u32 s48, s48, s49
        v_lshl_add_u32 v1, v0, 4, s48
        s_waitcnt lgkmcnt(0)
        s_mov_b32 s36, s6
        s_mov_b32 s37, s7
        s_mov_b32 s38, 0x2000000
        s_mov_b32 s39, 0x20000
        s_mov_b32 s40, s8
        s_mov_b32 s41, s9
        s_mov_b32 s42, 0x2000000
        s_mov_b32 s43, 0x20000
        """)
        if self.opt.get("st2") == "s":
            self.stamp(1)

        def load(reg, srd, j):
            off = j * step
            if off & ~0xFFF != getattr(self, "_soff", None):
                self._soff = off & ~0xFFF
                A(f"s_mov_b32 s48, {self._soff}")
            A(f"buffer_load_dwordx4 v[{reg}:{reg+3}], v1, {srd}, s48 offen offset:{off & 0xFFF} {KVPOL}")
        dmapos = self.opt.get("dma", "late")
        bs = int(self.opt.get("bsplit", 8))
        kfirst = int(self.opt.get("kfirst", 1))

        def early(tag):
            if dmapos == tag:
                A("s_cmp_ge_u32 s34, 4")
                A("s_cbranch_scc1 L_nodma0")
                self.dma(WPOL)
                A("L_nodma0:")
                self._soff = None
        self._soff = None
        if kfirst:
            A("s_setprio 1")
        early("first")
        pre = int(self.opt.get("pre", 0))
        for j in range(16):
            if j == pre and self.opt.get("st2") == "s":
                self.stamp(2)
            if j == pre and self.opt.get("binit", "late") != "none":
                A("s_barrier")
            load(32 + 4 * j, "s[36:39]", j)
        if kfirst:
            A("s_setprio 0")
        early("mid")
        for j in range(bs):
            load(96 + 4 * j, "s[40:43]", j)
        if bs < 16:
            A("s_cmp_ge_u32 s34, 4")
            A("s_cbranch_scc1 L_vsplit")
            self._soff = None
            for j in range(bs, 16):
                load(96 + 4 * j, "s[40:43]", j)
            A("L_vsplit:")
        early("endA")
        self.stamp(0)
        A(f"""
        v_and_b32 v4, 2, v2
        v_cmp_eq_u32 vcc, 0, v4
        v_mov_b32 v5, 0xffff0000
        v_mov_b32 v6, 0xffff
        v_cndmask_b32 v5, v5, v6, vcc
        v_and_b32 v4, 13, v2
        """)
        for d in range(4):
            A(f"v_cmp_eq_u32 vcc, {4*d}, v4")
            self.nop(2)
            A(f"v_cndmask_b32 v{8+d}, 0, v5, vcc")
        A(f"""
        v_and_b32 v4, 2, v0
        v_cmp_ne_u32 s[50:51], 0, v4
        v_and_b32 v4, 1, v0
        v_cmp_ne_u32 s[54:55], 0, v4
        v_mov_b32 v20, {L_FLAG}
        v_lshlrev_b32 v21, 4, v2
        s_barrier
        ds_read_b128 v[4:7], v21 offset:{L_Q}
        ds_read_b32 v22, v20
        s_waitcnt vmcnt(16) lgkmcnt(0)
        s_cmp_lt_u32 s34, 4
        s_cbranch_scc1 L_kready
        s_waitcnt vmcnt({bs})
        L_kready:
        v_readfirstlane_b32 s31, v22
        """)
        if self.opt.get("st2") != "s":
            self.stamp(1)
        for d in range(4):
            for j in range(16):
                r = 32 + 4 * j
                A(f"v_dot2_f32_bf16 v{r}, v{r+d}, v{4+d}, {'0' if d == 0 else 'v%d' % r}")
        P = lambda j: 32 + 4 * j
        for j in range(8):
            A(f"v_add_f32_dpp v{P(j)}, v{P(j)}, v{P(j)} row_ror:8 row_mask:0xf bank_mask:0x3")
        for j in range(8):
            A(f"v_add_f32_dpp v{P(j)}, v{P(j+8)}, v{P(j+8)} row_ror:8 row_mask:0xf bank_mask:0xc")
        for j in range(4):
            A(f"v_add_f32_dpp v{P(j)}, v{P(j)}, v{P(j)} row_shl:4 row_mask:0xf bank_mask:0x5")
        for j in range(4):
            A(f"v_add_f32_dpp v{P(j)}, v{P(j+4)}, v{P(j+4)} row_shr:4 row_mask:0xf bank_mask:0xa")
        for j in range(2):
            A(f"v_cndmask_b32 v{16+j}, v{P(j)}, v{P(j+2)}, s[50:51]")
            A(f"v_cndmask_b32 v{18+j}, v{P(j+2)}, v{P(j)}, s[50:51]")
        self.nop(1)
        A("v_add_f32_dpp v16, v18, v16 quad_perm:[2,3,0,1] row_mask:0xf bank_mask:0xf")
        A("v_add_f32_dpp v17, v19, v17 quad_perm:[2,3,0,1] row_mask:0xf bank_mask:0xf")
        A("v_cndmask_b32 v19, v17, v16, s[54:55]")
        A("v_cndmask_b32 v18, v16, v17, s[54:55]")
        self.nop(1)
        A("v_add_f32_dpp v16, v19, v18 quad_perm:[1,0,3,2] row_mask:0xf bank_mask:0xf")
        self.round_bf16(16, 16)
        A(f"v_mul_f32 v16, {SCALE}, v16")
        self.round_bf16(16, 16)
        A("v_mov_b32 v17, v16")
        self.wave_reduce_to_sgpr("v_max_f32", 17, 49)
        A(f"""
        v_mov_b32 v31, {LOG2E}
        s_nop 0
        v_subrev_f32 v17, s49, v16
        v_mul_f32 v17, v17, v31
        v_exp_f32 v17, v17
        s_nop 0
        """)
        self.row_allreduce("v_add_f32", 17)
        self.nop(2)
        A("v_add_f32_dpp v17, v17, v17 row_bcast:15 row_mask:0xa bank_mask:0xf")
        self.nop(2)
        A("v_add_f32_dpp v17, v17, v17 row_bcast:31 row_mask:0xc bank_mask:0xf")
        A(f"""
        s_lshl_b32 s48, s34, 3
        v_mov_b32 v18, s48
        v_mov_b32 v19, s49
        s_mov_b32 exec_lo, 0
        s_mov_b32 exec_hi, 0x80000000
        ds_write2_b32 v18, v19, v17 offset0:{L_ML//4} offset1:{L_ML//4+1}
        s_mov_b64 exec, -1
        """)
        if self.opt.get("st2") != "s":
            self.stamp(2)
        A(f"""
        v_and_b32 v18, 7, v0
        v_lshlrev_b32 v18, 3, v18
        s_waitcnt lgkmcnt(0)
        s_barrier
        ds_read_b32 v17, v18 offset:{L_ML}
        """)
        if bs < 16:
            A("s_cmp_lt_u32 s34, 4")
            A("s_cbranch_scc1 L_vskip")
            if dmapos != "b1":
                A("s_setprio 1")
            self._soff = None
            for j in range(bs, 16):
                load(96 + 4 * j, "s[40:43]", j)
            A("s_branch L_vdone")
            A("L_vskip:")
            if dmapos == "b1":
                self.dma(WPOL)
            A("L_vdone:")
        self.stamp(3)
        A("s_waitcnt lgkmcnt(0)")
        self.oct_allreduce("v_max_f32", 17)
        A(f"""
        v_sub_f32 v17, v16, v17
        v_mul_f32 v17, v17, v31
        v_exp_f32 v17, v17
        s_lshl_b32 s48, s34, 9
        s_add_u32 s48, s48, {L_OS}
        v_lshl_add_u32 v18, v0, 3, s48
        v_cvt_pk_bf16_f32 v17, v17, v17
        """)
        self.nop(2)
        for j in range(16):
            for d in range(4):
                A(f"v_and_b32_dpp v{32+4*j+d}, v17, v{8+d} row_newbcast:{j} row_mask:0xf bank_mask:0xf")
        if self.opt.get("diagwave", 7) >= 4:
            self.stamp(6)
        A("s_cmp_ge_u32 s34, 4")
        A("s_cbranch_scc1 L_pv_b")
        A(f"s_waitcnt vmcnt({6 if dmapos in ('endA', 'b1') else 0})")
        for j in range(16):
            c = "0" if j == 0 else "v[12:15]"
            A(f"v_mfma_f32_16x16x32_bf16 v[12:15], v[{32+4*j}:{35+4*j}], v[{96+4*j}:{99+4*j}], {c}")
        if dmapos == "late":
            self.dma(WPOL)
        A("s_branch L_pv_done")
        A("L_pv_b:")
        for j in range(16):
            A(f"s_waitcnt vmcnt({15-j})")
            if j == 15:
                self.stamp(5)
            c = "0" if j == 0 else "v[12:15]"
            A(f"v_mfma_f32_16x16x32_bf16 v[12:15], v[{32+4*j}:{35+4*j}], v[{96+4*j}:{99+4*j}], {c}")
        A("""
        L_pv_done:
        s_nop 7
        ds_write2_b32 v18, v12, v14 offset0:0 offset1:1
        s_waitcnt lgkmcnt(0)
        s_barrier
        """)
        self.stamp(4)
        A("s_cmp_ge_u32 s34, 4")
        A("s_cbranch_scc1 L_kv_end")
        A(f"""
        v_bfe_u32 v24, v2, 3, 1
        v_and_b32 v25, 1, v3
        v_lshl_add_u32 v24, v25, 1, v24
        v_xor_b32 v24, s34, v24
        v_lshlrev_b32 v24, 5, v24
        v_lshl_add_u32 v24, v3, 10, v24
        v_lshrrev_b32 v25, 2, v2
        v_lshl_add_u32 v24, v25, 7, v24
        v_and_b32 v25, 3, v2
        v_lshl_add_u32 v24, v25, 3, v24
        v_lshlrev_b32 v27, 4, v3
        v_mov_b32 v25, {L_FLAG + 8}
        v_mov_b32 v26, 1

        ds_read_b128 v[48:51], v27 offset:{L_H}
        ds_read_b128 v[52:55], v27 offset:{L_H + 64}
        s_lshl_b32 s48, s29, 15
        s_lshl_b32 s49, s28, 10
        s_add_u32 s48, s48, s49
        s_lshl_b32 s49, s34, 8
        s_add_u32 s48, s48, s49
        s_add_u32 s48, s48, {WS_Y}
        v_lshl_add_u32 v29, v0, 4, s48
        s_mov_b32 s32, 0
        s_mov_b64 exec, 1
        s_waitcnt vmcnt(0)
        ds_add_u32 v25, v26
        s_mov_b64 exec, -1
        L_wwait:
        ds_read_b32 v26, v25
        s_add_u32 s32, s32, 1
        s_waitcnt lgkmcnt(0)
        v_readfirstlane_b32 s48, v26
        s_cmp_ge_u32 s48, 4
        s_cbranch_scc1 L_wready
        s_cmp_lt_u32 s32, {SPIN_MAX}
        s_cbranch_scc1 L_wwait
        L_wready:
        """)
        for kk in range(2):
            A(f"ds_read_b64_tr_b16 v[{112+4*kk}:{113+4*kk}], v24 offset:{L_W + 16384 + 4096*kk}")
            A(f"ds_read_b64_tr_b16 v[{114+4*kk}:{115+4*kk}], v24 offset:{L_W + 16384 + 4096*kk + 512}")
        for kk in range(4):
            A(f"ds_read_b64_tr_b16 v[{96+4*kk}:{97+4*kk}], v24 offset:{L_W + 4096*kk}")
            A(f"ds_read_b64_tr_b16 v[{98+4*kk}:{99+4*kk}], v24 offset:{L_W + 4096*kk + 512}")
        A("""
        s_waitcnt lgkmcnt(8)
        v_mfma_f32_16x16x32_bf16 v[20:23], v[48:51], v[112:115], 0
        v_mfma_f32_16x16x32_bf16 v[20:23], v[52:55], v[116:119], v[20:23]
        v_mov_b32 v5, s31
        v_mov_b32 v7, s31
        s_nop 5
        v_mov_b32 v6, v20
        s_waitcnt lgkmcnt(0)
        """)
        self.stamp(6)
        A("s_barrier")
        for kk in range(4):
            A(f"ds_read_b128 v[{32+4*kk}:{35+4*kk}], v27 offset:{L_OB + 64*kk}")
        for kk in range(4):
            A(f"s_waitcnt lgkmcnt({3-kk})")
            c = "0" if kk == 0 else "v[16:19]"
            A(f"v_mfma_f32_16x16x32_bf16 v[16:19], v[{32+4*kk}:{35+4*kk}], v[{96+4*kk}:{99+4*kk}], {c}")
        A("""
        s_nop 6
        s_mov_b64 exec, 0xffff
        v_mov_b32 v4, v16
        global_store_dwordx4 v29, v[4:7], s[26:27] sc1
        L_kv_end:
        """)
        if self.diag:
            A("s_cmp_lg_u32 s34, %d" % self.opt.get("diagwave", 7))
            A("s_cbranch_scc1 L_end")
            if self.opt.get("diagwave", 7) < 4:
                self.stamp(5)
            self.dump_stamps(8, 7)


if __name__ == "__main__":
    out = sys.argv[1] if len(sys.argv) > 1 else "k1.s"
    opts = dict(a.split("=") for a in sys.argv[2:])
    diag = bool(int(opts.pop("diag", "0")))
    if "diagwave" in opts:
        opts["diagwave"] = int(opts["diagwave"])
    open(out, "w").write(Gen(diag, **opts).build())
```

```python
import sys

NAME = "parallel_sum__gqa_block_cached__geglu_ffn__decode"

WS_EPOCH = 0x0
WS_HINT = 0x4000
WS_XT = 0x8000
WS_Q = 0x10000
WS_G = 0x50000
WS_ML = 0x90000
WS_O = 0xA0000
WS_Y = 0xE0000
WS_STAMP = 0x8000000
L_Q = 0x000
L_H = 0x100
L_OB = 0x200
L_FLAG = 0x300
L_ML = 0x340
L_OS = 0x400
L_W = 0x2000
LDS_BYTES = 98304
SPIN_MAX = 1 << 20

LOG2E = 0x3FB8AA3B
SCALE = 0x3DB504F3
EPS = 0x3727C5AC
INV512 = 0x3B000000
GELU_K1 = 0x3D372713
GELU_C = 0xC0135761


class Gen:
    def __init__(self, diag=False, **opt):
        self.L = []
        self.diag = diag
        self.opt = opt

    def A(self, s):
        for line in s.split("\n"):
            line = line.strip()
            if line:
                self.L.append(line)

    def nop(self, n):
        if n > 0:
            self.A(f"s_nop {n-1}")

    def stamp(self, i):
        if self.diag:
            self.A(f"s_memrealtime s[{84+2*i}:{85+2*i}]")

    def dump_stamps(self, first, n):
        if not self.diag:
            return
        A = self.A
        A("s_waitcnt lgkmcnt(0)")
        A("s_mov_b64 exec, 1")
        A(f"s_lshl_b32 s48, s2, 7")
        A(f"s_add_u32 s48, s48, {WS_STAMP + 8*first}")
        A("v_mov_b32 v1, s48")
        for k in range(n):
            A(f"v_mov_b32 v2, s{84+2*k}")
            A(f"v_mov_b32 v3, s{85+2*k}")
            A(f"global_store_dwordx2 v1, v[2:3], s[26:27] offset:{8*k} sc1")
            A("s_nop 1")

    def row_allreduce(self, op, v, steps=("row_ror:8", "row_ror:4", "row_ror:2", "row_ror:1")):
        for st in steps:
            self.nop(2)
            self.A(f"{op}_dpp v{v}, v{v}, v{v} {st} row_mask:0xf bank_mask:0xf")

    def wave_reduce_to_sgpr(self, op, v, s):
        self.row_allreduce(op, v)
        self.nop(2)
        self.A(f"{op}_dpp v{v}, v{v}, v{v} row_bcast:15 row_mask:0xa bank_mask:0xf")
        self.nop(2)
        self.A(f"{op}_dpp v{v}, v{v}, v{v} row_bcast:31 row_mask:0xc bank_mask:0xf")
        self.nop(1)
        self.A(f"v_readlane_b32 s{s}, v{v}, 63")

    def oct_allreduce(self, op, v):
        self.row_allreduce(op, v, ("quad_perm:[1,0,3,2]", "quad_perm:[2,3,0,1]", "row_half_mirror"))

    def round_bf16(self, dst, src):
        self.A(f"v_cvt_pk_bf16_f32 v{dst}, v{src}, v{src}")
        self.A(f"v_and_b32 v{dst}, 0xffff0000, v{dst}")

    def build(self):
        A = self.A
        o = self.opt
        KVPOL = o.get("kvpol", "nt")
        WPOL = o.get("wpol", "nt")
        A(f"; @launch grid=(256,1,1) block=(640,1,1) lds={self.opt.get('lds', LDS_BYTES)}")
        A('.amdgcn_target "amdgcn-amd-amdhsa--gfx950"')
        A(".text")
        A(f".globl {NAME}_kernel")
        A(".p2align 8")
        A(f".type {NAME}_kernel,@function")
        A(f"{NAME}_kernel:")
        self.stamp(0)
        A("""
        s_cmp_ge_u32 s2, 0x100
        s_cbranch_scc1 L_end
        s_load_dwordx16 s[4:19], s[0:1], 0
        s_load_dwordx8 s[20:27], s[0:1], 64
        """)
        if int(o.get("cpf", 1)):
            A(f"""
            s_getpc_b64 s[48:49]
            v_lshlrev_b32 v4, 4, v0
            s_and_b32 s48, s48, 0xffffff00
            v_min_u32 v4, (L_last-{NAME}_kernel-16)&0xfffffff0, v4
            v_mov_b32 v5, 0
            v_lshl_add_u64 v[4:5], v[4:5], 0, s[48:49]
            global_load_dwordx4 v[60:63], v[4:5], off {o.get("cpfpol", "")}
            """)
        A("""
        v_lshrrev_b32 v1, 6, v0
        v_and_b32 v0, 63, v0
        """)
        if o.get("map", "xcd") == "xcd":
            A("""
            s_and_b32 s28, s2, 7
            s_lshl_b32 s28, s28, 2
            v_readfirstlane_b32 s3, v1
            s_bfe_u32 s29, s2, 0x20003
            s_add_u32 s28, s28, s29
            s_lshr_b32 s29, s2, 5
            s_lshl_b32 s30, s28, 3
            s_add_u32 s30, s30, s29
            s_and_b32 s48, s2, 7
            s_mul_i32 s52, s48, 43
            s_add_u32 s53, s52, 43
            s_lshr_b32 s52, s52, 3
            s_lshr_b32 s53, s53, 3
            s_sub_u32 s53, s53, s52
            s_and_b32 s48, s28, 3
            s_mul_i32 s48, s48, s53
            s_lshl_b32 s52, s52, 2
            s_add_u32 s52, s52, s48
            """)
        else:
            A("""
            s_lshr_b32 s28, s2, 3
            s_and_b32 s29, s2, 7
            v_readfirstlane_b32 s3, v1
            s_mov_b32 s30, s2
            s_mul_i32 s52, s28, 43
            s_add_u32 s53, s52, 43
            s_lshr_b32 s52, s52, 3
            s_lshr_b32 s53, s53, 3
            s_sub_u32 s53, s53, s52
            """)
        A("""
        v_and_b32 v2, 15, v0
        v_lshrrev_b32 v3, 4, v0
        s_cmp_lt_u32 s3, 2
        s_cbranch_scc1 L_ctrl
        """)
        self.kv(KVPOL, WPOL)
        A("s_endpgm")
        A("L_ctrl:")
        self.ctrl(WPOL)
        A("L_end:")
        A("s_endpgm")
        A("L_last:")
        A('.section .rodata,"a"')
        A(".p2align 6")
        A(f".amdhsa_kernel {NAME}_kernel")
        A("  .amdhsa_next_free_vgpr 160")
        A("  .amdhsa_next_free_sgpr 102")
        A("  .amdhsa_accum_offset 160")
        A("  .amdhsa_group_segment_fixed_size 0")
        A("  .amdhsa_kernarg_size 96")
        A("  .amdhsa_user_sgpr_count 2")
        A("  .amdhsa_user_sgpr_kernarg_segment_ptr 1")
        A("  .amdhsa_system_sgpr_workgroup_id_x 1")
        A(".end_amdhsa_kernel")
        return "\n".join(self.L) + "\n"

    def ctrl(self, WPOL):
        A = self.A
        A(f"""
        s_setprio {self.opt.get('cprio', 2)}
        s_movk_i32 s48, 2752
        s_mov_b32 s49, 0
        s_sub_u32 s50, s53, 1
        s_cmp_eq_u32 s3, 0
        s_cselect_b32 s48, 0x2000, s48
        s_cselect_b32 s50, 7, s50
        s_lshl_b32 s51, s29, 6
        v_lshl_add_u32 v4, v3, 4, s51
        v_and_b32 v5, 7, v2
        v_min_u32 v5, s50, v5
        v_mul_lo_u32 v6, v4, s48
        v_lshl_add_u32 v6, v5, 4, v6
        v_lshlrev_b32 v4, 1, v4
        v_lshlrev_b32 v5, 4, v0
        v_mov_b32 v7, 0
        v_mov_b32 v20, {L_FLAG}
        v_cmp_gt_u32 vcc, 8, v2
        s_lshl_b32 s54, s28, 8
        s_lshl_b32 s55, s52, 4
        ds_write_b32 v20, v7 offset:8
        s_waitcnt lgkmcnt(0)
        {"s_barrier" if self.opt.get("binit", "late") == "early" else ""}
        {"s_memrealtime s[88:89]" if self.diag and self.opt.get("st2") == "s" else ""}
        global_load_dword v21, v7, s[26:27] sc1
        global_load_dwordx4 v[16:19], v5, s[4:5]
        global_load_dwordx4 v[8:11], v4, s[4:5]
        global_load_dwordx4 v[12:15], v4, s[4:5] offset:16
        s_cmp_eq_u32 s3, 0
        s_cbranch_scc0 L_c1_ptr
        s_add_u32 s56, s10, s54
        s_addc_u32 s57, s11, 0
        s_add_u32 s58, s56, 128
        s_addc_u32 s59, s57, 0
        s_branch L_c_ptr_done
        L_c1_ptr:
        s_add_u32 s56, s16, s55
        s_addc_u32 s57, s17, 0
        s_add_u32 s58, s18, s55
        s_addc_u32 s59, s19, 0
        L_c_ptr_done:
        v_mov_b32 v22, s58
        v_mov_b32 v23, s59
        v_mov_b32 v24, s56
        v_mov_b32 v25, s57
        v_cndmask_b32 v22, v22, v24, vcc
        v_cndmask_b32 v23, v23, v25, vcc
        v_lshl_add_u64 v[22:23], v[6:7], 0, v[22:23]
        """)
        if self.opt.get("x_noq"):
            A("s_mov_b32 s48, 0")
        if self.opt.get("x_nog"):
            A("s_cmp_eq_u32 s3, 0")
            A("s_cselect_b32 s48, s48, 0")
        for j in range(16):
            A(f"global_load_dwordx4 v[{64+4*j}:{67+4*j}], v[22:23], off {WPOL}")
            if j < 15:
                A("v_lshl_add_u64 v[22:23], v[22:23], 0, s[48:49]")
        if self.opt.get("st2") == "s":
            self.stamp(3)
        if self.opt.get("binit", "late") == "late":
            A("s_barrier")
        NT = 0
        if int(self.opt.get("touch", 0)):
            NT = 4
            A("""
            s_lshl_b32 s54, s30, 17
            v_mov_b32 v4, s54
            s_lshl_b32 s54, s28, 17
            v_mov_b32 v5, s54
            s_lshl_b32 s54, s52, 13
            v_mov_b32 v6, s54
            s_mov_b64 exec, 1
            global_load_dword v56, v4, s[8:9] nt
            global_load_dword v57, v5, s[12:13] nt
            global_load_dword v58, v6, s[20:21] nt
            global_load_dword v59, v7, s[22:23] nt
            s_mov_b64 exec, -1
            """)
        self.stamp(1)
        A("""
        s_lshl_b32 s54, s29, 7
        s_lshl_b32 s55, s28, 2
        s_add_u32 s54, s54, s55
        s_load_dword s33, s[4:5], s54
        """)
        A("""
        v_and_b32 v4, 2, v2
        v_cmp_eq_u32 vcc, 0, v4
        v_mov_b32 v5, 0x01000c0c
        v_mov_b32 v6, 0x0c0c0100
        v_cndmask_b32 v5, v5, v6, vcc
        v_mov_b32 v6, 0x03020c0c
        v_mov_b32 v7, 0x0c0c0302
        v_cndmask_b32 v6, v6, v7, vcc
        v_and_b32 v4, 13, v2
        v_mov_b32 v7, 0x0c0c0c0c
        """)
        for d in range(4):
            A(f"v_cmp_eq_u32 vcc, {4*d}, v4")
            self.nop(2)
            A(f"v_cndmask_b32 v{24+2*d}, v7, v5, vcc")
            A(f"v_cndmask_b32 v{25+2*d}, v7, v6, vcc")
        A(f"s_waitcnt vmcnt({18+NT})")
        A("v_or_b32 v21, 15, v21")
        A("v_add_u32 v21, 1, v21")
        for k in range(4):
            A(f"v_lshlrev_b32 v{44+2*k}, 16, v{16+k}")
            A(f"v_and_b32 v{45+2*k}, 0xffff0000, v{16+k}")
        A("v_readfirstlane_b32 s31, v21")
        A("""
        v_add_f32 v4, v44, v45
        v_add_f32 v5, v46, v47
        v_add_f32 v6, v48, v49
        v_add_f32 v7, v50, v51
        v_add_f32 v4, v4, v5
        v_add_f32 v6, v6, v7
        v_add_f32 v4, v4, v6
        """)
        self.wave_reduce_to_sgpr("v_add_f32", 4, 54)
        A(f"v_mov_b32 v5, {INV512}")
        self.nop(1)
        A("v_mul_f32 v20, s54, v5")
        for k in range(8):
            A(f"v_sub_f32 v{44+k}, v{44+k}, v20")
        A("v_mul_f32 v4, v44, v44")
        for k in range(1, 8):
            A(f"v_fmac_f32 v4, v{44+k}, v{44+k}")
        self.wave_reduce_to_sgpr("v_add_f32", 4, 54)
        self.round_bf16(20, 20)
        A("v_mul_f32 v4, s54, v5")
        self.round_bf16(4, 4)
        A(f"v_add_f32 v4, {EPS}, v4")
        self.round_bf16(4, 4)
        A("v_sqrt_f32 v4, v4")
        self.nop(1)
        self.round_bf16(4, 4)
        A("v_rcp_f32 v6, v4")
        A("v_mov_b32 v21, v20")
        A("v_mov_b32 v5, v4")
        A("v_mov_b32 v7, v6")
        A(f"s_waitcnt vmcnt({16+NT})")
        for k in range(8):
            x = 8 + k
            A(f"""
            v_lshlrev_b32 v44, 16, v{x}
            v_and_b32 v45, 0xffff0000, v{x}
            v_pk_add_f32 v[44:45], v[44:45], v[20:21] neg_lo:[0,1] neg_hi:[0,1]
            v_cvt_pk_bf16_f32 v46, v44, v45
            v_lshlrev_b32 v44, 16, v46
            v_and_b32 v45, 0xffff0000, v46
            v_pk_mul_f32 v[46:47], v[44:45], v[6:7]
            v_pk_fma_f32 v[44:45], v[46:47], v[4:5], v[44:45] neg_lo:[1,0,0] neg_hi:[1,0,0]
            v_pk_fma_f32 v[46:47], v[44:45], v[6:7], v[46:47]
            v_cvt_pk_bf16_f32 v{x}, v46, v47
            """)

        def perms(j):
            a = 32 + 4 * (j & 1)
            for d in range(4):
                A(f"v_perm_b32 v{a+d}, v{8+(j>>1)}, v{8+(j>>1)}, v{24+2*d+(j&1)}")
        perms(0)
        for j in range(16):
            if j < 15:
                perms(j + 1)
            else:
                self.nop(2)
            A(f"s_waitcnt vmcnt({15-j+NT})")
            a = 32 + 4 * (j & 1)
            c = "0" if j == 0 else "v[40:43]"
            A(f"v_mfma_f32_16x16x32_bf16 v[40:43], v[{a}:{a+3}], v[{64+4*j}:{67+4*j}], {c}")
        A(f"""
        s_mul_i32 s54, s3, {WS_G - WS_Q}
        s_add_u32 s54, s54, {WS_Q}
        s_lshl_b32 s55, s30, 10
        s_add_u32 s55, s55, s54
        v_lshl_add_u32 v4, v0, 4, s55
        s_lshl_b32 s55, s28, 13
        s_add_u32 s55, s55, s54
        s_add_u32 s55, s55, 4096
        v_lshl_add_u32 v5, v0, 4, s55
        s_lshl_b32 s54, s28, 8
        s_lshl_b32 s55, s3, 7
        s_add_u32 s54, s54, s55
        s_add_u32 s54, s54, {WS_HINT}
        v_mov_b32 v41, s31
        v_mov_b32 v43, s31
        global_store_dwordx4 v4, v[40:43], s[26:27] sc1
        s_add_u32 s46, s26, s54
        s_addc_u32 s47, s27, 0
        s_lshl_b32 s55, s29, 2
        v_mov_b32 v6, s55
        s_getreg_b32 s44, hwreg(HW_REG_XCC_ID, 0, 4)
        s_or_b32 s44, s44, s31
        v_mov_b32 v7, s44
        s_mov_b64 exec, 1
        global_store_dword v6, v7, s[46:47] sc1
        s_mov_b64 exec, -1
        s_mov_b32 s32, 0
        s_mov_b32 s45, s44
        s_mov_b32 s43, 1
        s_mov_b32 s35, 0
        """)
        if self.opt.get("st2") != "s":
            self.stamp(2)
        if self.opt.get("x_nopoll"):
            A("s_branch L_qdone")
        if self.opt.get("x_nopoll1"):
            A("s_cmp_eq_u32 s3, 1")
            A("s_cbranch_scc1 L_qdone")
        A(f"""
        L_qhint:
        s_load_dwordx8 s[56:63], s[46:47], 0 glc
        s_add_u32 s32, s32, 1
        s_cmp_ge_u32 s32, {SPIN_MAX}
        s_cbranch_scc1 L_qpoll
        s_waitcnt lgkmcnt(0)
        s_xor_b64 s[56:57], s[56:57], s[44:45]
        s_xor_b64 s[58:59], s[58:59], s[44:45]
        s_xor_b64 s[60:61], s[60:61], s[44:45]
        s_xor_b64 s[62:63], s[62:63], s[44:45]
        s_or_b64 s[56:57], s[56:57], s[58:59]
        s_or_b64 s[60:61], s[60:61], s[62:63]
        s_or_b64 s[56:57], s[56:57], s[60:61]
        s_or_b32 s43, s56, s57
        s_cmp_lt_u32 s43, 16
        s_cbranch_scc1 L_qpoll
        s_sleep {self.opt.get("hintsleep", 4)}
        s_branch L_qhint
        """)
        A("L_qpoll:")
        if self.opt.get("x_hintonly"):
            A("s_branch L_qdone")
        if self.diag:
            A("s_add_u32 s35, s35, 1")
        for k in range(8):
            A(f"global_load_dwordx4 v[{64+4*k}:{67+4*k}], v5, s[26:27] offset:{1024*k-4096} {self.opt.get('x_qpol', 'sc1')}")
        A("s_add_u32 s32, s32, 1")
        for k in range(8):
            r = 64 + 4 * k
            A(f"s_waitcnt vmcnt({7-k})")
            if k == 0:
                A(f"v_xor_b32 v6, s31, v{r+1}")
                A(f"v_mov_b32 v44, v{r}")
                A(f"v_mov_b32 v45, v{r+2}")
            else:
                A(f"v_bitop3_b32 v6, v{r+1}, s31, v6 bitop3:0xbe")
                A(f"v_add_f32 v44, v44, v{r}")
                A(f"v_add_f32 v45, v45, v{r+2}")
            A(f"v_bitop3_b32 v6, v{r+3}, s31, v6 bitop3:0xbe")
        A(f"""
        v_cmp_ne_u32 vcc, 0, v6
        s_cbranch_vccz L_qdone
        s_cmp_lt_u32 s32, {SPIN_MAX}
        s_cbranch_scc1 L_qhint
        L_qdone:
        v_cvt_pk_bf16_f32 v44, v44, v45
        v_lshlrev_b32 v22, 4, v2
        v_lshl_add_u32 v22, v3, 2, v22
        s_cmp_eq_u32 s3, 0
        s_cbranch_scc1 L_c0
        """)
        A(f"""
        v_mov_b32_dpp v45, v44 row_ror:8 row_mask:0xf bank_mask:0xf
        v_lshlrev_b32 v46, 16, v44
        v_and_b32 v47, 0xffff0000, v44
        v_mov_b32 v50, {GELU_K1}
        v_mul_f32 v48, v46, v46
        v_mul_f32 v49, v47, v47
        v_mul_f32 v48, v48, v46
        v_mul_f32 v49, v49, v47
        v_fma_f32 v48, v48, v50, v46
        v_fma_f32 v49, v49, v50, v47
        v_mul_f32 v48, {GELU_C}, v48
        v_mul_f32 v49, {GELU_C}, v49
        v_exp_f32 v48, v48
        v_exp_f32 v49, v49
        s_nop 0
        v_add_f32 v48, 1.0, v48
        v_add_f32 v49, 1.0, v49
        v_rcp_f32 v48, v48
        v_rcp_f32 v49, v49
        s_nop 0
        v_mul_f32 v46, v46, v48
        v_mul_f32 v47, v47, v49
        v_cvt_pk_bf16_f32 v44, v46, v47
        v_lshlrev_b32 v46, 16, v44
        v_and_b32 v47, 0xffff0000, v44
        v_lshlrev_b32 v48, 16, v45
        v_and_b32 v49, 0xffff0000, v45
        v_cmp_gt_u32 vcc, s53, v2
        v_mul_f32 v46, v46, v48
        v_mul_f32 v47, v47, v49
        v_cvt_pk_bf16_f32 v44, v46, v47
        v_cndmask_b32 v44, 0, v44, vcc
        ds_write_b32 v22, v44 offset:{L_H}
        s_waitcnt lgkmcnt(0)
        s_endpgm
        """)
        A(f"""
        L_c0:
        v_mov_b32 v20, {L_FLAG}
        v_mov_b32 v7, s31
        ds_write_b32 v22, v44 offset:{L_Q}
        ds_write_b32 v20, v7
        """)
        if self.opt.get("st2") != "s":
            self.stamp(3)
        A(f"""
        s_waitcnt lgkmcnt(0)
        s_barrier
        v_and_b32 v23, 7, v0
        v_lshlrev_b32 v4, 3, v23
        s_lshl_b32 s54, s28, 7
        s_add_u32 s54, s54, {WS_ML}
        s_add_u32 s46, s26, s54
        s_addc_u32 s47, s27, 0
        s_lshl_b32 s54, s29, 4
        v_mov_b32 v24, s54
        s_lshl_b32 s54, s30, 10
        s_add_u32 s54, s54, {WS_O}
        v_lshl_add_u32 v26, v0, 4, s54
        s_lshl_b32 s54, s28, 13
        s_add_u32 s54, s54, {WS_O + 4096}
        v_lshl_add_u32 v27, v0, 4, s54
        s_sub_u32 s54, s54, {4096 - 1020}
        v_lshl_add_u32 v23, v23, 10, s54
        s_lshl_b32 s54, s29, 15
        s_lshl_b32 s55, s28, 5
        s_add_u32 s54, s54, s55
        s_add_u32 s54, s54, {WS_Y}
        v_lshrrev_b32 v5, 1, v0
        v_lshlrev_b32 v5, 10, v5
        v_and_b32 v6, 1, v0
        v_lshl_add_u32 v5, v6, 4, v5
        v_add_u32 v28, s54, v5
        s_lshl_b32 s54, s29, 7
        s_lshl_b32 s55, s28, 2
        s_add_u32 s54, s54, s55
        v_lshl_add_u32 v29, v0, 1, s54
        v_lshlrev_b32 v30, 3, v0
        v_mov_b32 v31, {LOG2E}
        v_cmp_eq_u32 vcc, 0, v6
        s_lshl_b32 s54, s33, 16
        s_and_b32 s55, s33, 0xffff0000
        v_mov_b32 v20, s55
        v_mov_b32 v21, s54
        v_cndmask_b32 v20, v20, v21, vcc
        """)
        warm = self.opt.get("warm", "n")
        if "o" in warm:
            A(f"global_load_dwordx4 v[64:67], v26, s[26:27] {self.opt.get('warmpol', 'sc1')}")
            A(f"global_load_dword v68, v24, s[46:47] {self.opt.get('warmpol', 'sc1')}")
        if "y" in warm:
            A(f"global_load_dwordx4 v[72:75], v28, s[26:27] {self.opt.get('warmpol', 'sc1')}")
        A("s_barrier")
        self.stamp(4)
        A(f"""
        ds_read_b64 v[8:9], v4 offset:{L_ML}
        s_waitcnt lgkmcnt(0)
        v_mov_b32 v12, v8
        """)
        self.oct_allreduce("v_max_f32", 12)
        A("""
        v_sub_f32 v8, v8, v12
        v_mul_f32 v8, v8, v31
        v_exp_f32 v8, v8
        v_mov_b32 v13, s31
        v_mul_f32 v14, v8, v9
        """)
        self.oct_allreduce("v_add_f32", 14)
        A(f"""
        v_mov_b32 v15, s31
        {"s_mov_b32 s43, 1" if self.opt.get("nolocal") else ""}
        s_mov_b64 exec, 1
        s_cmp_eq_u32 s43, 0
        s_cbranch_scc1 L_ml_local
        global_store_dwordx4 v24, v[12:15], s[46:47] sc1
        s_branch L_ml_done
        L_ml_local:
        global_store_dwordx4 v24, v[12:15], s[46:47]
        L_ml_done:
        s_mov_b64 exec, -1
        v_mov_b32 v41, s31
        v_mov_b32 v43, s31
        v_lshlrev_b32 v25, 1, v4
        s_mov_b32 s32, 0
        {"s_waitcnt vmcnt(1)" if warm != "n" else ""}
        s_barrier
        """)
        self.stamp(5)
        if self.opt.get("x_notail"):
            self.stamp(6)
            A("s_barrier")
            A("s_branch L_c0_end")
        for k in range(4):
            A(f"ds_read2st64_b64 v[{64+4*k}:{67+4*k}], v30 offset0:{L_OS//512+2*k} offset1:{L_OS//512+2*k+1}")
        A("""
        s_waitcnt lgkmcnt(2)
        v_pk_add_f32 v[64:65], v[64:65], v[66:67]
        v_pk_add_f32 v[68:69], v[68:69], v[70:71]
        s_waitcnt lgkmcnt(0)
        v_pk_add_f32 v[72:73], v[72:73], v[74:75]
        v_pk_add_f32 v[76:77], v[76:77], v[78:79]
        v_pk_add_f32 v[64:65], v[64:65], v[68:69]
        v_pk_add_f32 v[72:73], v[72:73], v[76:77]
        s_cmp_eq_u32 s43, 0
        v_add_f32 v40, v64, v72
        v_add_f32 v42, v65, v73
        s_cbranch_scc0 L_o_remote
        global_store_dwordx4 v26, v[40:43], s[26:27]
        L_opoll:
        """)
        if self.opt.get("st2") == "o":
            self.stamp(1)
        A("global_load_dwordx4 v[8:11], v25, s[46:47] sc1")
        for k in range(8):
            A(f"global_load_dwordx4 v[{64+4*k}:{67+4*k}], v27, s[26:27] offset:{1024*k-4096} sc1")
        A("s_add_u32 s32, s32, 1")
        A("s_waitcnt vmcnt(8)")
        if self.opt.get("st2") == "o":
            self.stamp(2)

        def chk(k, wait=True):
            r = 64 + 4 * k
            if wait:
                A(f"s_waitcnt vmcnt({7-k})")
            A(f"v_xor_b32 v7, s31, v{r+1}")
            A(f"v_bitop3_b32 v7, v{r+3}, s31, v7 bitop3:0xbe")
            A(f"v_cmp_ne_u32 s[{64+2*k}:{65+2*k}], 0, v7")
        dpp = lambda op, v, c: A(f"{op}_dpp v{v}, v{v}, v{v} {c} row_mask:0xf bank_mask:0xf")
        A("""
        v_mov_b32 v12, v8
        v_xor_b32 v6, s31, v9
        v_bitop3_b32 v6, v11, s31, v6 bitop3:0xbe
        """)
        dpp("v_max_f32", 12, "quad_perm:[1,0,3,2]")
        A("v_cmp_ne_u32 s[38:39], 0, v6")
        A("s_nop 0")
        dpp("v_max_f32", 12, "quad_perm:[2,3,0,1]")
        chk(0)
        dpp("v_max_f32", 12, "row_half_mirror")
        A("""
        v_sub_f32 v8, v8, v12
        v_mul_f32 v8, v8, v31
        v_exp_f32 v8, v8
        """)
        chk(1)
        A("v_mul_f32 v14, v8, v10")
        chk(2)
        dpp("v_add_f32", 14, "quad_perm:[1,0,3,2]")
        chk(3)
        dpp("v_add_f32", 14, "quad_perm:[2,3,0,1]")
        chk(4)
        dpp("v_add_f32", 14, "row_half_mirror")
        A("v_rcp_f32 v14, v14")
        chk(5)
        A("v_mul_f32 v8, v8, v14")
        A("s_cmp_eq_u64 s[38:39], 0")
        A("s_cbranch_scc0 L_mlretry")
        for k in range(8):
            A(f"v_readlane_b32 s{56+k}, v8, {k}")
        chk(6)
        chk(7)

        def ortree():
            A("s_or_b64 s[36:37], s[64:65], s[66:67]")
            A("s_or_b64 s[38:39], s[68:69], s[70:71]")
            A("s_or_b64 s[40:41], s[72:73], s[74:75]")
            A("s_or_b64 s[36:37], s[36:37], s[38:39]")
            A("s_or_b64 s[36:37], s[36:37], s[40:41]")
            A("s_or_b64 s[36:37], s[36:37], s[76:77]")
            A("s_or_b64 s[36:37], s[36:37], s[78:79]")

        def reload():
            for k in range(8):
                A(f"s_mov_b64 exec, s[{64+2*k}:{65+2*k}]")
                A(f"global_load_dwordx4 v[{64+4*k}:{67+4*k}], v27, s[26:27] offset:{1024*k-4096} sc1")
            A("s_mov_b64 exec, -1")
        ortree()
        if self.opt.get("st2") == "o":
            self.stamp(3)
        A("s_cbranch_scc0 L_osum")
        reload()
        A("L_oround:")
        reload()
        A("s_waitcnt vmcnt(8)")
        for k in range(8):
            chk(k, False)
        A(f"""
        s_add_u32 s32, s32, 1
        s_cmp_lt_u32 s32, {SPIN_MAX}
        s_cbranch_scc0 L_osum
        """)
        ortree()
        A("""
        s_cbranch_scc1 L_oround
        L_osum:
        s_waitcnt vmcnt(0)
        v_mul_f32 v44, s56, v64
        v_mul_f32 v45, s56, v66
        """)
        for k in range(1, 8):
            A(f"v_fmac_f32 v44, s{56+k}, v{64+4*k}")
            A(f"v_fmac_f32 v45, s{56+k}, v{66+4*k}")
        A(f"""
        v_cvt_pk_bf16_f32 v44, v44, v45
        L_odone:
        ds_write_b32 v22, v44 offset:{L_OB}
        s_mov_b32 s34, s32
        s_mov_b32 s32, 0
        """)
        self.stamp(6)
        A(f"""
        s_waitcnt lgkmcnt(0)
        s_barrier
        s_mov_b64 vcc, -1
        global_load_dwordx4 v[8:11], v28, s[26:27] sc1
        L_ypoll:
        s_mov_b64 exec, vcc
        global_load_dwordx4 v[8:11], v28, s[26:27] sc1
        s_mov_b64 exec, -1
        s_add_u32 s32, s32, 1
        s_waitcnt vmcnt(1)
        v_xor_b32 v6, s31, v9
        v_bitop3_b32 v6, v11, s31, v6 bitop3:0xbe
        v_cmp_ne_u32 vcc, 0, v6
        s_bcnt1_i32_b64 s48, vcc
        s_cbranch_scc0 L_ydone
        s_cmp_ge_u32 s32, {SPIN_MAX}
        s_cbranch_scc1 L_ydone
        s_cmp_le_u32 s48, {self.opt.get("yth", 16)}
        s_cbranch_scc1 L_ypoll
        s_sleep {self.opt.get("ysleep", 4)}
        s_branch L_ypoll
        L_ydone:
        {"s_memrealtime s[88:89]" if self.diag and self.opt.get("st2") == "y" else ""}
        s_waitcnt vmcnt(0)
        v_permlane32_swap_b32 v8, v10
        v_add_f32 v16, v8, v10
        v_add_f32 v18, v8, v10
        s_nop 1
        v_permlane16_swap_b32 v16, v18
        v_add_f32 v16, v16, v18
        """)
        self.row_allreduce("v_add_f32", 16, ("quad_perm:[2,3,0,1]", "row_ror:4", "row_ror:8"))
        self.round_bf16(16, 16)
        A("""
        v_add_f32 v12, v20, v16
        v_mov_b32 v18, v16
        """)
        self.round_bf16(12, 12)
        A("""
        v_permlane32_swap_b32 v16, v18
        v_add_f32 v12, v12, v18
        v_cvt_pk_bf16_f32 v12, v12, v12
        s_mov_b64 exec, 3
        global_store_short v29, v12, s[22:23] %s
        s_cmp_lg_u32 s30, 0
        s_cbranch_scc1 L_c0_end
        s_mov_b64 exec, 1
        v_mov_b32 v4, 0
        v_mov_b32 v5, s31
        global_store_dword v4, v5, s[26:27]
        L_c0_end:
        """ % self.opt.get("outpol", ""))
        self.stamp(7)
        self.dump_stamps(0, 8)
        if self.diag:
            A("""
            s_lshl_b32 s34, s34, 10
            s_lshl_b32 s32, s32, 20
            s_or_b32 s35, s35, s34
            s_or_b32 s35, s35, s32
            v_mov_b32 v2, s35
            v_mov_b32 v3, 0
            global_store_dwordx2 v1, v[2:3], s[26:27] offset:120
            """)
        if self.opt.get("dbgstamp"):
            A(f"""
            s_waitcnt vmcnt(0)
            v_mov_b32 v1, 0
            v_mov_b32 v2, 1
            global_atomic_add v3, v1, v2, s[24:25] offset:252 sc0 sc1
            s_waitcnt vmcnt(0)
            v_readfirstlane_b32 s48, v3
            s_cmp_lg_u32 s48, 255
            s_cbranch_scc1 L_end
            s_mov_b64 exec, -1
            v_mov_b32 v1, 0
            s_mov_b32 s48, {WS_STAMP}
            v_lshl_add_u32 v4, v0, 7, s48
            """)
            for k in range(16):
                src = 0 if k == 15 else k
                for q in range(4):
                    A(f"v_add_u32 v5, {q*8192 + 8*src}, v4")
                    A(f"global_load_dword v{8+q}, v5, s[26:27] sc1")
                A("s_waitcnt vmcnt(0)")
                op = "v_min_u32" if k == 15 else "v_max_u32"
                A(f"{op} v8, v8, v9")
                A(f"{op} v10, v10, v11")
                A(f"{op} v8, v8, v10")
                self.wave_reduce_to_sgpr(op, 8, 49)
                self.nop(2)
                A("v_mov_b32 v6, s49")
                A(f"global_store_dword v1, v6, s[24:25] offset:{4*k}")
        A(f"""
        s_endpgm
        L_mlretry:
        s_waitcnt vmcnt(0)
        s_sleep 2
        s_cmp_lt_u32 s32, {SPIN_MAX}
        s_cbranch_scc1 L_opoll
        s_branch L_odone
        L_o_remote:
        global_store_dwordx4 v26, v[40:43], s[26:27] sc1
        s_branch L_opoll
        """)

    def dma(self, WPOL):
        A = self.A
        A(f"""
        s_mov_b32 s56, s12
        s_mov_b32 s57, s13
        s_mov_b32 s58, 0x400000
        s_mov_b32 s59, 0x20000
        s_mov_b32 s44, s20
        s_mov_b32 s45, s21
        s_mov_b32 s46, 1409024
        s_mov_b32 s47, 0x20000
        v_lshrrev_b32 v24, 3, v0
        v_and_b32 v25, 1, v3
        v_lshlrev_b32 v25, 1, v25
        v_and_b32 v26, 7, v0
        v_xor_b32 v25, v25, v26
        v_lshlrev_b32 v25, 4, v25
        v_lshl_add_u32 v25, v24, 10, v25
        v_xor_b32 v26, 64, v25
        s_lshl_b32 s49, s29, 7
        s_lshl_b32 s50, s28, 17
        s_add_u32 s50, s50, s49
        s_lshl_b32 s48, s34, 15
        s_add_u32 s50, s50, s48
        s_lshl_b32 s51, s34, 1
        s_add_u32 s48, s52, s51
        s_lshl_b32 s48, s48, 13
        s_add_u32 s48, s48, s49
        s_add_u32 s49, s48, 0x2000
        s_cmp_lt_u32 s51, s53
        s_cselect_b32 s54, 0, 0x40000000
        v_or_b32 v27, s54, v25
        s_add_u32 s51, s51, 1
        s_cmp_lt_u32 s51, s53
        s_cselect_b32 s54, 0, 0x40000000
        v_or_b32 v28, s54, v26
        s_lshl_b32 s51, s34, 11
        s_add_u32 m0, s51, {L_W + 16384}
        s_lshl_b32 s54, s34, 12
        buffer_load_dwordx4 v27, s[44:47], s48 offen {WPOL} lds
        s_add_u32 m0, s51, {L_W + 16384 + 1024}
        s_nop 0
        buffer_load_dwordx4 v28, s[44:47], s49 offen {WPOL} lds
        """)
        for jj in range(4):
            A(f"s_add_u32 m0, s54, {L_W + 1024*jj}")
            A(f"s_add_u32 s49, s50, {jj*0x2000}")
            A(f"buffer_load_dwordx4 v{25 + (jj & 1)}, s[56:59], s49 offen {WPOL} lds")

    def kv(self, KVPOL, WPOL):
        A = self.A
        pat = self.opt.get("pattern", "wave")
        A("s_sub_u32 s34, s3, 2")
        A("s_lshl_b32 s48, s28, 20")
        A("s_lshl_b32 s49, s29, 17")
        A("s_add_u32 s48, s48, s49")
        if pat == "wave":
            A("s_lshl_b32 s49, s34, 14")
            step = 1024
        else:
            A("s_lshr_b32 s49, s34, 2")
            A("s_lshl_b32 s49, s49, 16")
            A("s_add_u32 s48, s48, s49")
            A("s_and_b32 s49, s34, 3")
            A("s_lshl_b32 s49, s49, 10")
            step = 4096
        A("""
        s_add_u32 s48, s48, s49
        v_lshl_add_u32 v1, v0, 4, s48
        s_waitcnt lgkmcnt(0)
        s_mov_b32 s36, s6
        s_mov_b32 s37, s7
        s_mov_b32 s38, 0x2000000
        s_mov_b32 s39, 0x20000
        s_mov_b32 s40, s8
        s_mov_b32 s41, s9
        s_mov_b32 s42, 0x2000000
        s_mov_b32 s43, 0x20000
        """)
        if self.opt.get("st2") == "s":
            self.stamp(1)

        def load(reg, srd, j):
            off = j * step
            if off & ~0xFFF != getattr(self, "_soff", None):
                self._soff = off & ~0xFFF
                A(f"s_mov_b32 s48, {self._soff}")
            A(f"buffer_load_dwordx4 v[{reg}:{reg+3}], v1, {srd}, s48 offen offset:{off & 0xFFF} {KVPOL}")
        dmapos = self.opt.get("dma", "late")
        bs = int(self.opt.get("bsplit", 8))
        kfirst = int(self.opt.get("kfirst", 1))

        def early(tag):
            if dmapos == tag:
                A("s_cmp_ge_u32 s34, 4")
                A("s_cbranch_scc1 L_nodma0")
                self.dma(WPOL)
                A("L_nodma0:")
                self._soff = None
        self._soff = None
        if kfirst:
            A("s_setprio 1")
        early("first")
        pre = int(self.opt.get("pre", 0))
        for j in range(16):
            if j == pre and self.opt.get("st2") == "s":
                self.stamp(2)
            if j == pre and self.opt.get("binit", "late") != "none":
                A("s_barrier")
            load(32 + 4 * j, "s[36:39]", j)
        if kfirst:
            A("s_setprio 0")
        early("mid")
        for j in range(bs):
            load(96 + 4 * j, "s[40:43]", j)
        if bs < 16:
            A("s_cmp_ge_u32 s34, 4")
            A("s_cbranch_scc1 L_vsplit")
            self._soff = None
            for j in range(bs, 16):
                load(96 + 4 * j, "s[40:43]", j)
            A("L_vsplit:")
        early("endA")
        self.stamp(0)
        A(f"""
        v_and_b32 v4, 2, v2
        v_cmp_eq_u32 vcc, 0, v4
        v_mov_b32 v5, 0xffff0000
        v_mov_b32 v6, 0xffff
        v_cndmask_b32 v5, v5, v6, vcc
        v_and_b32 v4, 13, v2
        """)
        for d in range(4):
            A(f"v_cmp_eq_u32 vcc, {4*d}, v4")
            self.nop(2)
            A(f"v_cndmask_b32 v{8+d}, 0, v5, vcc")
        A(f"""
        v_and_b32 v4, 2, v0
        v_cmp_ne_u32 s[50:51], 0, v4
        v_and_b32 v4, 1, v0
        v_cmp_ne_u32 s[54:55], 0, v4
        v_mov_b32 v20, {L_FLAG}
        v_lshlrev_b32 v21, 4, v2
        s_barrier
        ds_read_b128 v[4:7], v21 offset:{L_Q}
        ds_read_b32 v22, v20
        s_waitcnt vmcnt(16) lgkmcnt(0)
        s_cmp_lt_u32 s34, 4
        s_cbranch_scc1 L_kready
        s_waitcnt vmcnt({bs})
        L_kready:
        v_readfirstlane_b32 s31, v22
        """)
        if self.opt.get("st2") != "s":
            self.stamp(1)
        for d in range(4):
            for j in range(16):
                r = 32 + 4 * j
                A(f"v_dot2_f32_bf16 v{r}, v{r+d}, v{4+d}, {'0' if d == 0 else 'v%d' % r}")
        P = lambda j: 32 + 4 * j
        for j in range(8):
            A(f"v_add_f32_dpp v{P(j)}, v{P(j)}, v{P(j)} row_ror:8 row_mask:0xf bank_mask:0x3")
        for j in range(8):
            A(f"v_add_f32_dpp v{P(j)}, v{P(j+8)}, v{P(j+8)} row_ror:8 row_mask:0xf bank_mask:0xc")
        for j in range(4):
            A(f"v_add_f32_dpp v{P(j)}, v{P(j)}, v{P(j)} row_shl:4 row_mask:0xf bank_mask:0x5")
        for j in range(4):
            A(f"v_add_f32_dpp v{P(j)}, v{P(j+4)}, v{P(j+4)} row_shr:4 row_mask:0xf bank_mask:0xa")
        for j in range(2):
            A(f"v_cndmask_b32 v{16+j}, v{P(j)}, v{P(j+2)}, s[50:51]")
            A(f"v_cndmask_b32 v{18+j}, v{P(j+2)}, v{P(j)}, s[50:51]")
        self.nop(1)
        A("v_add_f32_dpp v16, v18, v16 quad_perm:[2,3,0,1] row_mask:0xf bank_mask:0xf")
        A("v_add_f32_dpp v17, v19, v17 quad_perm:[2,3,0,1] row_mask:0xf bank_mask:0xf")
        A("v_cndmask_b32 v19, v17, v16, s[54:55]")
        A("v_cndmask_b32 v18, v16, v17, s[54:55]")
        self.nop(1)
        A("v_add_f32_dpp v16, v19, v18 quad_perm:[1,0,3,2] row_mask:0xf bank_mask:0xf")
        self.round_bf16(16, 16)
        A(f"v_mul_f32 v16, {SCALE}, v16")
        self.round_bf16(16, 16)
        A("v_mov_b32 v17, v16")
        self.wave_reduce_to_sgpr("v_max_f32", 17, 49)
        A(f"""
        v_mov_b32 v31, {LOG2E}
        s_nop 0
        v_subrev_f32 v17, s49, v16
        v_mul_f32 v17, v17, v31
        v_exp_f32 v17, v17
        s_nop 0
        """)
        self.row_allreduce("v_add_f32", 17)
        self.nop(2)
        A("v_add_f32_dpp v17, v17, v17 row_bcast:15 row_mask:0xa bank_mask:0xf")
        self.nop(2)
        A("v_add_f32_dpp v17, v17, v17 row_bcast:31 row_mask:0xc bank_mask:0xf")
        A(f"""
        s_lshl_b32 s48, s34, 3
        v_mov_b32 v18, s48
        v_mov_b32 v19, s49
        s_mov_b32 exec_lo, 0
        s_mov_b32 exec_hi, 0x80000000
        ds_write2_b32 v18, v19, v17 offset0:{L_ML//4} offset1:{L_ML//4+1}
        s_mov_b64 exec, -1
        """)
        if self.opt.get("st2") != "s":
            self.stamp(2)
        A(f"""
        v_and_b32 v18, 7, v0
        v_lshlrev_b32 v18, 3, v18
        s_waitcnt lgkmcnt(0)
        s_barrier
        ds_read_b32 v17, v18 offset:{L_ML}
        """)
        if bs < 16:
            A("s_cmp_lt_u32 s34, 4")
            A("s_cbranch_scc1 L_vskip")
            if dmapos != "b1":
                A("s_setprio 1")
            self._soff = None
            for j in range(bs, 16):
                load(96 + 4 * j, "s[40:43]", j)
            A("s_branch L_vdone")
            A("L_vskip:")
            if dmapos == "b1":
                self.dma(WPOL)
            A("L_vdone:")
        self.stamp(3)
        A("s_waitcnt lgkmcnt(0)")
        self.oct_allreduce("v_max_f32", 17)
        A(f"""
        v_sub_f32 v17, v16, v17
        v_mul_f32 v17, v17, v31
        v_exp_f32 v17, v17
        s_lshl_b32 s48, s34, 9
        s_add_u32 s48, s48, {L_OS}
        v_lshl_add_u32 v18, v0, 3, s48
        v_cvt_pk_bf16_f32 v17, v17, v17
        """)
        self.nop(2)
        for j in range(16):
            for d in range(4):
                A(f"v_and_b32_dpp v{32+4*j+d}, v17, v{8+d} row_newbcast:{j} row_mask:0xf bank_mask:0xf")
        if self.opt.get("diagwave", 7) >= 4:
            self.stamp(6)
        A("s_cmp_ge_u32 s34, 4")
        A("s_cbranch_scc1 L_pv_b")
        A(f"s_waitcnt vmcnt({6 if dmapos in ('endA', 'b1') else 0})")
        for j in range(16):
            c = "0" if j == 0 else "v[12:15]"
            A(f"v_mfma_f32_16x16x32_bf16 v[12:15], v[{32+4*j}:{35+4*j}], v[{96+4*j}:{99+4*j}], {c}")
        if dmapos == "late":
            self.dma(WPOL)
        A("s_branch L_pv_done")
        A("L_pv_b:")
        for j in range(16):
            A(f"s_waitcnt vmcnt({15-j})")
            if j == 15:
                self.stamp(5)
            c = "0" if j == 0 else "v[12:15]"
            A(f"v_mfma_f32_16x16x32_bf16 v[12:15], v[{32+4*j}:{35+4*j}], v[{96+4*j}:{99+4*j}], {c}")
        A("""
        L_pv_done:
        s_nop 7
        ds_write2_b32 v18, v12, v14 offset0:0 offset1:1
        s_waitcnt lgkmcnt(0)
        s_barrier
        """)
        self.stamp(4)
        A("s_cmp_ge_u32 s34, 4")
        A("s_cbranch_scc1 L_kv_end")
        A(f"""
        v_bfe_u32 v24, v2, 3, 1
        v_and_b32 v25, 1, v3
        v_lshl_add_u32 v24, v25, 1, v24
        v_xor_b32 v24, s34, v24
        v_lshlrev_b32 v24, 5, v24
        v_lshl_add_u32 v24, v3, 10, v24
        v_lshrrev_b32 v25, 2, v2
        v_lshl_add_u32 v24, v25, 7, v24
        v_and_b32 v25, 3, v2
        v_lshl_add_u32 v24, v25, 3, v24
        v_lshlrev_b32 v27, 4, v3
        v_mov_b32 v25, {L_FLAG + 8}
        v_mov_b32 v26, 1

        ds_read_b128 v[48:51], v27 offset:{L_H}
        ds_read_b128 v[52:55], v27 offset:{L_H + 64}
        s_lshl_b32 s48, s29, 15
        s_lshl_b32 s49, s28, 10
        s_add_u32 s48, s48, s49
        s_lshl_b32 s49, s34, 8
        s_add_u32 s48, s48, s49
        s_add_u32 s48, s48, {WS_Y}
        v_lshl_add_u32 v29, v0, 4, s48
        s_mov_b32 s32, 0
        s_mov_b64 exec, 1
        s_waitcnt vmcnt(0)
        ds_add_u32 v25, v26
        s_mov_b64 exec, -1
        L_wwait:
        ds_read_b32 v26, v25
        s_add_u32 s32, s32, 1
        s_waitcnt lgkmcnt(0)
        v_readfirstlane_b32 s48, v26
        s_cmp_ge_u32 s48, 4
        s_cbranch_scc1 L_wready
        s_cmp_lt_u32 s32, {SPIN_MAX}
        s_cbranch_scc1 L_wwait
        L_wready:
        """)
        for kk in range(2):
            A(f"ds_read_b64_tr_b16 v[{112+4*kk}:{113+4*kk}], v24 offset:{L_W + 16384 + 4096*kk}")
            A(f"ds_read_b64_tr_b16 v[{114+4*kk}:{115+4*kk}], v24 offset:{L_W + 16384 + 4096*kk + 512}")
        for kk in range(4):
            A(f"ds_read_b64_tr_b16 v[{96+4*kk}:{97+4*kk}], v24 offset:{L_W + 4096*kk}")
            A(f"ds_read_b64_tr_b16 v[{98+4*kk}:{99+4*kk}], v24 offset:{L_W + 4096*kk + 512}")
        A("""
        s_waitcnt lgkmcnt(8)
        v_mfma_f32_16x16x32_bf16 v[20:23], v[48:51], v[112:115], 0
        v_mfma_f32_16x16x32_bf16 v[20:23], v[52:55], v[116:119], v[20:23]
        v_mov_b32 v5, s31
        v_mov_b32 v7, s31
        s_nop 5
        v_mov_b32 v6, v20
        s_waitcnt lgkmcnt(0)
        """)
        self.stamp(6)
        A("s_barrier")
        for kk in range(4):
            A(f"ds_read_b128 v[{32+4*kk}:{35+4*kk}], v27 offset:{L_OB + 64*kk}")
        for kk in range(4):
            A(f"s_waitcnt lgkmcnt({3-kk})")
            c = "0" if kk == 0 else "v[16:19]"
            A(f"v_mfma_f32_16x16x32_bf16 v[16:19], v[{32+4*kk}:{35+4*kk}], v[{96+4*kk}:{99+4*kk}], {c}")
        A("""
        s_nop 6
        s_mov_b64 exec, 0xffff
        v_mov_b32 v4, v16
        global_store_dwordx4 v29, v[4:7], s[26:27] sc1
        L_kv_end:
        """)
        if self.diag:
            A("s_cmp_lg_u32 s34, %d" % self.opt.get("diagwave", 7))
            A("s_cbranch_scc1 L_end")
            if self.opt.get("diagwave", 7) < 4:
                self.stamp(5)
            self.dump_stamps(8, 7)


if __name__ == "__main__":
    out = sys.argv[1] if len(sys.argv) > 1 else "k1.s"
    opts = dict(a.split("=") for a in sys.argv[2:])
    diag = bool(int(opts.pop("diag", "0")))
    if "diagwave" in opts:
        opts["diagwave"] = int(opts["diagwave"])
    open(out, "w").write(Gen(diag, **opts).build())
```

```python
import sys

NAME = "parallel_sum__gqa_block_cached__geglu_ffn__decode"

WS_EPOCH = 0x0
WS_HINT = 0x4000
WS_XT = 0x8000
WS_Q = 0x10000
WS_G = 0x50000
WS_ML = 0x90000
WS_O = 0xA0000
WS_Y = 0xE0000
WS_STAMP = 0x8000000
L_Q = 0x000
L_H = 0x100
L_OB = 0x200
L_FLAG = 0x300
L_ML = 0x340
L_OS = 0x400
L_W = 0x2000
LDS_BYTES = 98304
SPIN_MAX = 1 << 20

LOG2E = 0x3FB8AA3B
SCALE = 0x3DB504F3
EPS = 0x3727C5AC
INV512 = 0x3B000000
GELU_K1 = 0x3D372713
GELU_C = 0xC0135761


class Gen:
    def __init__(self, diag=False, **opt):
        self.L = []
        self.diag = diag
        self.opt = opt

    def A(self, s):
        for line in s.split("\n"):
            line = line.strip()
            if line:
                self.L.append(line)

    def nop(self, n):
        if n > 0:
            self.A(f"s_nop {n-1}")

    def stamp(self, i):
        if self.diag:
            self.A(f"s_memrealtime s[{84+2*i}:{85+2*i}]")

    def dump_stamps(self, first, n):
        if not self.diag:
            return
        A = self.A
        A("s_waitcnt lgkmcnt(0)")
        A("s_mov_b64 exec, 1")
        A(f"s_lshl_b32 s48, s2, 7")
        A(f"s_add_u32 s48, s48, {WS_STAMP + 8*first}")
        A("v_mov_b32 v1, s48")
        for k in range(n):
            A(f"v_mov_b32 v2, s{84+2*k}")
            A(f"v_mov_b32 v3, s{85+2*k}")
            A(f"global_store_dwordx2 v1, v[2:3], s[26:27] offset:{8*k} sc1")
            A("s_nop 1")

    def row_allreduce(self, op, v, steps=("row_ror:8", "row_ror:4", "row_ror:2", "row_ror:1")):
        for st in steps:
            self.nop(2)
            self.A(f"{op}_dpp v{v}, v{v}, v{v} {st} row_mask:0xf bank_mask:0xf")

    def wave_reduce_to_sgpr(self, op, v, s):
        self.row_allreduce(op, v)
        self.nop(2)
        self.A(f"{op}_dpp v{v}, v{v}, v{v} row_bcast:15 row_mask:0xa bank_mask:0xf")
        self.nop(2)
        self.A(f"{op}_dpp v{v}, v{v}, v{v} row_bcast:31 row_mask:0xc bank_mask:0xf")
        self.nop(1)
        self.A(f"v_readlane_b32 s{s}, v{v}, 63")

    def oct_allreduce(self, op, v):
        self.row_allreduce(op, v, ("quad_perm:[1,0,3,2]", "quad_perm:[2,3,0,1]", "row_half_mirror"))

    def round_bf16(self, dst, src):
        self.A(f"v_cvt_pk_bf16_f32 v{dst}, v{src}, v{src}")
        self.A(f"v_and_b32 v{dst}, 0xffff0000, v{dst}")

    def build(self):
        A = self.A
        o = self.opt
        KVPOL = o.get("kvpol", "nt")
        WPOL = o.get("wpol", "nt")
        A(f"; @launch grid=(256,1,1) block=(640,1,1) lds={self.opt.get('lds', LDS_BYTES)}")
        A('.amdgcn_target "amdgcn-amd-amdhsa--gfx950"')
        A(".text")
        A(f".globl {NAME}_kernel")
        A(".p2align 8")
        A(f".type {NAME}_kernel,@function")
        A(f"{NAME}_kernel:")
        self.stamp(0)
        A("""
        s_cmp_ge_u32 s2, 0x100
        s_cbranch_scc1 L_end
        s_load_dwordx16 s[4:19], s[0:1], 0
        s_load_dwordx8 s[20:27], s[0:1], 64
        """)
        if int(o.get("cpf", 1)):
            A(f"""
            s_getpc_b64 s[48:49]
            v_lshlrev_b32 v4, 4, v0
            s_and_b32 s48, s48, 0xffffff00
            v_min_u32 v4, (L_last-{NAME}_kernel-16)&0xfffffff0, v4
            v_mov_b32 v5, 0
            v_lshl_add_u64 v[4:5], v[4:5], 0, s[48:49]
            global_load_dwordx4 v[60:63], v[4:5], off {o.get("cpfpol", "")}
            """)
        A("""
        v_lshrrev_b32 v1, 6, v0
        v_and_b32 v0, 63, v0
        """)
        if o.get("map", "xcd") == "xcd":
            A("""
            s_and_b32 s28, s2, 7
            s_lshl_b32 s28, s28, 2
            v_readfirstlane_b32 s3, v1
            s_bfe_u32 s29, s2, 0x20003
            s_add_u32 s28, s28, s29
            s_lshr_b32 s29, s2, 5
            s_lshl_b32 s30, s28, 3
            s_add_u32 s30, s30, s29
            s_and_b32 s48, s2, 7
            s_mul_i32 s52, s48, 43
            s_add_u32 s53, s52, 43
            s_lshr_b32 s52, s52, 3
            s_lshr_b32 s53, s53, 3
            s_sub_u32 s53, s53, s52
            s_and_b32 s48, s28, 3
            s_mul_i32 s48, s48, s53
            s_lshl_b32 s52, s52, 2
            s_add_u32 s52, s52, s48
            """)
        else:
            A("""
            s_lshr_b32 s28, s2, 3
            s_and_b32 s29, s2, 7
            v_readfirstlane_b32 s3, v1
            s_mov_b32 s30, s2
            s_mul_i32 s52, s28, 43
            s_add_u32 s53, s52, 43
            s_lshr_b32 s52, s52, 3
            s_lshr_b32 s53, s53, 3
            s_sub_u32 s53, s53, s52
            """)
        A("""
        v_and_b32 v2, 15, v0
        v_lshrrev_b32 v3, 4, v0
        s_cmp_lt_u32 s3, 2
        s_cbranch_scc1 L_ctrl
        """)
        self.kv(KVPOL, WPOL)
        A("s_endpgm")
        A("L_ctrl:")
        self.ctrl(WPOL)
        A("L_end:")
        A("s_endpgm")
        A("L_last:")
        A('.section .rodata,"a"')
        A(".p2align 6")
        A(f".amdhsa_kernel {NAME}_kernel")
        A("  .amdhsa_next_free_vgpr 160")
        A("  .amdhsa_next_free_sgpr 102")
        A("  .amdhsa_accum_offset 160")
        A("  .amdhsa_group_segment_fixed_size 0")
        A("  .amdhsa_kernarg_size 96")
        A("  .amdhsa_user_sgpr_count 2")
        A("  .amdhsa_user_sgpr_kernarg_segment_ptr 1")
        A("  .amdhsa_system_sgpr_workgroup_id_x 1")
        A(".end_amdhsa_kernel")
        return "\n".join(self.L) + "\n"

    def ctrl(self, WPOL):
        A = self.A
        A(f"""
        s_setprio {self.opt.get('cprio', 2)}
        s_movk_i32 s48, 2752
        s_mov_b32 s49, 0
        s_sub_u32 s50, s53, 1
        s_cmp_eq_u32 s3, 0
        s_cselect_b32 s48, 0x2000, s48
        s_cselect_b32 s50, 7, s50
        s_lshl_b32 s51, s29, 6
        v_lshl_add_u32 v4, v3, 4, s51
        v_and_b32 v5, 7, v2
        v_min_u32 v5, s50, v5
        v_mul_lo_u32 v6, v4, s48
        v_lshl_add_u32 v6, v5, 4, v6
        v_lshlrev_b32 v4, 1, v4
        v_lshlrev_b32 v5, 4, v0
        v_mov_b32 v7, 0
        v_mov_b32 v20, {L_FLAG}
        v_cmp_gt_u32 vcc, 8, v2
        s_lshl_b32 s54, s28, 8
        s_lshl_b32 s55, s52, 4
        ds_write_b32 v20, v7 offset:8
        s_waitcnt lgkmcnt(0)
        {"s_barrier" if self.opt.get("binit", "late") == "early" else ""}
        {"s_memrealtime s[88:89]" if self.diag and self.opt.get("st2") == "s" else ""}
        global_load_dword v21, v7, s[26:27] sc1
        global_load_dwordx4 v[16:19], v5, s[4:5]
        global_load_dwordx4 v[8:11], v4, s[4:5]
        global_load_dwordx4 v[12:15], v4, s[4:5] offset:16
        s_cmp_eq_u32 s3, 0
        s_cbranch_scc0 L_c1_ptr
        s_add_u32 s56, s10, s54
        s_addc_u32 s57, s11, 0
        s_add_u32 s58, s56, 128
        s_addc_u32 s59, s57, 0
        s_branch L_c_ptr_done
        L_c1_ptr:
        s_add_u32 s56, s16, s55
        s_addc_u32 s57, s17, 0
        s_add_u32 s58, s18, s55
        s_addc_u32 s59, s19, 0
        L_c_ptr_done:
        v_mov_b32 v22, s58
        v_mov_b32 v23, s59
        v_mov_b32 v24, s56
        v_mov_b32 v25, s57
        v_cndmask_b32 v22, v22, v24, vcc
        v_cndmask_b32 v23, v23, v25, vcc
        v_lshl_add_u64 v[22:23], v[6:7], 0, v[22:23]
        """)
        if self.opt.get("x_noq"):
            A("s_mov_b32 s48, 0")
        if self.opt.get("x_nog"):
            A("s_cmp_eq_u32 s3, 0")
            A("s_cselect_b32 s48, s48, 0")
        for j in range(16):
            A(f"global_load_dwordx4 v[{64+4*j}:{67+4*j}], v[22:23], off {WPOL}")
            if j < 15:
                A("v_lshl_add_u64 v[22:23], v[22:23], 0, s[48:49]")
        if self.opt.get("st2") == "s":
            self.stamp(3)
        if self.opt.get("binit", "late") == "late":
            A("s_barrier")
        NT = 0
        if int(self.opt.get("touch", 0)):
            NT = 4
            A("""
            s_lshl_b32 s54, s30, 17
            v_mov_b32 v4, s54
            s_lshl_b32 s54, s28, 17
            v_mov_b32 v5, s54
            s_lshl_b32 s54, s52, 13
            v_mov_b32 v6, s54
            s_mov_b64 exec, 1
            global_load_dword v56, v4, s[8:9] nt
            global_load_dword v57, v5, s[12:13] nt
            global_load_dword v58, v6, s[20:21] nt
            global_load_dword v59, v7, s[22:23] nt
            s_mov_b64 exec, -1
            """)
        self.stamp(1)
        A("""
        """)
        if self.opt.get("ocol", "x") == "x":
            A("""
            s_lshr_b32 s37, s28, 2
            s_and_b32 s38, s30, 31
            """)
        else:
            A("""
            s_mov_b32 s37, s29
            s_mov_b32 s38, s28
            """)
        A("""
        s_lshl_b32 s54, s37, 7
        s_lshl_b32 s55, s38, 2
        s_add_u32 s39, s54, s55
        s_load_dword s33, s[4:5], s39
        """)
        A("""
        v_and_b32 v4, 2, v2
        v_cmp_eq_u32 vcc, 0, v4
        v_mov_b32 v5, 0x01000c0c
        v_mov_b32 v6, 0x0c0c0100
        v_cndmask_b32 v5, v5, v6, vcc
        v_mov_b32 v6, 0x03020c0c
        v_mov_b32 v7, 0x0c0c0302
        v_cndmask_b32 v6, v6, v7, vcc
        v_and_b32 v4, 13, v2
        v_mov_b32 v7, 0x0c0c0c0c
        """)
        for d in range(4):
            A(f"v_cmp_eq_u32 vcc, {4*d}, v4")
            self.nop(2)
            A(f"v_cndmask_b32 v{24+2*d}, v7, v5, vcc")
            A(f"v_cndmask_b32 v{25+2*d}, v7, v6, vcc")
        A(f"s_waitcnt vmcnt({18+NT})")
        A("v_or_b32 v21, 15, v21")
        A("v_add_u32 v21, 1, v21")
        for k in range(4):
            A(f"v_lshlrev_b32 v{44+2*k}, 16, v{16+k}")
            A(f"v_and_b32 v{45+2*k}, 0xffff0000, v{16+k}")
        A("v_readfirstlane_b32 s31, v21")
        A("""
        v_add_f32 v4, v44, v45
        v_add_f32 v5, v46, v47
        v_add_f32 v6, v48, v49
        v_add_f32 v7, v50, v51
        v_add_f32 v4, v4, v5
        v_add_f32 v6, v6, v7
        v_add_f32 v4, v4, v6
        """)
        self.wave_reduce_to_sgpr("v_add_f32", 4, 54)
        A(f"v_mov_b32 v5, {INV512}")
        self.nop(1)
        A("v_mul_f32 v20, s54, v5")
        for k in range(8):
            A(f"v_sub_f32 v{44+k}, v{44+k}, v20")
        A("v_mul_f32 v4, v44, v44")
        for k in range(1, 8):
            A(f"v_fmac_f32 v4, v{44+k}, v{44+k}")
        self.wave_reduce_to_sgpr("v_add_f32", 4, 54)
        self.round_bf16(20, 20)
        A("v_mul_f32 v4, s54, v5")
        self.round_bf16(4, 4)
        A(f"v_add_f32 v4, {EPS}, v4")
        self.round_bf16(4, 4)
        A("v_sqrt_f32 v4, v4")
        self.nop(1)
        self.round_bf16(4, 4)
        A("v_rcp_f32 v6, v4")
        A("v_mov_b32 v21, v20")
        A("v_mov_b32 v5, v4")
        A("v_mov_b32 v7, v6")
        A(f"s_waitcnt vmcnt({16+NT})")
        for k in range(8):
            x = 8 + k
            A(f"""
            v_lshlrev_b32 v44, 16, v{x}
            v_and_b32 v45, 0xffff0000, v{x}
            v_pk_add_f32 v[44:45], v[44:45], v[20:21] neg_lo:[0,1] neg_hi:[0,1]
            v_cvt_pk_bf16_f32 v46, v44, v45
            v_lshlrev_b32 v44, 16, v46
            v_and_b32 v45, 0xffff0000, v46
            v_pk_mul_f32 v[46:47], v[44:45], v[6:7]
            v_pk_fma_f32 v[44:45], v[46:47], v[4:5], v[44:45] neg_lo:[1,0,0] neg_hi:[1,0,0]
            v_pk_fma_f32 v[46:47], v[44:45], v[6:7], v[46:47]
            v_cvt_pk_bf16_f32 v{x}, v46, v47
            """)

        def perms(j):
            a = 32 + 4 * (j & 1)
            for d in range(4):
                A(f"v_perm_b32 v{a+d}, v{8+(j>>1)}, v{8+(j>>1)}, v{24+2*d+(j&1)}")
        perms(0)
        for j in range(16):
            if j < 15:
                perms(j + 1)
            else:
                self.nop(2)
            A(f"s_waitcnt vmcnt({15-j+NT})")
            a = 32 + 4 * (j & 1)
            c = "0" if j == 0 else "v[40:43]"
            A(f"v_mfma_f32_16x16x32_bf16 v[40:43], v[{a}:{a+3}], v[{64+4*j}:{67+4*j}], {c}")
        A(f"""
        s_mul_i32 s54, s3, {WS_G - WS_Q}
        s_add_u32 s54, s54, {WS_Q}
        s_lshl_b32 s55, s30, 10
        s_add_u32 s55, s55, s54
        v_lshl_add_u32 v4, v0, 4, s55
        s_lshl_b32 s55, s28, 13
        s_add_u32 s55, s55, s54
        s_add_u32 s55, s55, 4096
        v_lshl_add_u32 v5, v0, 4, s55
        s_lshl_b32 s54, s28, 8
        s_lshl_b32 s55, s3, 7
        s_add_u32 s54, s54, s55
        s_add_u32 s54, s54, {WS_HINT}
        v_mov_b32 v41, s31
        v_mov_b32 v43, s31
        global_store_dwordx4 v4, v[40:43], s[26:27] sc1
        s_add_u32 s46, s26, s54
        s_addc_u32 s47, s27, 0
        s_lshl_b32 s55, s29, 2
        v_mov_b32 v6, s55
        s_getreg_b32 s44, hwreg(HW_REG_XCC_ID, 0, 4)
        s_or_b32 s44, s44, s31
        v_mov_b32 v7, s44
        s_mov_b64 exec, 1
        global_store_dword v6, v7, s[46:47] sc1
        s_mov_b64 exec, -1
        s_mov_b32 s32, 0
        s_mov_b32 s45, s44
        s_mov_b32 s43, 1
        s_mov_b32 s35, 0
        """)
        if self.opt.get("st2") != "s":
            self.stamp(2)
        if self.opt.get("x_nopoll"):
            A("s_branch L_qdone")
        if self.opt.get("x_nopoll1"):
            A("s_cmp_eq_u32 s3, 1")
            A("s_cbranch_scc1 L_qdone")
        A(f"""
        L_qhint:
        s_load_dwordx8 s[56:63], s[46:47], 0 glc
        s_add_u32 s32, s32, 1
        s_cmp_ge_u32 s32, {SPIN_MAX}
        s_cbranch_scc1 L_qpoll
        s_waitcnt lgkmcnt(0)
        s_xor_b64 s[56:57], s[56:57], s[44:45]
        s_xor_b64 s[58:59], s[58:59], s[44:45]
        s_xor_b64 s[60:61], s[60:61], s[44:45]
        s_xor_b64 s[62:63], s[62:63], s[44:45]
        s_or_b64 s[56:57], s[56:57], s[58:59]
        s_or_b64 s[60:61], s[60:61], s[62:63]
        s_or_b64 s[56:57], s[56:57], s[60:61]
        s_or_b32 s43, s56, s57
        s_cmp_lt_u32 s43, 16
        s_cbranch_scc1 L_qpoll
        s_sleep {self.opt.get("hintsleep", 4)}
        s_branch L_qhint
        """)
        A("L_qpoll:")
        if self.opt.get("x_hintonly"):
            A("s_branch L_qdone")
        if self.diag:
            A("s_add_u32 s35, s35, 1")
        for k in range(8):
            A(f"global_load_dwordx4 v[{64+4*k}:{67+4*k}], v5, s[26:27] offset:{1024*k-4096} {self.opt.get('x_qpol', 'sc1')}")
        A("s_add_u32 s32, s32, 1")
        for k in range(8):
            r = 64 + 4 * k
            A(f"s_waitcnt vmcnt({7-k})")
            if k == 0:
                A(f"v_xor_b32 v6, s31, v{r+1}")
                A(f"v_mov_b32 v44, v{r}")
                A(f"v_mov_b32 v45, v{r+2}")
            else:
                A(f"v_bitop3_b32 v6, v{r+1}, s31, v6 bitop3:0xbe")
                A(f"v_add_f32 v44, v44, v{r}")
                A(f"v_add_f32 v45, v45, v{r+2}")
            A(f"v_bitop3_b32 v6, v{r+3}, s31, v6 bitop3:0xbe")
        A(f"""
        v_cmp_ne_u32 vcc, 0, v6
        s_cbranch_vccz L_qdone
        s_cmp_lt_u32 s32, {SPIN_MAX}
        s_cbranch_scc1 L_qhint
        L_qdone:
        v_cvt_pk_bf16_f32 v44, v44, v45
        v_lshlrev_b32 v22, 4, v2
        v_lshl_add_u32 v22, v3, 2, v22
        s_cmp_eq_u32 s3, 0
        s_cbranch_scc1 L_c0
        """)
        A(f"""
        v_mov_b32_dpp v45, v44 row_ror:8 row_mask:0xf bank_mask:0xf
        v_lshlrev_b32 v46, 16, v44
        v_and_b32 v47, 0xffff0000, v44
        v_mov_b32 v50, {GELU_K1}
        v_mul_f32 v48, v46, v46
        v_mul_f32 v49, v47, v47
        v_mul_f32 v48, v48, v46
        v_mul_f32 v49, v49, v47
        v_fma_f32 v48, v48, v50, v46
        v_fma_f32 v49, v49, v50, v47
        v_mul_f32 v48, {GELU_C}, v48
        v_mul_f32 v49, {GELU_C}, v49
        v_exp_f32 v48, v48
        v_exp_f32 v49, v49
        s_nop 0
        v_add_f32 v48, 1.0, v48
        v_add_f32 v49, 1.0, v49
        v_rcp_f32 v48, v48
        v_rcp_f32 v49, v49
        s_nop 0
        v_mul_f32 v46, v46, v48
        v_mul_f32 v47, v47, v49
        v_cvt_pk_bf16_f32 v44, v46, v47
        v_lshlrev_b32 v46, 16, v44
        v_and_b32 v47, 0xffff0000, v44
        v_lshlrev_b32 v48, 16, v45
        v_and_b32 v49, 0xffff0000, v45
        v_cmp_gt_u32 vcc, s53, v2
        v_mul_f32 v46, v46, v48
        v_mul_f32 v47, v47, v49
        v_cvt_pk_bf16_f32 v44, v46, v47
        v_cndmask_b32 v44, 0, v44, vcc
        ds_write_b32 v22, v44 offset:{L_H}
        s_waitcnt lgkmcnt(0)
        s_endpgm
        """)
        A(f"""
        L_c0:
        v_mov_b32 v20, {L_FLAG}
        v_mov_b32 v7, s31
        ds_write_b32 v22, v44 offset:{L_Q}
        ds_write_b32 v20, v7
        """)
        if self.opt.get("st2") != "s":
            self.stamp(3)
        A(f"""
        s_waitcnt lgkmcnt(0)
        s_barrier
        v_and_b32 v23, 7, v0
        v_lshlrev_b32 v4, 3, v23
        s_lshl_b32 s54, s28, 7
        s_add_u32 s54, s54, {WS_ML}
        s_add_u32 s46, s26, s54
        s_addc_u32 s47, s27, 0
        s_lshl_b32 s54, s29, 4
        v_mov_b32 v24, s54
        s_lshl_b32 s54, s30, 10
        s_add_u32 s54, s54, {WS_O}
        v_lshl_add_u32 v26, v0, 4, s54
        s_lshl_b32 s54, s28, 13
        s_add_u32 s54, s54, {WS_O + 4096}
        v_lshl_add_u32 v27, v0, 4, s54
        s_sub_u32 s54, s54, {4096 - 1020}
        v_lshl_add_u32 v23, v23, 10, s54
        s_lshl_b32 s54, s37, 15
        s_lshl_b32 s55, s38, 5
        s_add_u32 s54, s54, s55
        s_add_u32 s54, s54, {WS_Y}
        v_lshrrev_b32 v5, 1, v0
        v_lshlrev_b32 v5, 10, v5
        v_and_b32 v6, 1, v0
        v_lshl_add_u32 v5, v6, 4, v5
        v_add_u32 v28, s54, v5
        v_lshl_add_u32 v29, v0, 1, s39
        v_lshlrev_b32 v30, 3, v0
        v_mov_b32 v31, {LOG2E}
        v_cmp_eq_u32 vcc, 0, v6
        s_lshl_b32 s54, s33, 16
        s_and_b32 s55, s33, 0xffff0000
        v_mov_b32 v20, s55
        v_mov_b32 v21, s54
        v_cndmask_b32 v20, v20, v21, vcc
        """)
        for k in range(int(self.opt.get("x_dirty", 0))):
            A(f"v_add_u32 v6, {0x200000 + k * 0x40000}, v26")
            A("global_store_dwordx4 v6, v[64:67], s[26:27]")
        warm = self.opt.get("warm", "n")
        if "o" in warm:
            A(f"global_load_dwordx4 v[64:67], v26, s[26:27] {self.opt.get('warmpol', 'sc1')}")
            A(f"global_load_dword v68, v24, s[46:47] {self.opt.get('warmpol', 'sc1')}")
        if "y" in warm:
            A(f"global_load_dwordx4 v[72:75], v28, s[26:27] {self.opt.get('warmpol', 'sc1')}")
        A("s_barrier")
        self.stamp(4)
        A(f"""
        ds_read_b64 v[8:9], v4 offset:{L_ML}
        s_waitcnt lgkmcnt(0)
        v_mov_b32 v12, v8
        """)
        self.oct_allreduce("v_max_f32", 12)
        A("""
        v_sub_f32 v8, v8, v12
        v_mul_f32 v8, v8, v31
        v_exp_f32 v8, v8
        v_mov_b32 v13, s31
        v_mul_f32 v14, v8, v9
        """)
        self.oct_allreduce("v_add_f32", 14)
        A(f"""
        v_mov_b32 v15, s31
        {"s_mov_b32 s43, 1" if self.opt.get("nolocal") else ""}
        s_mov_b64 exec, 1
        s_cmp_eq_u32 s43, 0
        s_cbranch_scc1 L_ml_local
        global_store_dwordx4 v24, v[12:15], s[46:47] sc1
        s_branch L_ml_done
        L_ml_local:
        global_store_dwordx4 v24, v[12:15], s[46:47]
        L_ml_done:
        s_mov_b64 exec, -1
        v_mov_b32 v41, s31
        v_mov_b32 v43, s31
        v_lshlrev_b32 v25, 1, v4
        s_mov_b32 s32, 0
        {"s_waitcnt vmcnt(1)" if warm != "n" else ""}
        s_barrier
        """)
        self.stamp(5)
        if self.opt.get("x_notail"):
            self.stamp(6)
            A("s_barrier")
            A("s_branch L_c0_end")
        for k in range(4):
            A(f"ds_read2st64_b64 v[{64+4*k}:{67+4*k}], v30 offset0:{L_OS//512+2*k} offset1:{L_OS//512+2*k+1}")
        A("""
        s_waitcnt lgkmcnt(2)
        v_pk_add_f32 v[64:65], v[64:65], v[66:67]
        v_pk_add_f32 v[68:69], v[68:69], v[70:71]
        s_waitcnt lgkmcnt(0)
        v_pk_add_f32 v[72:73], v[72:73], v[74:75]
        v_pk_add_f32 v[76:77], v[76:77], v[78:79]
        v_pk_add_f32 v[64:65], v[64:65], v[68:69]
        v_pk_add_f32 v[72:73], v[72:73], v[76:77]
        s_cmp_eq_u32 s43, 0
        v_add_f32 v40, v64, v72
        v_add_f32 v42, v65, v73
        s_cbranch_scc0 L_o_remote
        global_store_dwordx4 v26, v[40:43], s[26:27]
        L_opoll:
        """)
        if self.opt.get("st2") == "o":
            self.stamp(1)
        A("global_load_dwordx4 v[8:11], v25, s[46:47] sc1")
        for k in range(8):
            A(f"global_load_dwordx4 v[{64+4*k}:{67+4*k}], v27, s[26:27] offset:{1024*k-4096} sc1")
        A("s_add_u32 s32, s32, 1")
        A("s_waitcnt vmcnt(8)")
        if self.opt.get("st2") == "o":
            self.stamp(2)

        def chk(k, wait=True):
            r = 64 + 4 * k
            if wait:
                A(f"s_waitcnt vmcnt({7-k})")
            A(f"v_xor_b32 v7, s31, v{r+1}")
            A(f"v_bitop3_b32 v7, v{r+3}, s31, v7 bitop3:0xbe")
            A(f"v_cmp_ne_u32 s[{64+2*k}:{65+2*k}], 0, v7")
        dpp = lambda op, v, c: A(f"{op}_dpp v{v}, v{v}, v{v} {c} row_mask:0xf bank_mask:0xf")
        A("""
        v_mov_b32 v12, v8
        v_xor_b32 v6, s31, v9
        v_bitop3_b32 v6, v11, s31, v6 bitop3:0xbe
        """)
        dpp("v_max_f32", 12, "quad_perm:[1,0,3,2]")
        A("v_cmp_ne_u32 s[38:39], 0, v6")
        A("s_nop 0")
        dpp("v_max_f32", 12, "quad_perm:[2,3,0,1]")
        chk(0)
        dpp("v_max_f32", 12, "row_half_mirror")
        A("""
        v_sub_f32 v8, v8, v12
        v_mul_f32 v8, v8, v31
        v_exp_f32 v8, v8
        """)
        chk(1)
        A("v_mul_f32 v14, v8, v10")
        chk(2)
        dpp("v_add_f32", 14, "quad_perm:[1,0,3,2]")
        chk(3)
        dpp("v_add_f32", 14, "quad_perm:[2,3,0,1]")
        chk(4)
        dpp("v_add_f32", 14, "row_half_mirror")
        A("v_rcp_f32 v14, v14")
        chk(5)
        A("v_mul_f32 v8, v8, v14")
        A("s_cmp_eq_u64 s[38:39], 0")
        A("s_cbranch_scc0 L_mlretry")
        for k in range(8):
            A(f"v_readlane_b32 s{56+k}, v8, {k}")
        chk(6)
        chk(7)

        def ortree():
            A("s_or_b64 s[36:37], s[64:65], s[66:67]")
            A("s_or_b64 s[38:39], s[68:69], s[70:71]")
            A("s_or_b64 s[40:41], s[72:73], s[74:75]")
            A("s_or_b64 s[36:37], s[36:37], s[38:39]")
            A("s_or_b64 s[36:37], s[36:37], s[40:41]")
            A("s_or_b64 s[36:37], s[36:37], s[76:77]")
            A("s_or_b64 s[36:37], s[36:37], s[78:79]")

        def reload():
            for k in range(8):
                A(f"s_mov_b64 exec, s[{64+2*k}:{65+2*k}]")
                A(f"global_load_dwordx4 v[{64+4*k}:{67+4*k}], v27, s[26:27] offset:{1024*k-4096} sc1")
            A("s_mov_b64 exec, -1")
        ortree()
        if self.opt.get("st2") == "o":
            self.stamp(3)
        A("s_cbranch_scc0 L_osum")
        reload()
        A("L_oround:")
        reload()
        A("s_waitcnt vmcnt(8)")
        for k in range(8):
            chk(k, False)
        A(f"""
        s_add_u32 s32, s32, 1
        s_cmp_lt_u32 s32, {SPIN_MAX}
        s_cbranch_scc0 L_osum
        """)
        ortree()
        A("""
        s_cbranch_scc1 L_oround
        L_osum:
        s_waitcnt vmcnt(0)
        v_mul_f32 v44, s56, v64
        v_mul_f32 v45, s56, v66
        """)
        for k in range(1, 8):
            A(f"v_fmac_f32 v44, s{56+k}, v{64+4*k}")
            A(f"v_fmac_f32 v45, s{56+k}, v{66+4*k}")
        A(f"""
        v_cvt_pk_bf16_f32 v44, v44, v45
        L_odone:
        ds_write_b32 v22, v44 offset:{L_OB}
        s_mov_b32 s34, s32
        s_mov_b32 s32, 0
        """)
        self.stamp(6)
        A(f"""
        s_waitcnt lgkmcnt(0)
        s_barrier
        s_mov_b64 vcc, -1
        global_load_dwordx4 v[8:11], v28, s[26:27] sc1
        L_ypoll:
        s_mov_b64 exec, vcc
        global_load_dwordx4 v[8:11], v28, s[26:27] sc1
        s_mov_b64 exec, -1
        s_add_u32 s32, s32, 1
        s_waitcnt vmcnt(1)
        v_xor_b32 v6, s31, v9
        v_bitop3_b32 v6, v11, s31, v6 bitop3:0xbe
        v_cmp_ne_u32 vcc, 0, v6
        s_bcnt1_i32_b64 s48, vcc
        s_cbranch_scc0 L_ydone
        s_cmp_ge_u32 s32, {SPIN_MAX}
        s_cbranch_scc1 L_ydone
        s_cmp_le_u32 s48, {self.opt.get("yth", 16)}
        s_cbranch_scc1 L_ypoll
        s_sleep {self.opt.get("ysleep", 4)}
        s_branch L_ypoll
        L_ydone:
        {"s_memrealtime s[88:89]" if self.diag and self.opt.get("st2") == "y" else ""}
        s_waitcnt vmcnt(0)
        v_permlane32_swap_b32 v8, v10
        v_add_f32 v16, v8, v10
        v_add_f32 v18, v8, v10
        s_nop 1
        v_permlane16_swap_b32 v16, v18
        v_add_f32 v16, v16, v18
        """)
        self.row_allreduce("v_add_f32", 16, ("quad_perm:[2,3,0,1]", "row_ror:4", "row_ror:8"))
        self.round_bf16(16, 16)
        A("""
        v_add_f32 v12, v20, v16
        v_mov_b32 v18, v16
        """)
        self.round_bf16(12, 12)
        A("""
        v_permlane32_swap_b32 v16, v18
        v_add_f32 v12, v12, v18
        v_mov_b32 v19, s31
        v_cvt_pk_bf16_f32 v12, v12, v12
        v_mov_b32 v18, s31
        s_mov_b64 exec, 3
        global_store_short v29, v12, s[22:23] %s
        s_cmp_lg_u32 s30, 0
        s_cbranch_scc1 L_c0_end
        s_mov_b64 exec, 0xffff
        global_store_dwordx2 v30, v[18:19], s[26:27]
        L_c0_end:
        """ % self.opt.get("outpol", ""))
        self.stamp(7)
        self.dump_stamps(0, 8)
        if self.diag:
            A("""
            s_lshl_b32 s34, s34, 10
            s_lshl_b32 s32, s32, 20
            s_or_b32 s35, s35, s34
            s_or_b32 s35, s35, s32
            v_mov_b32 v2, s35
            v_mov_b32 v3, 0
            global_store_dwordx2 v1, v[2:3], s[26:27] offset:120
            """)
        if self.opt.get("dbgstamp"):
            A(f"""
            s_waitcnt vmcnt(0)
            v_mov_b32 v1, 0
            v_mov_b32 v2, 1
            global_atomic_add v3, v1, v2, s[24:25] offset:252 sc0 sc1
            s_waitcnt vmcnt(0)
            v_readfirstlane_b32 s48, v3
            s_cmp_lg_u32 s48, 255
            s_cbranch_scc1 L_end
            s_mov_b64 exec, -1
            v_mov_b32 v1, 0
            s_mov_b32 s48, {WS_STAMP}
            v_lshl_add_u32 v4, v0, 7, s48
            """)
            for k in range(16):
                src = 0 if k == 15 else k
                for q in range(4):
                    A(f"v_add_u32 v5, {q*8192 + 8*src}, v4")
                    A(f"global_load_dword v{8+q}, v5, s[26:27] sc1")
                A("s_waitcnt vmcnt(0)")
                op = "v_min_u32" if k == 15 else "v_max_u32"
                A(f"{op} v8, v8, v9")
                A(f"{op} v10, v10, v11")
                A(f"{op} v8, v8, v10")
                self.wave_reduce_to_sgpr(op, 8, 49)
                self.nop(2)
                A("v_mov_b32 v6, s49")
                A(f"global_store_dword v1, v6, s[24:25] offset:{4*k}")
        A(f"""
        s_endpgm
        L_mlretry:
        s_waitcnt vmcnt(0)
        s_sleep 2
        s_cmp_lt_u32 s32, {SPIN_MAX}
        s_cbranch_scc1 L_opoll
        s_branch L_odone
        L_o_remote:
        global_store_dwordx4 v26, v[40:43], s[26:27] sc1
        s_branch L_opoll
        """)

    def dma(self, WPOL):
        A = self.A
        A(f"""
        s_mov_b32 s56, s12
        s_mov_b32 s57, s13
        s_mov_b32 s58, 0x400000
        s_mov_b32 s59, 0x20000
        s_mov_b32 s44, s20
        s_mov_b32 s45, s21
        s_mov_b32 s46, 1409024
        s_mov_b32 s47, 0x20000
        v_lshrrev_b32 v24, 3, v0
        v_and_b32 v25, 1, v3
        v_lshlrev_b32 v25, 1, v25
        v_and_b32 v26, 7, v0
        v_xor_b32 v25, v25, v26
        v_lshlrev_b32 v25, 4, v25
        v_lshl_add_u32 v25, v24, 10, v25
        v_xor_b32 v26, 64, v25
        s_lshl_b32 s49, s29, 7
        s_lshl_b32 s50, s28, 17
        s_add_u32 s50, s50, s49
        s_lshl_b32 s48, s34, 15
        s_add_u32 s50, s50, s48
        s_lshl_b32 s51, s34, 1
        s_add_u32 s48, s52, s51
        s_lshl_b32 s48, s48, 13
        s_add_u32 s48, s48, s49
        s_add_u32 s49, s48, 0x2000
        s_cmp_lt_u32 s51, s53
        s_cselect_b32 s54, 0, 0x40000000
        v_or_b32 v27, s54, v25
        s_add_u32 s51, s51, 1
        s_cmp_lt_u32 s51, s53
        s_cselect_b32 s54, 0, 0x40000000
        v_or_b32 v28, s54, v26
        s_lshl_b32 s51, s34, 11
        s_add_u32 m0, s51, {L_W + 16384}
        s_lshl_b32 s54, s34, 12
        buffer_load_dwordx4 v27, s[44:47], s48 offen {WPOL} lds
        s_add_u32 m0, s51, {L_W + 16384 + 1024}
        s_nop 0
        buffer_load_dwordx4 v28, s[44:47], s49 offen {WPOL} lds
        """)
        for jj in range(4):
            A(f"s_add_u32 m0, s54, {L_W + 1024*jj}")
            A(f"s_add_u32 s49, s50, {jj*0x2000}")
            A(f"buffer_load_dwordx4 v{25 + (jj & 1)}, s[56:59], s49 offen {WPOL} lds")

    def kv(self, KVPOL, WPOL):
        A = self.A
        pat = self.opt.get("pattern", "wave")
        A("s_sub_u32 s34, s3, 2")
        A("s_lshl_b32 s48, s28, 20")
        A("s_lshl_b32 s49, s29, 17")
        A("s_add_u32 s48, s48, s49")
        if pat == "wave":
            A("s_lshl_b32 s49, s34, 14")
            step = 1024
        else:
            A("s_lshr_b32 s49, s34, 2")
            A("s_lshl_b32 s49, s49, 16")
            A("s_add_u32 s48, s48, s49")
            A("s_and_b32 s49, s34, 3")
            A("s_lshl_b32 s49, s49, 10")
            step = 4096
        A("""
        s_add_u32 s48, s48, s49
        v_lshl_add_u32 v1, v0, 4, s48
        s_waitcnt lgkmcnt(0)
        s_mov_b32 s36, s6
        s_mov_b32 s37, s7
        s_mov_b32 s38, 0x2000000
        s_mov_b32 s39, 0x20000
        s_mov_b32 s40, s8
        s_mov_b32 s41, s9
        s_mov_b32 s42, 0x2000000
        s_mov_b32 s43, 0x20000
        """)
        if self.opt.get("st2") == "s":
            self.stamp(1)

        def load(reg, srd, j):
            off = j * step
            if off & ~0xFFF != getattr(self, "_soff", None):
                self._soff = off & ~0xFFF
                A(f"s_mov_b32 s48, {self._soff}")
            A(f"buffer_load_dwordx4 v[{reg}:{reg+3}], v1, {srd}, s48 offen offset:{off & 0xFFF} {KVPOL}")
        dmapos = self.opt.get("dma", "late")
        bs = int(self.opt.get("bsplit", 8))
        kfirst = int(self.opt.get("kfirst", 1))

        def early(tag):
            if dmapos == tag:
                A("s_cmp_ge_u32 s34, 4")
                A("s_cbranch_scc1 L_nodma0")
                self.dma(WPOL)
                A("L_nodma0:")
                self._soff = None
        self._soff = None
        if kfirst:
            A("s_setprio 1")
        early("first")
        pre = int(self.opt.get("pre", 0))
        for j in range(16):
            if j == pre and self.opt.get("st2") == "s":
                self.stamp(2)
            if j == pre and self.opt.get("binit", "late") != "none":
                A("s_barrier")
            load(32 + 4 * j, "s[36:39]", j)
        if kfirst:
            A("s_setprio 0")
        early("mid")
        for j in range(bs):
            load(96 + 4 * j, "s[40:43]", j)
        if bs < 16:
            A("s_cmp_ge_u32 s34, 4")
            A("s_cbranch_scc1 L_vsplit")
            self._soff = None
            for j in range(bs, 16):
                load(96 + 4 * j, "s[40:43]", j)
            A("L_vsplit:")
        early("endA")
        self.stamp(0)
        A(f"""
        v_and_b32 v4, 2, v2
        v_cmp_eq_u32 vcc, 0, v4
        v_mov_b32 v5, 0xffff0000
        v_mov_b32 v6, 0xffff
        v_cndmask_b32 v5, v5, v6, vcc
        v_and_b32 v4, 13, v2
        """)
        for d in range(4):
            A(f"v_cmp_eq_u32 vcc, {4*d}, v4")
            self.nop(2)
            A(f"v_cndmask_b32 v{8+d}, 0, v5, vcc")
        A(f"""
        v_and_b32 v4, 2, v0
        v_cmp_ne_u32 s[50:51], 0, v4
        v_and_b32 v4, 1, v0
        v_cmp_ne_u32 s[54:55], 0, v4
        v_mov_b32 v20, {L_FLAG}
        v_lshlrev_b32 v21, 4, v2
        s_barrier
        ds_read_b128 v[4:7], v21 offset:{L_Q}
        ds_read_b32 v22, v20
        s_waitcnt vmcnt(16) lgkmcnt(0)
        s_cmp_lt_u32 s34, 4
        s_cbranch_scc1 L_kready
        s_waitcnt vmcnt({bs})
        L_kready:
        v_readfirstlane_b32 s31, v22
        """)
        if self.opt.get("st2") != "s":
            self.stamp(1)
        for d in range(4):
            for j in range(16):
                r = 32 + 4 * j
                A(f"v_dot2_f32_bf16 v{r}, v{r+d}, v{4+d}, {'0' if d == 0 else 'v%d' % r}")
        P = lambda j: 32 + 4 * j
        for j in range(8):
            A(f"v_add_f32_dpp v{P(j)}, v{P(j)}, v{P(j)} row_ror:8 row_mask:0xf bank_mask:0x3")
        for j in range(8):
            A(f"v_add_f32_dpp v{P(j)}, v{P(j+8)}, v{P(j+8)} row_ror:8 row_mask:0xf bank_mask:0xc")
        for j in range(4):
            A(f"v_add_f32_dpp v{P(j)}, v{P(j)}, v{P(j)} row_shl:4 row_mask:0xf bank_mask:0x5")
        for j in range(4):
            A(f"v_add_f32_dpp v{P(j)}, v{P(j+4)}, v{P(j+4)} row_shr:4 row_mask:0xf bank_mask:0xa")
        for j in range(2):
            A(f"v_cndmask_b32 v{16+j}, v{P(j)}, v{P(j+2)}, s[50:51]")
            A(f"v_cndmask_b32 v{18+j}, v{P(j+2)}, v{P(j)}, s[50:51]")
        self.nop(1)
        A("v_add_f32_dpp v16, v18, v16 quad_perm:[2,3,0,1] row_mask:0xf bank_mask:0xf")
        A("v_add_f32_dpp v17, v19, v17 quad_perm:[2,3,0,1] row_mask:0xf bank_mask:0xf")
        A("v_cndmask_b32 v19, v17, v16, s[54:55]")
        A("v_cndmask_b32 v18, v16, v17, s[54:55]")
        self.nop(1)
        A("v_add_f32_dpp v16, v19, v18 quad_perm:[1,0,3,2] row_mask:0xf bank_mask:0xf")
        self.round_bf16(16, 16)
        A(f"v_mul_f32 v16, {SCALE}, v16")
        self.round_bf16(16, 16)
        A("v_mov_b32 v17, v16")
        self.wave_reduce_to_sgpr("v_max_f32", 17, 49)
        A(f"""
        v_mov_b32 v31, {LOG2E}
        s_nop 0
        v_subrev_f32 v17, s49, v16
        v_mul_f32 v17, v17, v31
        v_exp_f32 v17, v17
        s_nop 0
        """)
        self.row_allreduce("v_add_f32", 17)
        self.nop(2)
        A("v_add_f32_dpp v17, v17, v17 row_bcast:15 row_mask:0xa bank_mask:0xf")
        self.nop(2)
        A("v_add_f32_dpp v17, v17, v17 row_bcast:31 row_mask:0xc bank_mask:0xf")
        A(f"""
        s_lshl_b32 s48, s34, 3
        v_mov_b32 v18, s48
        v_mov_b32 v19, s49
        s_mov_b32 exec_lo, 0
        s_mov_b32 exec_hi, 0x80000000
        ds_write2_b32 v18, v19, v17 offset0:{L_ML//4} offset1:{L_ML//4+1}
        s_mov_b64 exec, -1
        """)
        if self.opt.get("st2") != "s":
            self.stamp(2)
        A(f"""
        v_and_b32 v18, 7, v0
        v_lshlrev_b32 v18, 3, v18
        s_waitcnt lgkmcnt(0)
        s_barrier
        ds_read_b32 v17, v18 offset:{L_ML}
        """)
        if bs < 16:
            A("s_cmp_lt_u32 s34, 4")
            A("s_cbranch_scc1 L_vskip")
            if dmapos != "b1":
                A("s_setprio 1")
            self._soff = None
            for j in range(bs, 16):
                load(96 + 4 * j, "s[40:43]", j)
            A("s_branch L_vdone")
            A("L_vskip:")
            if dmapos == "b1":
                self.dma(WPOL)
            A("L_vdone:")
        self.stamp(3)
        A("s_waitcnt lgkmcnt(0)")
        self.oct_allreduce("v_max_f32", 17)
        A(f"""
        v_sub_f32 v17, v16, v17
        v_mul_f32 v17, v17, v31
        v_exp_f32 v17, v17
        s_lshl_b32 s48, s34, 9
        s_add_u32 s48, s48, {L_OS}
        v_lshl_add_u32 v18, v0, 3, s48
        v_cvt_pk_bf16_f32 v17, v17, v17
        """)
        self.nop(2)
        for j in range(16):
            for d in range(4):
                A(f"v_and_b32_dpp v{32+4*j+d}, v17, v{8+d} row_newbcast:{j} row_mask:0xf bank_mask:0xf")
        if self.opt.get("diagwave", 7) >= 4:
            self.stamp(6)
        A("s_cmp_ge_u32 s34, 4")
        A("s_cbranch_scc1 L_pv_b")
        A(f"s_waitcnt vmcnt({6 if dmapos in ('endA', 'b1') else 0})")
        for j in range(16):
            c = "0" if j == 0 else "v[12:15]"
            A(f"v_mfma_f32_16x16x32_bf16 v[12:15], v[{32+4*j}:{35+4*j}], v[{96+4*j}:{99+4*j}], {c}")
        if dmapos == "late":
            self.dma(WPOL)
        A("s_branch L_pv_done")
        A("L_pv_b:")
        for j in range(16):
            A(f"s_waitcnt vmcnt({15-j})")
            if j == 15:
                self.stamp(5)
            c = "0" if j == 0 else "v[12:15]"
            A(f"v_mfma_f32_16x16x32_bf16 v[12:15], v[{32+4*j}:{35+4*j}], v[{96+4*j}:{99+4*j}], {c}")
        A("""
        L_pv_done:
        s_nop 7
        ds_write2_b32 v18, v12, v14 offset0:0 offset1:1
        s_waitcnt lgkmcnt(0)
        s_barrier
        """)
        self.stamp(4)
        A("s_cmp_ge_u32 s34, 4")
        A("s_cbranch_scc1 L_kv_end")
        A(f"""
        v_bfe_u32 v24, v2, 3, 1
        v_and_b32 v25, 1, v3
        v_lshl_add_u32 v24, v25, 1, v24
        v_xor_b32 v24, s34, v24
        v_lshlrev_b32 v24, 5, v24
        v_lshl_add_u32 v24, v3, 10, v24
        v_lshrrev_b32 v25, 2, v2
        v_lshl_add_u32 v24, v25, 7, v24
        v_and_b32 v25, 3, v2
        v_lshl_add_u32 v24, v25, 3, v24
        v_lshlrev_b32 v27, 4, v3
        v_mov_b32 v25, {L_FLAG + 8}
        v_mov_b32 v26, 1

        ds_read_b128 v[48:51], v27 offset:{L_H}
        ds_read_b128 v[52:55], v27 offset:{L_H + 64}
        s_lshl_b32 s48, s29, 15
        s_lshl_b32 s49, s28, 10
        s_add_u32 s48, s48, s49
        s_lshl_b32 s49, s34, 8
        s_add_u32 s48, s48, s49
        s_add_u32 s48, s48, {WS_Y}
        v_lshl_add_u32 v29, v0, 4, s48
        s_mov_b32 s32, 0
        s_mov_b64 exec, 1
        s_waitcnt vmcnt(0)
        ds_add_u32 v25, v26
        s_mov_b64 exec, -1
        L_wwait:
        ds_read_b32 v26, v25
        s_add_u32 s32, s32, 1
        s_waitcnt lgkmcnt(0)
        v_readfirstlane_b32 s48, v26
        s_cmp_ge_u32 s48, 4
        s_cbranch_scc1 L_wready
        s_cmp_lt_u32 s32, {SPIN_MAX}
        s_cbranch_scc1 L_wwait
        L_wready:
        """)
        for kk in range(2):
            A(f"ds_read_b64_tr_b16 v[{112+4*kk}:{113+4*kk}], v24 offset:{L_W + 16384 + 4096*kk}")
            A(f"ds_read_b64_tr_b16 v[{114+4*kk}:{115+4*kk}], v24 offset:{L_W + 16384 + 4096*kk + 512}")
        for kk in range(4):
            A(f"ds_read_b64_tr_b16 v[{96+4*kk}:{97+4*kk}], v24 offset:{L_W + 4096*kk}")
            A(f"ds_read_b64_tr_b16 v[{98+4*kk}:{99+4*kk}], v24 offset:{L_W + 4096*kk + 512}")
        A("""
        s_waitcnt lgkmcnt(8)
        v_mfma_f32_16x16x32_bf16 v[20:23], v[48:51], v[112:115], 0
        v_mfma_f32_16x16x32_bf16 v[20:23], v[52:55], v[116:119], v[20:23]
        v_mov_b32 v5, s31
        v_mov_b32 v7, s31
        s_nop 5
        v_mov_b32 v6, v20
        s_waitcnt lgkmcnt(0)
        """)
        self.stamp(6)
        A("s_barrier")
        for kk in range(4):
            A(f"ds_read_b128 v[{32+4*kk}:{35+4*kk}], v27 offset:{L_OB + 64*kk}")
        for kk in range(4):
            A(f"s_waitcnt lgkmcnt({3-kk})")
            c = "0" if kk == 0 else "v[16:19]"
            A(f"v_mfma_f32_16x16x32_bf16 v[16:19], v[{32+4*kk}:{35+4*kk}], v[{96+4*kk}:{99+4*kk}], {c}")
        A("""
        s_nop 6
        s_mov_b64 exec, 0xffff
        v_mov_b32 v4, v16
        global_store_dwordx4 v29, v[4:7], s[26:27] sc1
        L_kv_end:
        """)
        if self.diag:
            A("s_cmp_lg_u32 s34, %d" % self.opt.get("diagwave", 7))
            A("s_cbranch_scc1 L_end")
            if self.opt.get("diagwave", 7) < 4:
                self.stamp(5)
            self.dump_stamps(8, 7)


if __name__ == "__main__":
    out = sys.argv[1] if len(sys.argv) > 1 else "k1.s"
    opts = dict(a.split("=") for a in sys.argv[2:])
    diag = bool(int(opts.pop("diag", "0")))
    if "diagwave" in opts:
        opts["diagwave"] = int(opts["diagwave"])
    open(out, "w").write(Gen(diag, **opts).build())
```

```python
import sys

NAME = "parallel_sum__gqa_block_cached__geglu_ffn__decode"

WS_EPOCH = 0x0
WS_HINT = 0x4000
WS_PRES = 0x8000
WS_Q = 0x10000
WS_G = 0x50000
WS_ML = 0x90000
WS_O = 0xA0000
WS_Y = 0x100000
WS_STAMP = 0x8000000
L_Q = 0x000
L_H = 0x100
L_OB = 0x200
L_FLAG = 0x300
L_ML = 0x340
L_OS = 0x400
L_P = 0xC00
L_W = 0x2000
LDS_BYTES = 98304
SPIN_MAX = 1 << 20

LOG2E = 0x3FB8AA3B
SCALE = 0x3DB504F3
EPS = 0x3727C5AC
INV512 = 0x3B000000
GELU_K1 = 0x3D372713
GELU_C = 0xC0135761


DOC = """
One persistent workgroup per CU (256 in total). Workgroup (h, i) owns keys [512 i, 512 i + 512) of
head h, rows [64 i, 64 i + 64) of wq / w_gate / w_up for the head's columns and its 40 or 48 FFN
columns, and the 64-column tile i of wo rows [128 h, 128 h + 128) and of the matching w_down rows.
Waves: 0 = q projection + cross-workgroup tail, 1 = gate/up projection, 2..5 = keys, 6..9 = values.
Hand-offs go through d_ws as 8-byte {value, tag} granules. The tag is derived from a word of d_ws
that the launch leaves changed, so granules of an earlier launch never validate.
  1. partial q / gate / up sums    -> the eight workgroups of the head
  2. (softmax max, sum)            -> the eight workgroups of the head
  3. partial o                     -> the eight workgroups of the head (through the shared L2 when
                                      all eight report the same XCC id, device scope otherwise)
  4. partial attention / FFN rows  -> 256 consumers, two output columns each
bf16 roundings follow the reference step by step.
"""


class Gen:
    def __init__(self, diag=False, **opt):
        self.L = []
        self.diag = diag
        self.opt = opt

    def A(self, s):
        for line in s.split("\n"):
            line = line.strip()
            if line:
                self.L.append(line)

    def nop(self, n):
        if n > 0:
            self.A(f"s_nop {n-1}")

    def stamp(self, i):
        if self.diag:
            self.A(f"s_memrealtime s[{84+2*i}:{85+2*i}]")

    def dump_stamps(self, first, n):
        if not self.diag:
            return
        A = self.A
        A("s_waitcnt lgkmcnt(0)")
        A("s_mov_b64 exec, 1")
        A(f"s_lshl_b32 s48, s2, 7")
        A(f"s_add_u32 s48, s48, {WS_STAMP + 8*first}")
        A("v_mov_b32 v1, s48")
        for k in range(n):
            A(f"v_mov_b32 v2, s{84+2*k}")
            A(f"v_mov_b32 v3, s{85+2*k}")
            A(f"global_store_dwordx2 v1, v[2:3], s[26:27] offset:{8*k} sc1")
            A("s_nop 1")

    def row_allreduce(self, op, v, steps=("row_ror:8", "row_ror:4", "row_ror:2", "row_ror:1")):
        for st in steps:
            self.nop(2)
            self.A(f"{op}_dpp v{v}, v{v}, v{v} {st} row_mask:0xf bank_mask:0xf")

    def wave_reduce_to_sgpr(self, op, v, s):
        self.row_allreduce(op, v)
        self.nop(2)
        self.A(f"{op}_dpp v{v}, v{v}, v{v} row_bcast:15 row_mask:0xa bank_mask:0xf")
        self.nop(2)
        self.A(f"{op}_dpp v{v}, v{v}, v{v} row_bcast:31 row_mask:0xc bank_mask:0xf")
        self.nop(1)
        self.A(f"v_readlane_b32 s{s}, v{v}, 63")

    def oct_allreduce(self, op, v):
        self.row_allreduce(op, v, ("quad_perm:[1,0,3,2]", "quad_perm:[2,3,0,1]", "row_half_mirror"))

    def lds_wait(self, name, vaddr, off, target, sleep, tmp=7):
        self.A(f"""
        s_mov_b32 s32, 0
        L_wait_{name}:
        ds_read_b32 v{tmp}, v{vaddr} offset:{off}
        s_add_u32 s32, s32, 1
        s_waitcnt lgkmcnt(0)
        v_readfirstlane_b32 s48, v{tmp}
        s_cmp_ge_u32 s48, {target}
        s_cbranch_scc1 L_go_{name}
        {f"s_sleep {sleep}" if sleep else ""}
        s_cmp_lt_u32 s32, {SPIN_MAX}
        s_cbranch_scc1 L_wait_{name}
        L_go_{name}:
        """)

    def round_bf16(self, dst, src):
        self.A(f"v_cvt_pk_bf16_f32 v{dst}, v{src}, v{src}")
        self.A(f"v_and_b32 v{dst}, 0xffff0000, v{dst}")

    def build(self):
        A = self.A
        o = self.opt
        KVPOL = o.get("kvpol", "nt")
        WPOL = o.get("wpol", "nt")
        A(f"; @launch grid=(256,1,1) block=(640,1,1) lds={self.opt.get('lds', LDS_BYTES)}")
        for c in DOC.strip().split("\n"):
            A("; " + c if c else ";")
        A('.amdgcn_target "amdgcn-amd-amdhsa--gfx950"')
        A(".text")
        A(f".globl {NAME}_kernel")
        A(".p2align 8")
        A(f".type {NAME}_kernel,@function")
        A(f"{NAME}_kernel:")
        self.stamp(0)
        A("""
        s_cmp_ge_u32 s2, 0x100
        s_cbranch_scc1 L_end
        s_load_dwordx16 s[4:19], s[0:1], 0
        s_load_dwordx8 s[20:27], s[0:1], 64
        """)
        if int(o.get("cpf", 1)):
            self.A("; pull this kernel's own code into L2 while the argument loads are in flight")
            A(f"""
            s_getpc_b64 s[48:49]
            v_lshlrev_b32 v4, 4, v0
            s_and_b32 s48, s48, 0xffffff00
            v_min_u32 v4, (L_last-{NAME}_kernel-16)&0xfffffff0, v4
            v_mov_b32 v5, 0
            v_lshl_add_u64 v[4:5], v[4:5], 0, s[48:49]
            global_load_dwordx4 v[60:63], v[4:5], off {o.get("cpfpol", "")}
            """)
        A("""
        v_lshrrev_b32 v1, 6, v0
        v_and_b32 v0, 63, v0
        """)
        if o.get("map", "xcd") == "xcd":
            A("""
            s_and_b32 s28, s2, 7
            s_lshl_b32 s28, s28, 2
            v_readfirstlane_b32 s3, v1
            s_bfe_u32 s29, s2, 0x20003
            s_add_u32 s28, s28, s29
            s_lshr_b32 s29, s2, 5
            s_lshl_b32 s30, s28, 3
            s_add_u32 s30, s30, s29
            s_and_b32 s48, s2, 7
            s_mul_i32 s52, s48, 43
            s_add_u32 s53, s52, 43
            s_lshr_b32 s52, s52, 3
            s_lshr_b32 s53, s53, 3
            s_sub_u32 s53, s53, s52
            s_and_b32 s48, s28, 3
            s_mul_i32 s48, s48, s53
            s_lshl_b32 s52, s52, 2
            s_add_u32 s52, s52, s48
            """)
        else:
            A("""
            s_lshr_b32 s28, s2, 3
            s_and_b32 s29, s2, 7
            v_readfirstlane_b32 s3, v1
            s_mov_b32 s30, s2
            s_mul_i32 s52, s28, 43
            s_add_u32 s53, s52, 43
            s_lshr_b32 s52, s52, 3
            s_lshr_b32 s53, s53, 3
            s_sub_u32 s53, s53, s52
            """)
        A("""
        v_and_b32 v2, 15, v0
        v_lshrrev_b32 v3, 4, v0
        s_cmp_lt_u32 s3, 2
        s_cbranch_scc1 L_ctrl
        """)
        self.kv(KVPOL, WPOL)
        A("s_endpgm")
        A("L_ctrl:")
        self.ctrl(WPOL)
        A("L_end:")
        A("s_endpgm")
        A("L_last:")
        A('.section .rodata,"a"')
        A(".p2align 6")
        A(f".amdhsa_kernel {NAME}_kernel")
        A("  .amdhsa_next_free_vgpr 160")
        A("  .amdhsa_next_free_sgpr 102")
        A("  .amdhsa_accum_offset 160")
        A("  .amdhsa_group_segment_fixed_size 0")
        A("  .amdhsa_kernarg_size 96")
        A("  .amdhsa_user_sgpr_count 2")
        A("  .amdhsa_user_sgpr_kernarg_segment_ptr 1")
        A("  .amdhsa_system_sgpr_workgroup_id_x 1")
        A(".end_amdhsa_kernel")
        return "\n".join(self.L) + "\n"

    def ctrl(self, WPOL):
        A = self.A
        A(f"""
        s_setprio 3
        s_movk_i32 s48, 2752
        s_mov_b32 s49, 0
        s_sub_u32 s50, s53, 1
        s_cmp_eq_u32 s3, 0
        s_cselect_b32 s48, 0x2000, s48
        s_cselect_b32 s50, 7, s50
        s_lshl_b32 s51, s29, 6
        v_lshl_add_u32 v4, v3, 4, s51
        v_and_b32 v5, 7, v2
        v_min_u32 v5, s50, v5
        v_mul_lo_u32 v6, v4, s48
        v_lshl_add_u32 v6, v5, 4, v6
        v_lshlrev_b32 v4, 1, v4
        v_lshlrev_b32 v5, 4, v0
        v_mov_b32 v7, 0
        v_mov_b32 v20, {L_FLAG}
        v_cmp_gt_u32 vcc, 8, v2
        s_lshl_b32 s54, s28, 8
        s_lshl_b32 s55, s52, 4
        ds_write2_b32 v20, v7, v7 offset0:2 offset1:3
        ds_write2_b32 v20, v7, v7 offset0:0 offset1:4
        ds_write2_b32 v20, v7, v7 offset0:5 offset1:6
        s_waitcnt lgkmcnt(0)
        {"s_barrier" if self.opt.get("binit", "late") == "early" else ""}
        {"s_memrealtime s[88:89]" if self.diag and self.opt.get("st2") == "s" else ""}
        global_load_dword v21, v7, s[26:27] sc1
        global_load_dwordx4 v[16:19], v5, s[4:5]
        global_load_dwordx4 v[8:11], v4, s[4:5]
        global_load_dwordx4 v[12:15], v4, s[4:5] offset:16
        s_cmp_eq_u32 s3, 0
        s_cbranch_scc0 L_c1_ptr
        s_add_u32 s56, s10, s54
        s_addc_u32 s57, s11, 0
        s_add_u32 s58, s56, 128
        s_addc_u32 s59, s57, 0
        s_branch L_c_ptr_done
        L_c1_ptr:
        s_add_u32 s56, s16, s55
        s_addc_u32 s57, s17, 0
        s_add_u32 s58, s18, s55
        s_addc_u32 s59, s19, 0
        L_c_ptr_done:
        v_mov_b32 v22, s58
        v_mov_b32 v23, s59
        v_mov_b32 v24, s56
        v_mov_b32 v25, s57
        v_cndmask_b32 v22, v22, v24, vcc
        v_cndmask_b32 v23, v23, v25, vcc
        v_lshl_add_u64 v[22:23], v[6:7], 0, v[22:23]
        """)
        if self.opt.get("x_noq"):
            A("s_mov_b32 s48, 0")
        if self.opt.get("x_nog"):
            A("s_cmp_eq_u32 s3, 0")
            A("s_cselect_b32 s48, s48, 0")
        for j in range(16):
            A(f"global_load_dwordx4 v[{64+4*j}:{67+4*j}], v[22:23], off {WPOL}")
            if j < 15:
                A("v_lshl_add_u64 v[22:23], v[22:23], 0, s[48:49]")
        if self.opt.get("st2") == "s":
            self.stamp(3)
        if self.opt.get("binit", "late") == "late":
            A("s_barrier")
        NT = 0
        if int(self.opt.get("touch", 0)):
            self.A("; one-lane loads that bring the address translations of later-used buffers into this CU")
            NT = 4
            A("""
            s_lshl_b32 s54, s30, 17
            v_mov_b32 v4, s54
            s_lshl_b32 s54, s28, 17
            v_mov_b32 v5, s54
            s_lshl_b32 s54, s52, 13
            v_mov_b32 v6, s54
            s_mov_b64 exec, 1
            global_load_dword v56, v4, s[8:9] nt
            global_load_dword v57, v5, s[12:13] nt
            global_load_dword v58, v6, s[20:21] nt
            global_load_dword v59, v7, s[22:23] nt
            s_mov_b64 exec, -1
            """)
        self.stamp(1)
        A("""
        """)
        if self.opt.get("ocol", "x") == "x":
            A("""
            s_lshr_b32 s37, s28, 2
            s_and_b32 s38, s30, 31
            """)
        else:
            A("""
            s_mov_b32 s37, s29
            s_mov_b32 s38, s28
            """)
        A("""
        s_lshl_b32 s54, s37, 7
        s_lshl_b32 s55, s38, 2
        s_add_u32 s39, s54, s55
        s_load_dword s33, s[4:5], s39
        """)
        A("""
        v_and_b32 v4, 2, v2
        v_cmp_eq_u32 vcc, 0, v4
        v_mov_b32 v5, 0x01000c0c
        v_mov_b32 v6, 0x0c0c0100
        v_cndmask_b32 v5, v5, v6, vcc
        v_mov_b32 v6, 0x03020c0c
        v_mov_b32 v7, 0x0c0c0302
        v_cndmask_b32 v6, v6, v7, vcc
        v_and_b32 v4, 13, v2
        v_mov_b32 v7, 0x0c0c0c0c
        """)
        for d in range(4):
            A(f"v_cmp_eq_u32 vcc, {4*d}, v4")
            self.nop(2)
            A(f"v_cndmask_b32 v{24+2*d}, v7, v5, vcc")
            A(f"v_cndmask_b32 v{25+2*d}, v7, v6, vcc")
        A(f"s_waitcnt vmcnt({18+NT})")
        A("v_or_b32 v21, 15, v21")
        A("v_add_u32 v21, 1, v21")
        for k in range(4):
            A(f"v_lshlrev_b32 v{44+2*k}, 16, v{16+k}")
            A(f"v_and_b32 v{45+2*k}, 0xffff0000, v{16+k}")
        A("v_readfirstlane_b32 s31, v21")
        QL = int(self.opt.get("qlocal", 0))
        A(f"""
        s_getreg_b32 s44, hwreg(HW_REG_XCC_ID, 0, 4)
        s_lshl_b32 s54, s28, 7
        s_add_u32 s54, s54, {WS_PRES}
        s_add_u32 s40, s26, s54
        s_addc_u32 s41, s27, 0
        s_or_b32 s44, s44, s31
        s_mov_b32 s45, s44
        s_lshl_b32 s55, s29, 2
        v_mov_b32 v52, s55
        v_mov_b32 v53, s44
        """)
        if QL:
            A("""
            s_mov_b64 exec, 1
            global_store_dword v52, v53, s[40:41] sc1
            s_mov_b64 exec, -1
            """)
            NT += 1
        A("""
        v_add_f32 v4, v44, v45
        v_add_f32 v5, v46, v47
        v_add_f32 v6, v48, v49
        v_add_f32 v7, v50, v51
        v_add_f32 v4, v4, v5
        v_add_f32 v6, v6, v7
        v_add_f32 v4, v4, v6
        """)
        self.wave_reduce_to_sgpr("v_add_f32", 4, 54)
        A(f"v_mov_b32 v5, {INV512}")
        self.nop(1)
        A("v_mul_f32 v20, s54, v5")
        for k in range(8):
            A(f"v_sub_f32 v{44+k}, v{44+k}, v20")
        A("v_mul_f32 v4, v44, v44")
        for k in range(1, 8):
            A(f"v_fmac_f32 v4, v{44+k}, v{44+k}")
        self.wave_reduce_to_sgpr("v_add_f32", 4, 54)
        self.round_bf16(20, 20)
        A("v_mul_f32 v4, s54, v5")
        self.round_bf16(4, 4)
        A(f"v_add_f32 v4, {EPS}, v4")
        self.round_bf16(4, 4)
        A("v_sqrt_f32 v4, v4")
        self.nop(1)
        self.round_bf16(4, 4)
        A("v_rcp_f32 v6, v4")
        A("v_mov_b32 v21, v20")
        A("v_mov_b32 v5, v4")
        A("v_mov_b32 v7, v6")
        A(f"s_waitcnt vmcnt({16+NT})")
        for k in range(8):
            x = 8 + k
            A(f"""
            v_lshlrev_b32 v44, 16, v{x}
            v_and_b32 v45, 0xffff0000, v{x}
            v_pk_add_f32 v[44:45], v[44:45], v[20:21] neg_lo:[0,1] neg_hi:[0,1]
            v_cvt_pk_bf16_f32 v46, v44, v45
            v_lshlrev_b32 v44, 16, v46
            v_and_b32 v45, 0xffff0000, v46
            v_pk_mul_f32 v[46:47], v[44:45], v[6:7]
            v_pk_fma_f32 v[44:45], v[46:47], v[4:5], v[44:45] neg_lo:[1,0,0] neg_hi:[1,0,0]
            v_pk_fma_f32 v[46:47], v[44:45], v[6:7], v[46:47]
            v_cvt_pk_bf16_f32 v{x}, v46, v47
            """)

        if QL:
            A("s_load_dwordx8 s[56:63], s[40:41], 0 glc")

        def perms(j):
            a = 32 + 4 * (j & 1)
            for d in range(4):
                A(f"v_perm_b32 v{a+d}, v{8+(j>>1)}, v{8+(j>>1)}, v{24+2*d+(j&1)}")
        perms(0)
        for j in range(16):
            if j < 15:
                perms(j + 1)
            else:
                self.nop(2)
            A(f"s_waitcnt vmcnt({15-j+NT})")
            a = 32 + 4 * (j & 1)
            c = "0" if j == 0 else "v[40:43]"
            A(f"v_mfma_f32_16x16x32_bf16 v[40:43], v[{a}:{a+3}], v[{64+4*j}:{67+4*j}], {c}")
        A(f"""
        s_mul_i32 s54, s3, {WS_G - WS_Q}
        s_add_u32 s54, s54, {WS_Q}
        s_lshl_b32 s55, s30, 10
        s_add_u32 s55, s55, s54
        v_lshl_add_u32 v4, v0, 4, s55
        s_lshl_b32 s55, s28, 13
        s_add_u32 s55, s55, s54
        s_add_u32 s55, s55, 4096
        v_lshl_add_u32 v5, v0, 4, s55
        s_lshl_b32 s54, s28, 8
        s_lshl_b32 s55, s3, 7
        s_add_u32 s54, s54, s55
        s_add_u32 s54, s54, {WS_HINT}
        v_mov_b32 v41, s31
        v_mov_b32 v43, s31
        s_add_u32 s46, s26, s54
        s_addc_u32 s47, s27, 0
        """)
        if QL:
            A("""
            s_waitcnt lgkmcnt(0)
            s_xor_b64 s[56:57], s[56:57], s[44:45]
            s_xor_b64 s[58:59], s[58:59], s[44:45]
            s_xor_b64 s[60:61], s[60:61], s[44:45]
            s_xor_b64 s[62:63], s[62:63], s[44:45]
            s_or_b64 s[56:57], s[56:57], s[58:59]
            s_or_b64 s[60:61], s[60:61], s[62:63]
            s_or_b64 s[56:57], s[56:57], s[60:61]
            s_cbranch_scc1 L_q_remote
            global_store_dwordx4 v4, v[40:43], s[26:27]
            s_branch L_q_stored
            L_q_remote:
            """)
        A("""
        global_store_dwordx4 v4, v[40:43], s[26:27] sc1
        L_q_stored:
        s_mov_b64 exec, 1
        global_store_dword v52, v53, s[46:47] sc1
        s_mov_b64 exec, -1
        s_mov_b32 s32, 0
        s_mov_b32 s43, 1
        s_mov_b32 s35, 0
        """)
        if self.opt.get("st2") != "s":
            self.stamp(2)
        if self.opt.get("x_nopoll"):
            A("s_branch L_qdone")
        if self.opt.get("x_nopoll1"):
            A("s_cmp_eq_u32 s3, 1")
            A("s_cbranch_scc1 L_qdone")
        A(f"""
        L_qhint:
        s_load_dwordx8 s[56:63], s[46:47], 0 glc
        s_add_u32 s32, s32, 1
        s_cmp_ge_u32 s32, {SPIN_MAX}
        s_cbranch_scc1 L_qpoll
        s_waitcnt lgkmcnt(0)
        s_xor_b64 s[56:57], s[56:57], s[44:45]
        s_xor_b64 s[58:59], s[58:59], s[44:45]
        s_xor_b64 s[60:61], s[60:61], s[44:45]
        s_xor_b64 s[62:63], s[62:63], s[44:45]
        s_or_b64 s[56:57], s[56:57], s[58:59]
        s_or_b64 s[60:61], s[60:61], s[62:63]
        s_or_b64 s[56:57], s[56:57], s[60:61]
        s_or_b32 s43, s56, s57
        s_cmp_lt_u32 s43, 16
        s_cbranch_scc1 L_qpoll
        s_sleep {self.opt.get("hintsleep", 4)}
        s_branch L_qhint
        """)
        A("L_qpoll:")
        if self.opt.get("x_hintonly"):
            A("s_branch L_qdone")
        if self.diag:
            A("s_add_u32 s35, s35, 1")
        for k in range(8):
            A(f"global_load_dwordx4 v[{64+4*k}:{67+4*k}], v5, s[26:27] offset:{1024*k-4096} {self.opt.get('x_qpol', 'sc1')}")
        A("s_add_u32 s32, s32, 1")
        for k in range(8):
            r = 64 + 4 * k
            A(f"s_waitcnt vmcnt({7-k})")
            if k == 0:
                A(f"v_xor_b32 v6, s31, v{r+1}")
                A(f"v_mov_b32 v44, v{r}")
                A(f"v_mov_b32 v45, v{r+2}")
            else:
                A(f"v_bitop3_b32 v6, v{r+1}, s31, v6 bitop3:0xbe")
                A(f"v_add_f32 v44, v44, v{r}")
                A(f"v_add_f32 v45, v45, v{r+2}")
            A(f"v_bitop3_b32 v6, v{r+3}, s31, v6 bitop3:0xbe")
        A(f"""
        v_cmp_ne_u32 vcc, 0, v6
        s_cbranch_vccz L_qdone
        s_cmp_lt_u32 s32, {SPIN_MAX}
        s_cbranch_scc1 L_qhint
        L_qdone:
        v_cvt_pk_bf16_f32 v44, v44, v45
        v_lshlrev_b32 v22, 4, v2
        v_lshl_add_u32 v22, v3, 2, v22
        s_cmp_eq_u32 s3, 0
        s_cbranch_scc1 L_c0
        """)
        A(f"""
        v_mov_b32_dpp v45, v44 row_ror:8 row_mask:0xf bank_mask:0xf
        v_lshlrev_b32 v46, 16, v44
        v_and_b32 v47, 0xffff0000, v44
        v_mov_b32 v50, {GELU_K1}
        v_mul_f32 v48, v46, v46
        v_mul_f32 v49, v47, v47
        v_mul_f32 v48, v48, v46
        v_mul_f32 v49, v49, v47
        v_fma_f32 v48, v48, v50, v46
        v_fma_f32 v49, v49, v50, v47
        v_mul_f32 v48, {GELU_C}, v48
        v_mul_f32 v49, {GELU_C}, v49
        v_exp_f32 v48, v48
        v_exp_f32 v49, v49
        s_nop 0
        v_add_f32 v48, 1.0, v48
        v_add_f32 v49, 1.0, v49
        v_rcp_f32 v48, v48
        v_rcp_f32 v49, v49
        s_nop 0
        v_mul_f32 v46, v46, v48
        v_mul_f32 v47, v47, v49
        v_cvt_pk_bf16_f32 v44, v46, v47
        v_lshlrev_b32 v46, 16, v44
        v_and_b32 v47, 0xffff0000, v44
        v_lshlrev_b32 v48, 16, v45
        v_and_b32 v49, 0xffff0000, v45
        v_cmp_gt_u32 vcc, s53, v2
        v_mul_f32 v46, v46, v48
        v_mul_f32 v47, v47, v49
        v_cvt_pk_bf16_f32 v44, v46, v47
        v_cndmask_b32 v44, 0, v44, vcc
        ds_write_b32 v22, v44 offset:{L_H}
        s_waitcnt lgkmcnt(0)
        s_endpgm
        """)
        YG = int(self.opt.get("yg", 2))
        A(f"""
        L_c0:
        v_mov_b32 v21, {L_FLAG}
        v_mov_b32 v6, 1
        v_mov_b32 v7, s31
        ds_write_b32 v22, v44 offset:{L_Q}
        ds_write_b64 v21, v[6:7]
        """)
        if self.opt.get("st2") != "s":
            self.stamp(3)
        A(f"""
        v_and_b32 v4, 3, v0
        v_lshlrev_b32 v4, 3, v4
        s_lshl_b32 s54, s28, 7
        s_add_u32 s54, s54, {WS_ML}
        s_add_u32 s46, s26, s54
        s_addc_u32 s47, s27, 0
        s_lshl_b32 s54, s29, 4
        v_mov_b32 v24, s54
        s_lshl_b32 s54, s30, 10
        s_add_u32 s54, s54, {WS_Q}
        v_lshl_add_u32 v26, v0, 4, s54
        s_lshl_b32 s54, s28, 13
        s_add_u32 s54, s54, {WS_Q + 4096}
        v_lshl_add_u32 v27, v0, 4, s54
        s_lshl_b32 s54, s37, 16
        s_lshl_b32 s55, s38, 5
        s_add_u32 s54, s54, s55
        s_lshr_b32 s55, s37, 2
        s_xor_b32 s55, s55, {YG & 1}
        s_lshl_b32 s55, s55, 13
        {"s_add_u32 s54, s54, s55" if YG < 2 else ""}
        s_add_u32 s54, s54, {WS_Y}
        v_bfe_u32 v5, v0, 1, 3
        v_lshlrev_b32 v5, 10, v5
        v_lshl_add_u32 v5, v3, {14 if YG < 2 else 13}, v5
        v_and_b32 v6, 1, v0
        v_lshl_add_u32 v5, v6, 4, v5
        v_add_u32 v28, s54, v5
        v_lshl_add_u32 v29, v0, 1, s39
        v_lshlrev_b32 v30, 3, v0
        v_mov_b32 v31, {LOG2E}
        v_cmp_eq_u32 vcc, 0, v6
        s_lshl_b32 s54, s33, 16
        s_and_b32 s55, s33, 0xffff0000
        v_mov_b32 v20, s55
        v_mov_b32 v23, s54
        v_cndmask_b32 v20, v20, v23, vcc
        v_mov_b32 v13, s31
        v_mov_b32 v15, s31
        v_mov_b32 v32, s31
        v_mov_b32 v33, s31
        s_add_u32 s42, s31, 1
        v_mov_b32 v41, s42
        v_mov_b32 v43, s42
        {"s_mov_b32 s43, 1" if self.opt.get("nolocal") else ""}
        """)
        self.lds_wait("c", 21, 12, 4, 2)
        self.stamp(4)
        quad = ("quad_perm:[1,0,3,2]", "quad_perm:[2,3,0,1]")
        A(f"""
        ds_read_b64 v[8:9], v4 offset:{L_ML}
        s_waitcnt lgkmcnt(0)
        v_mov_b32 v12, v8
        """)
        self.row_allreduce("v_max_f32", 12, quad)
        A("""
        v_sub_f32 v8, v8, v12
        v_mul_f32 v8, v8, v31
        v_exp_f32 v8, v8
        s_nop 0
        v_mul_f32 v14, v8, v9
        """)
        self.row_allreduce("v_add_f32", 14, quad)
        A(f"""
        s_mov_b64 exec, 1
        global_store_dwordx4 v24, v[12:15], s[46:47] sc1
        s_mov_b64 exec, -1
        s_mov_b32 s32, 0
        {"s_branch L_mldone" if self.opt.get("x_noml") else ""}
        L_mlpoll:
        s_load_dwordx16 s[48:63], s[46:47], 0 glc
        s_load_dwordx16 s[64:79], s[46:47], 64 glc
        s_add_u32 s32, s32, 1
        s_waitcnt lgkmcnt(0)
        s_xor_b32 s80, s49, s31
        """)
        for k in range(1, 16):
            A(f"s_xor_b32 s81, s{49+2*k}, s31")
            A("s_or_b32 s80, s80, s81")
        A(f"""
        s_cmp_eq_u32 s80, 0
        s_cbranch_scc1 L_mldone
        s_sleep {self.opt.get("mlsleep", 4)}
        s_cmp_lt_u32 s32, {SPIN_MAX}
        s_cbranch_scc1 L_mlpoll
        L_mldone:
        v_mov_b32 v8, s48
        """)
        for k in range(1, 8):
            A(f"v_max_f32 v8, s{48+4*k}, v8")
        for k in range(8):
            A(f"v_sub_f32 v{64+k}, s{48+4*k}, v8")
        for k in range(8):
            A(f"v_mul_f32 v{64+k}, v{64+k}, v31")
        for k in range(8):
            A(f"v_exp_f32 v{64+k}, v{64+k}")
        A("v_mul_f32 v9, s50, v64")
        for k in range(1, 8):
            A(f"v_fmac_f32 v9, s{50+4*k}, v{64+k}")
        A("""
        v_rcp_f32 v9, v9
        s_mov_b32 s32, 0
        v_mov_b32 v10, 1
        ds_write_b64 v21, v[8:9] offset:32
        ds_write_b32 v21, v10 offset:24
        """)
        if self.opt.get("st2") == "y":
            self.stamp(1)
        A("""
        s_waitcnt vmcnt(0) lgkmcnt(0)
        s_barrier
        """)
        self.stamp(5)
        if self.opt.get("x_notail"):
            self.stamp(6)
            A("s_barrier")
            A("s_branch L_c0_end")
        for k in range(2):
            A(f"ds_read2st64_b64 v[{64+4*k}:{67+4*k}], v30 offset0:{L_OS//512+2*k} offset1:{L_OS//512+2*k+1}")
        A("""
        s_cmp_eq_u32 s43, 0
        s_waitcnt lgkmcnt(1)
        v_pk_add_f32 v[64:65], v[64:65], v[66:67]
        s_waitcnt lgkmcnt(0)
        v_pk_add_f32 v[68:69], v[68:69], v[70:71]
        v_add_f32 v40, v64, v68
        v_add_f32 v42, v65, v69
        s_cbranch_scc0 L_o_remote
        global_store_dwordx4 v26, v[40:43], s[26:27]
        L_opoll:
        """)
        if self.opt.get("st2") == "o":
            self.stamp(1)
        for k in range(8):
            A(f"global_load_dwordx4 v[{64+4*k}:{67+4*k}], v27, s[26:27] offset:{1024*k-4096} sc1")

        def chk(k, wait=True):
            r = 64 + 4 * k
            if wait:
                A(f"s_waitcnt vmcnt({7-k})")
                if k == 0 and self.opt.get("st2") == "o":
                    self.stamp(2)
            A(f"v_xor_b32 v{48+k}, s42, v{r+1}")
            A(f"v_bitop3_b32 v{48+k}, v{r+3}, s42, v{48+k} bitop3:0xbe")

        def anybad():
            A("""
            v_or3_b32 v6, v48, v49, v50
            v_or3_b32 v7, v51, v52, v53
            v_or3_b32 v6, v6, v54, v55
            v_or_b32 v6, v6, v7
            v_cmp_ne_u32 vcc, 0, v6
            """)

        def masks():
            for k in range(8):
                A(f"v_cmp_ne_u32 s[{64+2*k}:{65+2*k}], 0, v{48+k}")

        def reload():
            for k in range(8):
                A(f"s_mov_b64 exec, s[{64+2*k}:{65+2*k}]")
                A(f"global_load_dwordx4 v[{64+4*k}:{67+4*k}], v27, s[26:27] offset:{1024*k-4096} sc1")
            A("s_mov_b64 exec, -1")
        for k in range(8):
            chk(k)
        anybad()
        if self.opt.get("st2") == "o":
            self.stamp(3)
        A("s_cbranch_vccz L_osum")
        masks()
        reload()
        A(f"""
        L_oround:
        s_add_u32 s32, s32, 1
        s_cmp_lt_u32 s32, {SPIN_MAX}
        s_cbranch_scc0 L_osum
        """)
        masks()
        reload()
        A("s_waitcnt vmcnt(8)")
        for k in range(8):
            chk(k, False)
        anybad()
        A("""
        s_cbranch_vccnz L_oround
        L_osum:
        s_waitcnt vmcnt(0)
        v_add_f32 v44, v64, v68
        v_add_f32 v45, v66, v70
        v_add_f32 v46, v72, v76
        v_add_f32 v47, v74, v78
        v_add_f32 v56, v80, v84
        v_add_f32 v57, v82, v86
        v_add_f32 v58, v88, v92
        v_add_f32 v59, v90, v94
        v_pk_add_f32 v[44:45], v[44:45], v[46:47]
        v_pk_add_f32 v[56:57], v[56:57], v[58:59]
        v_pk_add_f32 v[44:45], v[44:45], v[56:57]
        """)
        A(f"""
        v_cvt_pk_bf16_f32 v44, v44, v45
        L_odone:
        ds_write_b32 v22, v44 offset:{L_OB}
        s_mov_b32 s34, s32
        s_mov_b32 s32, 0
        """)
        self.stamp(6)
        A(f"""
        s_waitcnt lgkmcnt(0)
        s_barrier
        s_mov_b64 vcc, -1
        {"global_store_dwordx4 v26, v[40:43], s[26:27] sc1" if self.opt.get("oclean") == "1" else ""}
        global_load_dwordx4 v[8:11], v28, s[26:27] sc1
        {"global_store_dwordx4 v26, v[40:43], s[26:27] sc1" if self.opt.get("oclean") == "2" else ""}
        s_branch L_yload
        L_ypoll:
        s_bcnt1_i32_b64 s48, vcc
        s_cmp_gt_u32 s48, {self.opt.get("yth", 16)}
        s_cbranch_scc1 L_ysleep
        L_yload:
        s_add_u32 s32, s32, 1
        s_cmp_ge_u32 s32, {SPIN_MAX}
        s_cbranch_scc1 L_ydone
        s_mov_b64 exec, vcc
        global_load_dwordx4 v[8:11], v28, s[26:27] sc1
        s_mov_b64 exec, -1
        s_waitcnt vmcnt(1)
        v_xor_b32 v6, s31, v9
        v_bitop3_b32 v6, v11, s31, v6 bitop3:0xbe
        v_cmp_ne_u32 vcc, 0, v6
        s_cbranch_vccnz L_ypoll
        L_ydone:
        {"s_memrealtime s[88:89]" if self.diag and self.opt.get("st2") == "y" else ""}
        s_waitcnt vmcnt(0)
        v_permlane32_swap_b32 v8, v10
        v_add_f32 v16, v8, v10
        v_add_f32 v18, v8, v10
        s_nop 1
        v_permlane16_swap_b32 v16, v18
        v_add_f32 v16, v16, v18
        """)
        self.row_allreduce("v_add_f32", 16, ("quad_perm:[2,3,0,1]", "row_ror:4", "row_ror:8"))
        self.round_bf16(16, 16)
        A("""
        v_add_f32 v12, v20, v16
        v_mov_b32 v18, v16
        """)
        self.round_bf16(12, 12)
        A("""
        v_permlane32_swap_b32 v16, v18
        v_add_f32 v12, v12, v18
        v_cvt_pk_bf16_f32 v12, v12, v12
        s_mov_b64 exec, 3
        global_store_short v29, v12, s[22:23] %s
        s_cmp_lg_u32 s30, 0
        s_cbranch_scc1 L_c0_end
        s_mov_b64 exec, 0xffff
        global_store_dwordx2 v30, v[32:33], s[26:27]
        L_c0_end:
        """ % self.opt.get("outpol", ""))
        self.stamp(7)
        self.dump_stamps(0, 8)
        if self.diag:
            A("""
            s_lshl_b32 s34, s34, 10
            s_lshl_b32 s32, s32, 20
            s_or_b32 s35, s35, s34
            s_or_b32 s35, s35, s32
            v_mov_b32 v2, s35
            v_mov_b32 v3, 0
            global_store_dwordx2 v1, v[2:3], s[26:27] offset:120
            """)
        if self.opt.get("dbgstamp"):
            A(f"""
            s_waitcnt vmcnt(0)
            v_mov_b32 v1, 0
            v_mov_b32 v2, 1
            global_atomic_add v3, v1, v2, s[24:25] offset:252 sc0 sc1
            s_waitcnt vmcnt(0)
            v_readfirstlane_b32 s48, v3
            s_cmp_lg_u32 s48, 255
            s_cbranch_scc1 L_end
            s_mov_b64 exec, -1
            v_mov_b32 v1, 0
            s_mov_b32 s48, {WS_STAMP}
            v_lshl_add_u32 v4, v0, 7, s48
            """)
            for k in range(16):
                src = 0 if k == 15 else k
                for q in range(4):
                    A(f"v_add_u32 v5, {q*8192 + 8*src}, v4")
                    A(f"global_load_dword v{8+q}, v5, s[26:27] sc1")
                A("s_waitcnt vmcnt(0)")
                op = "v_min_u32" if k == 15 else "v_max_u32"
                A(f"{op} v8, v8, v9")
                A(f"{op} v10, v10, v11")
                A(f"{op} v8, v8, v10")
                self.wave_reduce_to_sgpr(op, 8, 49)
                self.nop(2)
                A("v_mov_b32 v6, s49")
                A(f"global_store_dword v1, v6, s[24:25] offset:{4*k}")
        A(f"""
        s_endpgm
        L_ysleep:
        s_sleep {self.opt.get("ysleep", 4)}
        s_branch L_yload
        L_o_remote:
        global_store_dwordx4 v26, v[40:43], s[26:27] sc1
        s_branch L_opoll
        """)

    def dma(self, WPOL):
        A = self.A
        A(f"""
        s_mov_b32 s56, s12
        s_mov_b32 s57, s13
        s_mov_b32 s58, 0x400000
        s_mov_b32 s59, 0x20000
        s_mov_b32 s44, s20
        s_mov_b32 s45, s21
        s_mov_b32 s46, 1409024
        s_mov_b32 s47, 0x20000
        v_lshrrev_b32 v24, 3, v0
        v_and_b32 v25, 1, v3
        v_lshlrev_b32 v25, 1, v25
        v_and_b32 v26, 7, v0
        v_xor_b32 v25, v25, v26
        v_lshlrev_b32 v25, 4, v25
        v_lshl_add_u32 v25, v24, 10, v25
        v_xor_b32 v26, 64, v25
        s_lshl_b32 s49, s29, 7
        s_lshl_b32 s50, s28, 17
        s_add_u32 s50, s50, s49
        s_lshl_b32 s48, s34, 15
        s_add_u32 s50, s50, s48
        s_lshl_b32 s51, s34, 1
        s_add_u32 s48, s52, s51
        s_lshl_b32 s48, s48, 13
        s_add_u32 s48, s48, s49
        s_add_u32 s49, s48, 0x2000
        s_cmp_lt_u32 s51, s53
        s_cselect_b32 s54, 0, 0x40000000
        v_or_b32 v27, s54, v25
        s_add_u32 s51, s51, 1
        s_cmp_lt_u32 s51, s53
        s_cselect_b32 s54, 0, 0x40000000
        v_or_b32 v28, s54, v26
        s_lshl_b32 s51, s34, 11
        s_add_u32 m0, s51, {L_W + 16384}
        s_lshl_b32 s54, s34, 12
        buffer_load_dwordx4 v27, s[44:47], s48 offen {WPOL} lds
        s_add_u32 m0, s51, {L_W + 16384 + 1024}
        s_nop 0
        buffer_load_dwordx4 v28, s[44:47], s49 offen {WPOL} lds
        """)
        for jj in range(4):
            A(f"s_add_u32 m0, s54, {L_W + 1024*jj}")
            A(f"s_add_u32 s49, s50, {jj*0x2000}")
            A(f"buffer_load_dwordx4 v{25 + (jj & 1)}, s[56:59], s49 offen {WPOL} lds")

    def kv(self, KVPOL, WPOL):
        A = self.A
        pre = int(self.opt.get("pre", 4))
        YG = int(self.opt.get("yg", 2))
        dw = self.opt.get("diagwave", 7)
        pb = int(self.opt.get("pb", 2))
        A("""
        s_sub_u32 s34, s3, 2
        s_and_b32 s34, s34, 3
        s_lshl_b32 s48, s30, 17
        s_lshl_b32 s49, s34, %d
        s_add_u32 s48, s48, s49
        v_lshl_add_u32 v1, v0, 4, s48
        s_mov_b32 s38, 0x2000000
        s_mov_b32 s39, 0x20000
        s_cmp_ge_u32 s3, 6
        s_cbranch_scc1 L_val
        s_setprio 2
        s_waitcnt lgkmcnt(0)
        s_mov_b32 s36, s6
        s_mov_b32 s37, s7
        """ % (10 + pb))

        wk = int(self.opt.get("wk", 6))
        wv = int(self.opt.get("wv", 8))
        wv2 = int(self.opt.get("wv2", wv))
        vsw = int(self.opt.get("vsw", 32))

        def load(j, win=0):
            if win and j >= win:
                A(f"s_waitcnt vmcnt({win - 1})")
            off = (j & ((1 << pb) - 1)) * 1024 + (j >> pb) * (4096 << pb)
            if (off & 0xFFF) == 0:
                A(f"s_mov_b32 s48, {off}")
            A(f"buffer_load_dwordx4 v[{32+4*j}:{35+4*j}], v1, s[36:39], s48 offen offset:{off & 0xFFF} {KVPOL}")
        for j in range(32):
            if j == pre:
                A("s_barrier")
            if wk and j == int(self.opt.get("kdone", 31)):
                A(f"v_mov_b32 v20, {L_FLAG}")
                A("v_mov_b32 v4, 1")
                A("s_mov_b64 exec, 1")
                A("ds_add_u32 v20, v4 offset:20")
                A("s_mov_b64 exec, -1")
            load(j, wk)
        self.stamp(0)
        A(f"""
        v_and_b32 v4, 2, v0
        v_cmp_ne_u32 s[50:51], 0, v4
        v_and_b32 v4, 1, v0
        v_cmp_ne_u32 s[54:55], 0, v4
        v_mov_b32 v20, {L_FLAG}
        v_lshlrev_b32 v21, 4, v2
        v_mov_b32 v31, {LOG2E}
        """)
        self.lds_wait("q", 20, 0, 1, 2)
        A(f"""
        ds_read_b128 v[4:7], v21 offset:{L_Q}
        ds_read_b32 v22, v20 offset:4
        s_waitcnt vmcnt(16) lgkmcnt(0)
        v_readfirstlane_b32 s31, v22
        """)
        self.stamp(1)
        P = lambda j: 32 + 4 * j
        for n, g in enumerate((0, 16)):
            for half in ((range(16),) if n == 0 else (range(8), range(8, 16))):
                if n == 1:
                    A(f"s_waitcnt vmcnt({8 - half[0]})")
                for d in range(4):
                    for j in half:
                        r = P(g + j)
                        A(f"v_dot2_f32_bf16 v{r}, v{r+d}, v{4+d}, {'0' if d == 0 else 'v%d' % r}")
            for j in range(8):
                A(f"v_add_f32_dpp v{P(g+j)}, v{P(g+j)}, v{P(g+j)} row_ror:8 row_mask:0xf bank_mask:0x3")
            for j in range(8):
                A(f"v_add_f32_dpp v{P(g+j)}, v{P(g+j+8)}, v{P(g+j+8)} row_ror:8 row_mask:0xf bank_mask:0xc")
            for j in range(4):
                A(f"v_add_f32_dpp v{P(g+j)}, v{P(g+j)}, v{P(g+j)} row_shl:4 row_mask:0xf bank_mask:0x5")
            for j in range(4):
                A(f"v_add_f32_dpp v{P(g+j)}, v{P(g+j+4)}, v{P(g+j+4)} row_shr:4 row_mask:0xf bank_mask:0xa")
            for j in range(2):
                A(f"v_cndmask_b32 v{8+j}, v{P(g+j)}, v{P(g+j+2)}, s[50:51]")
                A(f"v_cndmask_b32 v{10+j}, v{P(g+j+2)}, v{P(g+j)}, s[50:51]")
            self.nop(1)
            A("v_add_f32_dpp v8, v10, v8 quad_perm:[2,3,0,1] row_mask:0xf bank_mask:0xf")
            A("v_add_f32_dpp v9, v11, v9 quad_perm:[2,3,0,1] row_mask:0xf bank_mask:0xf")
            A("v_cndmask_b32 v11, v9, v8, s[54:55]")
            A("v_cndmask_b32 v10, v8, v9, s[54:55]")
            self.nop(1)
            A(f"v_add_f32_dpp v{16+n}, v11, v10 quad_perm:[1,0,3,2] row_mask:0xf bank_mask:0xf")
        A(f"""
        v_cvt_pk_bf16_f32 v18, v16, v17
        v_lshlrev_b32 v16, 16, v18
        v_and_b32 v17, 0xffff0000, v18
        v_mul_f32 v16, {SCALE}, v16
        v_mul_f32 v17, {SCALE}, v17
        v_cvt_pk_bf16_f32 v18, v16, v17
        v_lshlrev_b32 v16, 16, v18
        v_and_b32 v17, 0xffff0000, v18
        v_max_f32 v18, v16, v17
        """)
        self.wave_reduce_to_sgpr("v_max_f32", 18, 49)
        A(f"""
        s_lshl_b32 s48, s34, 9
        s_add_u32 s48, s48, {L_P}
        v_lshl_add_u32 v19, v0, 2, s48
        ds_write2st64_b32 v19, v16, v17 offset0:0 offset1:1
        v_subrev_f32 v8, s49, v16
        v_subrev_f32 v9, s49, v17
        v_mul_f32 v8, v8, v31
        v_mul_f32 v9, v9, v31
        v_exp_f32 v8, v8
        v_exp_f32 v9, v9
        s_nop 0
        v_add_f32 v18, v8, v9
        """)
        self.row_allreduce("v_add_f32", 18)
        self.nop(2)
        A("v_add_f32_dpp v18, v18, v18 row_bcast:15 row_mask:0xa bank_mask:0xf")
        self.nop(2)
        A("v_add_f32_dpp v18, v18, v18 row_bcast:31 row_mask:0xc bank_mask:0xf")
        A(f"""
        s_lshl_b32 s48, s34, 3
        v_mov_b32 v16, s48
        v_mov_b32 v19, s49
        v_mov_b32 v17, 1
        s_mov_b32 exec_lo, 0
        s_mov_b32 exec_hi, 0x80000000
        ds_write2_b32 v16, v19, v18 offset0:{L_ML//4} offset1:{L_ML//4+1}
        ds_add_u32 v20, v17 offset:12
        s_mov_b64 exec, -1
        s_setprio 0
        """)
        self.stamp(2)
        if int(self.opt.get("dmaat", 32)) >= 0:
            self.lds_wait("v", 20, 16, int(self.opt.get("dmacnt", 4)), 1)
        if not self.opt.get("x_nodma"):
            self.dma(WPOL)
        self.stamp(3)
        A(f"""
        v_bfe_u32 v24, v2, 3, 1
        v_and_b32 v25, 1, v3
        v_lshl_add_u32 v24, v25, 1, v24
        v_xor_b32 v24, s34, v24
        v_lshlrev_b32 v24, 5, v24
        v_lshl_add_u32 v24, v3, 10, v24
        v_lshrrev_b32 v25, 2, v2
        v_lshl_add_u32 v24, v25, 7, v24
        v_and_b32 v25, 3, v2
        v_lshl_add_u32 v24, v25, 3, v24
        v_lshlrev_b32 v27, 4, v3
        v_mov_b32 v26, 1
        s_lshl_b32 s48, s29, 16
        s_and_b32 s49, s28, 7
        s_lshl_b32 s49, s49, 10
        s_add_u32 s48, s48, s49
        s_lshr_b32 s49, s28, 3
        s_lshl_b32 s49, s49, {14 if YG < 2 else 13}
        s_add_u32 s48, s48, s49
        s_lshr_b32 s49, s29, 2
        s_xor_b32 s49, s49, {YG & 1}
        s_lshl_b32 s49, s49, 13
        {"s_add_u32 s48, s48, s49" if YG < 2 else ""}
        s_lshl_b32 s49, s34, 8
        s_add_u32 s48, s48, s49
        s_add_u32 s48, s48, {WS_Y}
        v_lshl_add_u32 v29, v0, 4, s48
        s_waitcnt lgkmcnt(0)
        s_barrier
        """)
        self.stamp(4)
        A(f"""
        ds_read_b128 v[48:51], v27 offset:{L_H}
        ds_read_b128 v[52:55], v27 offset:{L_H + 64}
        s_mov_b64 exec, 1
        s_waitcnt vmcnt(0)
        ds_add_u32 v20, v26 offset:8
        s_mov_b64 exec, -1
        """)
        self.lds_wait("w", 20, 8, 4, 0, tmp=26)
        for kk in range(2):
            A(f"ds_read_b64_tr_b16 v[{112+4*kk}:{113+4*kk}], v24 offset:{L_W + 16384 + 4096*kk}")
            A(f"ds_read_b64_tr_b16 v[{114+4*kk}:{115+4*kk}], v24 offset:{L_W + 16384 + 4096*kk + 512}")
        for kk in range(4):
            A(f"ds_read_b64_tr_b16 v[{96+4*kk}:{97+4*kk}], v24 offset:{L_W + 4096*kk}")
            A(f"ds_read_b64_tr_b16 v[{98+4*kk}:{99+4*kk}], v24 offset:{L_W + 4096*kk + 512}")
        A("""
        s_waitcnt lgkmcnt(8)
        v_mfma_f32_16x16x32_bf16 v[20:23], v[48:51], v[112:115], 0
        v_mfma_f32_16x16x32_bf16 v[20:23], v[52:55], v[116:119], v[20:23]
        v_mov_b32 v5, s31
        v_mov_b32 v7, s31
        s_nop 5
        v_mov_b32 v6, v20
        s_waitcnt lgkmcnt(0)
        """)
        self.stamp(6)
        A("s_barrier")
        for kk in range(4):
            A(f"ds_read_b128 v[{32+4*kk}:{35+4*kk}], v27 offset:{L_OB + 64*kk}")
        for kk in range(4):
            A(f"s_waitcnt lgkmcnt({3-kk})")
            c = "0" if kk == 0 else "v[16:19]"
            A(f"v_mfma_f32_16x16x32_bf16 v[16:19], v[{32+4*kk}:{35+4*kk}], v[{96+4*kk}:{99+4*kk}], {c}")
        A("""
        s_nop 6
        s_mov_b64 exec, 0xffff
        v_mov_b32 v4, v16
        global_store_dwordx4 v29, v[4:7], s[26:27] sc1
        """)
        if self.diag and dw < 4:
            A(f"s_cmp_lg_u32 s34, {dw}")
            A("s_cbranch_scc1 L_end")
            self.stamp(5)
            self.dump_stamps(8, 7)
        A("s_endpgm")
        A(f"""
        L_val:
        s_setprio 1
        v_and_b32 v4, 2, v2
        v_cmp_eq_u32 vcc, 0, v4
        v_mov_b32 v5, 0xffff0000
        v_mov_b32 v6, 0xffff
        v_cndmask_b32 v5, v5, v6, vcc
        v_and_b32 v4, 13, v2
        """)
        for d in range(4):
            A(f"v_cmp_eq_u32 vcc, {4*d}, v4")
            self.nop(2)
            A(f"v_cndmask_b32 v{8+d}, 0, v5, vcc")
        A(f"""
        v_mov_b32 v20, {L_FLAG}
        s_lshl_b32 s48, s34, 9
        s_add_u32 s49, s48, {L_P}
        v_lshl_add_u32 v19, v0, 2, s49
        s_add_u32 s49, s48, {L_OS}
        v_lshl_add_u32 v18, v0, 3, s49
        v_mov_b32 v23, {LOG2E}
        v_mov_b32 v6, 1
        s_waitcnt lgkmcnt(0)
        s_mov_b32 s36, s8
        s_mov_b32 s37, s9
        s_barrier
        """)
        if wk:
            self.lds_wait("k", 20, 20, 4, 1)
        dmaat = int(self.opt.get("dmaat", 32))
        for j in range(33):
            if j == dmaat:
                A("s_mov_b64 exec, 1")
                A("ds_add_u32 v20, v6 offset:16")
                A("s_mov_b64 exec, -1")
            if j < 32:
                load(j, wv if j < vsw else wv2)
        self.stamp(0)
        self.lds_wait("p", 20, 24, 1, 1)
        A(f"""
        ds_read2st64_b32 v[16:17], v19 offset0:0 offset1:1
        ds_read_b64 v[4:5], v20 offset:32
        s_waitcnt lgkmcnt(0)
        v_sub_f32 v16, v16, v4
        v_sub_f32 v17, v17, v4
        v_mul_f32 v16, v16, v23
        v_mul_f32 v17, v17, v23
        v_exp_f32 v16, v16
        v_exp_f32 v17, v17
        s_nop 0
        v_mul_f32 v16, v16, v5
        v_mul_f32 v17, v17, v5
        v_cvt_pk_bf16_f32 v16, v16, v16
        v_cvt_pk_bf16_f32 v17, v17, v17
        s_nop 0
        """)
        self.stamp(1)

        def prep(j):
            a = 24 + 4 * (j & 1)
            for d in range(4):
                A(f"v_and_b32_dpp v{a+d}, v{16 + (j >> 4)}, v{8+d} row_newbcast:{j & 15} row_mask:0xf bank_mask:0xf")
        prep(0)
        for j in range(32):
            if j < 31:
                prep(j + 1)
            else:
                self.nop(1)
            A(f"s_waitcnt vmcnt({31-j})")
            if j == 31:
                self.stamp(5)
            if j == 20:
                self.stamp(2)
            a = 24 + 4 * (j & 1)
            c = "0" if j == 0 else "v[12:15]"
            A(f"v_mfma_f32_16x16x32_bf16 v[12:15], v[{a}:{a+3}], v[{32+4*j}:{35+4*j}], {c}")
        A("""
        s_nop 7
        ds_write2_b32 v18, v12, v14 offset0:0 offset1:1
        s_waitcnt lgkmcnt(0)
        s_barrier
        """)
        self.stamp(4)
        if self.diag and dw >= 4:
            A(f"s_cmp_lg_u32 s34, {dw - 4}")
            A("s_cbranch_scc1 L_end")
            self.stamp(3)
            self.stamp(6)
            self.dump_stamps(8, 7)


if __name__ == "__main__":
    out = sys.argv[1] if len(sys.argv) > 1 else "k1.s"
    opts = dict(a.split("=") for a in sys.argv[2:])
    diag = bool(int(opts.pop("diag", "0")))
    if "diagwave" in opts:
        opts["diagwave"] = int(opts["diagwave"])
    open(out, "w").write(Gen(diag, **opts).build())
```

```python
import sys

NAME = "parallel_sum__gqa_block_cached__geglu_ffn__decode"

WS_EPOCH = 0x0
WS_HINT = 0x4000
WS_PRES = 0x8000
WS_Q = 0x10000
WS_G = 0x50000
WS_ML = 0x90000
WS_O = 0xA0000
WS_Y = 0x100000
WS_STAMP = 0x8000000
L_Q = 0x000
L_H = 0x100
L_OB = 0x200
L_FLAG = 0x300
L_ML = 0x340
L_OS = 0x400
L_P = 0xC00
L_W = 0x2000
LDS_BYTES = 98304
SPIN_MAX = 1 << 20

LOG2E = 0x3FB8AA3B
SCALE = 0x3DB504F3
EPS = 0x3727C5AC
INV512 = 0x3B000000
GELU_K1 = 0x3D372713
GELU_C = 0xC0135761


DOC = """
One persistent workgroup per CU (256 in total). Workgroup (h, i) owns keys [512 i, 512 i + 512) of
head h, rows [64 i, 64 i + 64) of wq / w_gate / w_up for the head's columns and its 40 or 48 FFN
columns, and the 64-column tile i of wo rows [128 h, 128 h + 128) and of the matching w_down rows.
Waves: 0 = q projection + cross-workgroup tail, 1 = gate/up projection, 2..5 = keys, 6..9 = values.
Hand-offs go through d_ws as 8-byte {value, tag} granules. The tag is derived from a word of d_ws
that the launch leaves changed, so granules of an earlier launch never validate.
  1. partial q / gate / up sums    -> the eight workgroups of the head
  2. (softmax max, sum)            -> the eight workgroups of the head
  3. partial o                     -> the eight workgroups of the head (through the shared L2 when
                                      all eight report the same XCC id, device scope otherwise)
  4. partial attention / FFN rows  -> 256 consumers, two output columns each
bf16 roundings follow the reference step by step.
"""


class Gen:
    def __init__(self, diag=False, **opt):
        self.L = []
        self.diag = diag
        self.opt = opt

    def A(self, s):
        for line in s.split("\n"):
            line = line.strip()
            if line:
                self.L.append(line)

    def nop(self, n):
        if n > 0:
            self.A(f"s_nop {n-1}")

    def stamp(self, i):
        if self.diag:
            self.A(f"s_memrealtime s[{84+2*i}:{85+2*i}]")

    def dump_stamps(self, first, n):
        if not self.diag:
            return
        A = self.A
        A("s_waitcnt lgkmcnt(0)")
        A("s_mov_b64 exec, 1")
        A(f"s_lshl_b32 s48, s2, 7")
        A(f"s_add_u32 s48, s48, {WS_STAMP + 8*first}")
        A("v_mov_b32 v1, s48")
        for k in range(n):
            A(f"v_mov_b32 v2, s{84+2*k}")
            A(f"v_mov_b32 v3, s{85+2*k}")
            A(f"global_store_dwordx2 v1, v[2:3], s[26:27] offset:{8*k} sc1")
            A("s_nop 1")

    def row_allreduce(self, op, v, steps=("row_ror:8", "row_ror:4", "row_ror:2", "row_ror:1")):
        for st in steps:
            self.nop(2)
            self.A(f"{op}_dpp v{v}, v{v}, v{v} {st} row_mask:0xf bank_mask:0xf")

    def wave_reduce_to_sgpr(self, op, v, s):
        self.row_allreduce(op, v)
        self.nop(2)
        self.A(f"{op}_dpp v{v}, v{v}, v{v} row_bcast:15 row_mask:0xa bank_mask:0xf")
        self.nop(2)
        self.A(f"{op}_dpp v{v}, v{v}, v{v} row_bcast:31 row_mask:0xc bank_mask:0xf")
        self.nop(1)
        self.A(f"v_readlane_b32 s{s}, v{v}, 63")

    def oct_allreduce(self, op, v):
        self.row_allreduce(op, v, ("quad_perm:[1,0,3,2]", "quad_perm:[2,3,0,1]", "row_half_mirror"))

    def lds_wait(self, name, vaddr, off, target, sleep, tmp=7):
        self.A(f"""
        s_mov_b32 s32, 0
        L_wait_{name}:
        ds_read_b32 v{tmp}, v{vaddr} offset:{off}
        s_add_u32 s32, s32, 1
        s_waitcnt lgkmcnt(0)
        v_readfirstlane_b32 s48, v{tmp}
        s_cmp_ge_u32 s48, {target}
        s_cbranch_scc1 L_go_{name}
        {f"s_sleep {sleep}" if sleep else ""}
        s_cmp_lt_u32 s32, {SPIN_MAX}
        s_cbranch_scc1 L_wait_{name}
        L_go_{name}:
        """)

    def round_bf16(self, dst, src):
        self.A(f"v_cvt_pk_bf16_f32 v{dst}, v{src}, v{src}")
        self.A(f"v_and_b32 v{dst}, 0xffff0000, v{dst}")

    def build(self):
        A = self.A
        o = self.opt
        KVPOL = o.get("kvpol", "nt")
        WPOL = o.get("wpol", "nt")
        A(f"; @launch grid=(256,1,1) block=(640,1,1) lds={self.opt.get('lds', LDS_BYTES)}")
        for c in DOC.strip().split("\n"):
            A("; " + c if c else ";")
        A('.amdgcn_target "amdgcn-amd-amdhsa--gfx950"')
        A(".text")
        A(f".globl {NAME}_kernel")
        A(".p2align 8")
        A(f".type {NAME}_kernel,@function")
        A(f"{NAME}_kernel:")
        self.stamp(0)
        A("""
        s_cmp_ge_u32 s2, 0x100
        s_cbranch_scc1 L_end
        s_load_dwordx16 s[4:19], s[0:1], 0
        s_load_dwordx8 s[20:27], s[0:1], 64
        """)
        if int(o.get("cpf", 1)):
            self.A("; pull this kernel's own code into L2 while the argument loads are in flight")
            A(f"""
            s_getpc_b64 s[48:49]
            v_lshlrev_b32 v4, 4, v0
            s_and_b32 s48, s48, 0xffffff00
            v_min_u32 v4, (L_last-{NAME}_kernel-16)&0xfffffff0, v4
            v_mov_b32 v5, 0
            v_lshl_add_u64 v[4:5], v[4:5], 0, s[48:49]
            global_load_dwordx4 v[60:63], v[4:5], off {o.get("cpfpol", "")}
            """)
        A("""
        v_lshrrev_b32 v1, 6, v0
        v_and_b32 v0, 63, v0
        """)
        if o.get("map", "xcd") == "xcd":
            A("""
            s_and_b32 s28, s2, 7
            s_lshl_b32 s28, s28, 2
            v_readfirstlane_b32 s3, v1
            s_bfe_u32 s29, s2, 0x20003
            s_add_u32 s28, s28, s29
            s_lshr_b32 s29, s2, 5
            s_lshl_b32 s30, s28, 3
            s_add_u32 s30, s30, s29
            s_and_b32 s48, s2, 7
            s_mul_i32 s52, s48, 43
            s_add_u32 s53, s52, 43
            s_lshr_b32 s52, s52, 3
            s_lshr_b32 s53, s53, 3
            s_sub_u32 s53, s53, s52
            s_and_b32 s48, s28, 3
            s_mul_i32 s48, s48, s53
            s_lshl_b32 s52, s52, 2
            s_add_u32 s52, s52, s48
            """)
        else:
            A("""
            s_lshr_b32 s28, s2, 3
            s_and_b32 s29, s2, 7
            v_readfirstlane_b32 s3, v1
            s_mov_b32 s30, s2
            s_mul_i32 s52, s28, 43
            s_add_u32 s53, s52, 43
            s_lshr_b32 s52, s52, 3
            s_lshr_b32 s53, s53, 3
            s_sub_u32 s53, s53, s52
            """)
        A("""
        v_and_b32 v2, 15, v0
        v_lshrrev_b32 v3, 4, v0
        s_cmp_lt_u32 s3, 2
        s_cbranch_scc1 L_ctrl
        """)
        self.kv(KVPOL, WPOL)
        A("s_endpgm")
        A("L_ctrl:")
        self.ctrl(WPOL)
        A("L_end:")
        A("s_endpgm")
        A("L_last:")
        A('.section .rodata,"a"')
        A(".p2align 6")
        A(f".amdhsa_kernel {NAME}_kernel")
        A("  .amdhsa_next_free_vgpr 160")
        A("  .amdhsa_next_free_sgpr 102")
        A("  .amdhsa_accum_offset 160")
        A("  .amdhsa_group_segment_fixed_size 0")
        A("  .amdhsa_kernarg_size 96")
        A("  .amdhsa_user_sgpr_count 2")
        A("  .amdhsa_user_sgpr_kernarg_segment_ptr 1")
        A("  .amdhsa_system_sgpr_workgroup_id_x 1")
        A(".end_amdhsa_kernel")
        return "\n".join(self.L) + "\n"

    def ctrl(self, WPOL):
        A = self.A
        A(f"""
        s_setprio 3
        s_movk_i32 s48, 2752
        s_mov_b32 s49, 0
        s_sub_u32 s50, s53, 1
        s_cmp_eq_u32 s3, 0
        s_cselect_b32 s48, 0x2000, s48
        s_cselect_b32 s50, 7, s50
        s_lshl_b32 s51, s29, 6
        v_lshl_add_u32 v4, v3, 4, s51
        v_and_b32 v5, 7, v2
        v_min_u32 v5, s50, v5
        v_mul_lo_u32 v6, v4, s48
        v_lshl_add_u32 v6, v5, 4, v6
        v_lshlrev_b32 v4, 1, v4
        v_lshlrev_b32 v5, 4, v0
        v_mov_b32 v7, 0
        v_mov_b32 v20, {L_FLAG}
        v_cmp_gt_u32 vcc, 8, v2
        s_lshl_b32 s54, s28, 8
        s_lshl_b32 s55, s52, 4
        ds_write2_b32 v20, v7, v7 offset0:2 offset1:3
        ds_write2_b32 v20, v7, v7 offset0:0 offset1:4
        ds_write2_b32 v20, v7, v7 offset0:5 offset1:6
        s_waitcnt lgkmcnt(0)
        {"s_barrier" if self.opt.get("binit", "late") == "early" else ""}
        {"s_memrealtime s[88:89]" if self.diag and self.opt.get("st2") == "s" else ""}
        global_load_dword v21, v7, s[26:27] sc1
        global_load_dwordx4 v[16:19], v5, s[4:5]
        global_load_dwordx4 v[8:11], v4, s[4:5]
        global_load_dwordx4 v[12:15], v4, s[4:5] offset:16
        s_cmp_eq_u32 s3, 0
        s_cbranch_scc0 L_c1_ptr
        s_add_u32 s56, s10, s54
        s_addc_u32 s57, s11, 0
        s_add_u32 s58, s56, 128
        s_addc_u32 s59, s57, 0
        s_branch L_c_ptr_done
        L_c1_ptr:
        s_add_u32 s56, s16, s55
        s_addc_u32 s57, s17, 0
        s_add_u32 s58, s18, s55
        s_addc_u32 s59, s19, 0
        L_c_ptr_done:
        v_mov_b32 v22, s58
        v_mov_b32 v23, s59
        v_mov_b32 v24, s56
        v_mov_b32 v25, s57
        v_cndmask_b32 v22, v22, v24, vcc
        v_cndmask_b32 v23, v23, v25, vcc
        v_lshl_add_u64 v[22:23], v[6:7], 0, v[22:23]
        """)
        if self.opt.get("x_noq"):
            A("s_mov_b32 s48, 0")
        if self.opt.get("x_nog"):
            A("s_cmp_eq_u32 s3, 0")
            A("s_cselect_b32 s48, s48, 0")
        for j in range(16):
            A(f"global_load_dwordx4 v[{64+4*j}:{67+4*j}], v[22:23], off {WPOL}")
            if j < 15:
                A("v_lshl_add_u64 v[22:23], v[22:23], 0, s[48:49]")
        if self.opt.get("st2") == "s":
            self.stamp(3)
        if self.opt.get("binit", "late") == "late":
            A("s_barrier")
        NT = 0
        if int(self.opt.get("touch", 0)):
            self.A("; one-lane loads that bring the address translations of later-used buffers into this CU")
            NT = 4
            A("""
            s_lshl_b32 s54, s30, 17
            v_mov_b32 v4, s54
            s_lshl_b32 s54, s28, 17
            v_mov_b32 v5, s54
            s_lshl_b32 s54, s52, 13
            v_mov_b32 v6, s54
            s_mov_b64 exec, 1
            global_load_dword v56, v4, s[8:9] nt
            global_load_dword v57, v5, s[12:13] nt
            global_load_dword v58, v6, s[20:21] nt
            global_load_dword v59, v7, s[22:23] nt
            s_mov_b64 exec, -1
            """)
        self.stamp(1)
        A("""
        """)
        if self.opt.get("ocol", "x") == "x":
            A("""
            s_lshr_b32 s37, s28, 2
            s_and_b32 s38, s30, 31
            """)
        else:
            A("""
            s_mov_b32 s37, s29
            s_mov_b32 s38, s28
            """)
        A("""
        s_lshl_b32 s54, s37, 7
        s_lshl_b32 s55, s38, 2
        s_add_u32 s39, s54, s55
        s_load_dword s33, s[4:5], s39
        """)
        A("""
        v_and_b32 v4, 2, v2
        v_cmp_eq_u32 vcc, 0, v4
        v_mov_b32 v5, 0x01000c0c
        v_mov_b32 v6, 0x0c0c0100
        v_cndmask_b32 v5, v5, v6, vcc
        v_mov_b32 v6, 0x03020c0c
        v_mov_b32 v7, 0x0c0c0302
        v_cndmask_b32 v6, v6, v7, vcc
        v_and_b32 v4, 13, v2
        v_mov_b32 v7, 0x0c0c0c0c
        """)
        for d in range(4):
            A(f"v_cmp_eq_u32 vcc, {4*d}, v4")
            self.nop(2)
            A(f"v_cndmask_b32 v{24+2*d}, v7, v5, vcc")
            A(f"v_cndmask_b32 v{25+2*d}, v7, v6, vcc")
        A(f"s_waitcnt vmcnt({18+NT})")
        A("v_or_b32 v21, 15, v21")
        A("v_add_u32 v21, 1, v21")
        for k in range(4):
            A(f"v_lshlrev_b32 v{44+2*k}, 16, v{16+k}")
            A(f"v_and_b32 v{45+2*k}, 0xffff0000, v{16+k}")
        A("v_readfirstlane_b32 s31, v21")
        QL = int(self.opt.get("qlocal", 0))
        A(f"""
        s_getreg_b32 s44, hwreg(HW_REG_XCC_ID, 0, 4)
        s_lshl_b32 s54, s28, 7
        s_add_u32 s54, s54, {WS_PRES}
        s_add_u32 s40, s26, s54
        s_addc_u32 s41, s27, 0
        s_or_b32 s44, s44, s31
        s_mov_b32 s45, s44
        s_lshl_b32 s55, s29, 2
        v_mov_b32 v52, s55
        v_mov_b32 v53, s44
        """)
        if QL:
            A("""
            s_mov_b64 exec, 1
            global_store_dword v52, v53, s[40:41] sc1
            s_mov_b64 exec, -1
            """)
            NT += 1
        A("""
        v_add_f32 v4, v44, v45
        v_add_f32 v5, v46, v47
        v_add_f32 v6, v48, v49
        v_add_f32 v7, v50, v51
        v_add_f32 v4, v4, v5
        v_add_f32 v6, v6, v7
        v_add_f32 v4, v4, v6
        """)
        self.wave_reduce_to_sgpr("v_add_f32", 4, 54)
        A(f"v_mov_b32 v5, {INV512}")
        self.nop(1)
        A("v_mul_f32 v20, s54, v5")
        for k in range(8):
            A(f"v_sub_f32 v{44+k}, v{44+k}, v20")
        A("v_mul_f32 v4, v44, v44")
        for k in range(1, 8):
            A(f"v_fmac_f32 v4, v{44+k}, v{44+k}")
        self.wave_reduce_to_sgpr("v_add_f32", 4, 54)
        self.round_bf16(20, 20)
        A("v_mul_f32 v4, s54, v5")
        self.round_bf16(4, 4)
        A(f"v_add_f32 v4, {EPS}, v4")
        self.round_bf16(4, 4)
        A("v_sqrt_f32 v4, v4")
        self.nop(1)
        self.round_bf16(4, 4)
        A("v_rcp_f32 v6, v4")
        A("v_mov_b32 v21, v20")
        A("v_mov_b32 v5, v4")
        A("v_mov_b32 v7, v6")
        A(f"s_waitcnt vmcnt({16+NT})")
        for k in range(8):
            x = 8 + k
            A(f"""
            v_lshlrev_b32 v44, 16, v{x}
            v_and_b32 v45, 0xffff0000, v{x}
            v_pk_add_f32 v[44:45], v[44:45], v[20:21] neg_lo:[0,1] neg_hi:[0,1]
            v_cvt_pk_bf16_f32 v46, v44, v45
            v_lshlrev_b32 v44, 16, v46
            v_and_b32 v45, 0xffff0000, v46
            v_pk_mul_f32 v[46:47], v[44:45], v[6:7]
            v_pk_fma_f32 v[44:45], v[46:47], v[4:5], v[44:45] neg_lo:[1,0,0] neg_hi:[1,0,0]
            v_pk_fma_f32 v[46:47], v[44:45], v[6:7], v[46:47]
            v_cvt_pk_bf16_f32 v{x}, v46, v47
            """)

        if QL:
            A("s_load_dwordx8 s[56:63], s[40:41], 0 glc")

        def perms(j):
            a = 32 + 4 * (j & 1)
            for d in range(4):
                A(f"v_perm_b32 v{a+d}, v{8+(j>>1)}, v{8+(j>>1)}, v{24+2*d+(j&1)}")
        perms(0)
        for j in range(16):
            if j < 15:
                perms(j + 1)
            else:
                self.nop(2)
            A(f"s_waitcnt vmcnt({15-j+NT})")
            a = 32 + 4 * (j & 1)
            c = "0" if j == 0 else "v[40:43]"
            A(f"v_mfma_f32_16x16x32_bf16 v[40:43], v[{a}:{a+3}], v[{64+4*j}:{67+4*j}], {c}")
        A(f"""
        s_mul_i32 s54, s3, {WS_G - WS_Q}
        s_add_u32 s54, s54, {WS_Q}
        s_lshl_b32 s55, s30, 10
        s_add_u32 s55, s55, s54
        v_lshl_add_u32 v4, v0, 4, s55
        s_lshl_b32 s55, s28, 13
        s_add_u32 s55, s55, s54
        s_add_u32 s55, s55, 4096
        v_lshl_add_u32 v5, v0, 4, s55
        s_lshl_b32 s54, s28, 8
        s_lshl_b32 s55, s3, 7
        s_add_u32 s54, s54, s55
        s_add_u32 s54, s54, {WS_HINT}
        v_mov_b32 v41, s31
        v_mov_b32 v43, s31
        s_add_u32 s46, s26, s54
        s_addc_u32 s47, s27, 0
        """)
        if QL:
            A("""
            s_waitcnt lgkmcnt(0)
            s_xor_b64 s[56:57], s[56:57], s[44:45]
            s_xor_b64 s[58:59], s[58:59], s[44:45]
            s_xor_b64 s[60:61], s[60:61], s[44:45]
            s_xor_b64 s[62:63], s[62:63], s[44:45]
            s_or_b64 s[56:57], s[56:57], s[58:59]
            s_or_b64 s[60:61], s[60:61], s[62:63]
            s_or_b64 s[56:57], s[56:57], s[60:61]
            s_cbranch_scc1 L_q_remote
            global_store_dwordx4 v4, v[40:43], s[26:27]
            s_branch L_q_stored
            L_q_remote:
            """)
        A("""
        global_store_dwordx4 v4, v[40:43], s[26:27] sc1
        L_q_stored:
        s_mov_b64 exec, 1
        global_store_dword v52, v53, s[46:47] sc1
        s_mov_b64 exec, -1
        s_mov_b32 s32, 0
        s_mov_b32 s43, 1
        s_mov_b32 s35, 0
        """)
        if self.opt.get("st2") != "s":
            self.stamp(2)
        if self.opt.get("x_nopoll"):
            A("s_branch L_qdone")
        if self.opt.get("x_nopoll1"):
            A("s_cmp_eq_u32 s3, 1")
            A("s_cbranch_scc1 L_qdone")
        A(f"""
        L_qhint:
        s_load_dwordx8 s[56:63], s[46:47], 0 glc
        s_add_u32 s32, s32, 1
        s_cmp_ge_u32 s32, {SPIN_MAX}
        s_cbranch_scc1 L_qpoll
        s_waitcnt lgkmcnt(0)
        s_xor_b64 s[56:57], s[56:57], s[44:45]
        s_xor_b64 s[58:59], s[58:59], s[44:45]
        s_xor_b64 s[60:61], s[60:61], s[44:45]
        s_xor_b64 s[62:63], s[62:63], s[44:45]
        s_or_b64 s[56:57], s[56:57], s[58:59]
        s_or_b64 s[60:61], s[60:61], s[62:63]
        s_or_b64 s[56:57], s[56:57], s[60:61]
        s_or_b32 s43, s56, s57
        s_cmp_lt_u32 s43, 16
        s_cbranch_scc1 L_qpoll
        s_sleep {self.opt.get("hintsleep", 4)}
        s_branch L_qhint
        """)
        A("L_qpoll:")
        if self.opt.get("x_hintonly"):
            A("s_branch L_qdone")
        if self.diag:
            A("s_add_u32 s35, s35, 1")
        for k in range(8):
            A(f"global_load_dwordx4 v[{64+4*k}:{67+4*k}], v5, s[26:27] offset:{1024*k-4096} {self.opt.get('x_qpol', 'sc1')}")
        A("s_add_u32 s32, s32, 1")
        for k in range(8):
            r = 64 + 4 * k
            A(f"s_waitcnt vmcnt({7-k})")
            if k == 0:
                A(f"v_xor_b32 v6, s31, v{r+1}")
                A(f"v_mov_b32 v44, v{r}")
                A(f"v_mov_b32 v45, v{r+2}")
            else:
                A(f"v_bitop3_b32 v6, v{r+1}, s31, v6 bitop3:0xbe")
                A(f"v_add_f32 v44, v44, v{r}")
                A(f"v_add_f32 v45, v45, v{r+2}")
            A(f"v_bitop3_b32 v6, v{r+3}, s31, v6 bitop3:0xbe")
        A(f"""
        v_cmp_ne_u32 vcc, 0, v6
        s_cbranch_vccz L_qdone
        s_cmp_lt_u32 s32, {SPIN_MAX}
        s_cbranch_scc1 L_qhint
        L_qdone:
        v_cvt_pk_bf16_f32 v44, v44, v45
        v_lshlrev_b32 v22, 4, v2
        v_lshl_add_u32 v22, v3, 2, v22
        s_cmp_eq_u32 s3, 0
        s_cbranch_scc1 L_c0
        """)
        A(f"""
        v_mov_b32_dpp v45, v44 row_ror:8 row_mask:0xf bank_mask:0xf
        v_lshlrev_b32 v46, 16, v44
        v_and_b32 v47, 0xffff0000, v44
        v_mov_b32 v50, {GELU_K1}
        v_mul_f32 v48, v46, v46
        v_mul_f32 v49, v47, v47
        v_mul_f32 v48, v48, v46
        v_mul_f32 v49, v49, v47
        v_fma_f32 v48, v48, v50, v46
        v_fma_f32 v49, v49, v50, v47
        v_mul_f32 v48, {GELU_C}, v48
        v_mul_f32 v49, {GELU_C}, v49
        v_exp_f32 v48, v48
        v_exp_f32 v49, v49
        s_nop 0
        v_add_f32 v48, 1.0, v48
        v_add_f32 v49, 1.0, v49
        v_rcp_f32 v48, v48
        v_rcp_f32 v49, v49
        s_nop 0
        v_mul_f32 v46, v46, v48
        v_mul_f32 v47, v47, v49
        v_cvt_pk_bf16_f32 v44, v46, v47
        v_lshlrev_b32 v46, 16, v44
        v_and_b32 v47, 0xffff0000, v44
        v_lshlrev_b32 v48, 16, v45
        v_and_b32 v49, 0xffff0000, v45
        v_cmp_gt_u32 vcc, s53, v2
        v_mul_f32 v46, v46, v48
        v_mul_f32 v47, v47, v49
        v_cvt_pk_bf16_f32 v44, v46, v47
        v_cndmask_b32 v44, 0, v44, vcc
        ds_write_b32 v22, v44 offset:{L_H}
        s_waitcnt lgkmcnt(0)
        s_endpgm
        """)
        YG = int(self.opt.get("yg", 2))
        A(f"""
        L_c0:
        v_mov_b32 v21, {L_FLAG}
        v_mov_b32 v6, 1
        v_mov_b32 v7, s31
        ds_write_b32 v22, v44 offset:{L_Q}
        ds_write_b64 v21, v[6:7]
        """)
        if self.opt.get("st2") != "s":
            self.stamp(3)
        A(f"""
        v_and_b32 v4, 3, v0
        v_lshlrev_b32 v4, 3, v4
        s_lshl_b32 s54, s28, 7
        s_add_u32 s54, s54, {WS_ML}
        s_add_u32 s46, s26, s54
        s_addc_u32 s47, s27, 0
        s_lshl_b32 s54, s29, 4
        v_mov_b32 v24, s54
        s_lshl_b32 s54, s30, 10
        s_add_u32 s54, s54, {WS_Q}
        v_lshl_add_u32 v26, v0, 4, s54
        s_lshl_b32 s54, s28, 13
        s_add_u32 s54, s54, {WS_Q + 4096}
        v_lshl_add_u32 v27, v0, 4, s54
        s_lshl_b32 s54, s37, 16
        s_lshl_b32 s55, s38, 5
        s_add_u32 s54, s54, s55
        s_lshr_b32 s55, s37, 2
        s_xor_b32 s55, s55, {YG & 1}
        s_lshl_b32 s55, s55, 13
        {"s_add_u32 s54, s54, s55" if YG < 2 else ""}
        s_add_u32 s54, s54, {WS_Y}
        v_bfe_u32 v5, v0, 1, 3
        v_lshlrev_b32 v5, 10, v5
        v_lshl_add_u32 v5, v3, {14 if YG < 2 else 13}, v5
        v_and_b32 v6, 1, v0
        v_lshl_add_u32 v5, v6, 4, v5
        v_add_u32 v28, s54, v5
        v_lshl_add_u32 v29, v0, 1, s39
        v_lshlrev_b32 v30, 3, v0
        v_mov_b32 v31, {LOG2E}
        v_cmp_eq_u32 vcc, 0, v6
        s_lshl_b32 s54, s33, 16
        s_and_b32 s55, s33, 0xffff0000
        v_mov_b32 v20, s55
        v_mov_b32 v23, s54
        v_cndmask_b32 v20, v20, v23, vcc
        v_mov_b32 v13, s31
        v_mov_b32 v15, s31
        v_mov_b32 v32, s31
        v_mov_b32 v33, s31
        s_add_u32 s42, s31, 1
        v_mov_b32 v41, s42
        v_mov_b32 v43, s42
        {"s_mov_b32 s43, 1" if self.opt.get("nolocal") else ""}
        """)
        self.lds_wait("c", 21, 12, 4, 2)
        self.stamp(4)
        quad = ("quad_perm:[1,0,3,2]", "quad_perm:[2,3,0,1]")
        A(f"""
        ds_read_b64 v[8:9], v4 offset:{L_ML}
        s_waitcnt lgkmcnt(0)
        v_mov_b32 v12, v8
        """)
        self.row_allreduce("v_max_f32", 12, quad)
        A("""
        v_sub_f32 v8, v8, v12
        v_mul_f32 v8, v8, v31
        v_exp_f32 v8, v8
        s_nop 0
        v_mul_f32 v14, v8, v9
        """)
        self.row_allreduce("v_add_f32", 14, quad)
        A(f"""
        s_mov_b64 exec, 1
        global_store_dwordx4 v24, v[12:15], s[46:47] sc1
        s_mov_b64 exec, -1
        s_mov_b32 s32, 0
        {"s_branch L_mldone" if self.opt.get("x_noml") else ""}
        L_mlpoll:
        s_load_dwordx16 s[48:63], s[46:47], 0 glc
        s_load_dwordx16 s[64:79], s[46:47], 64 glc
        s_add_u32 s32, s32, 1
        s_waitcnt lgkmcnt(0)
        s_xor_b32 s80, s49, s31
        """)
        for k in range(1, 16):
            A(f"s_xor_b32 s81, s{49+2*k}, s31")
            A("s_or_b32 s80, s80, s81")
        A(f"""
        s_cmp_eq_u32 s80, 0
        s_cbranch_scc1 L_mldone
        s_sleep {self.opt.get("mlsleep", 4)}
        s_cmp_lt_u32 s32, {SPIN_MAX}
        s_cbranch_scc1 L_mlpoll
        L_mldone:
        v_mov_b32 v8, s48
        """)
        for k in range(1, 8):
            A(f"v_max_f32 v8, s{48+4*k}, v8")
        for k in range(8):
            A(f"v_sub_f32 v{64+k}, s{48+4*k}, v8")
        for k in range(8):
            A(f"v_mul_f32 v{64+k}, v{64+k}, v31")
        for k in range(8):
            A(f"v_exp_f32 v{64+k}, v{64+k}")
        A("v_mul_f32 v9, s50, v64")
        for k in range(1, 8):
            A(f"v_fmac_f32 v9, s{50+4*k}, v{64+k}")
        A("""
        v_rcp_f32 v9, v9
        s_mov_b32 s32, 0
        v_mov_b32 v10, 1
        ds_write_b64 v21, v[8:9] offset:32
        ds_write_b32 v21, v10 offset:24
        """)
        if self.opt.get("st2") == "y":
            self.stamp(1)
        A("""
        s_waitcnt vmcnt(0) lgkmcnt(0)
        s_barrier
        """)
        self.stamp(5)
        if self.opt.get("x_notail"):
            self.stamp(6)
            A("s_barrier")
            A("s_branch L_c0_end")
        for k in range(2):
            A(f"ds_read2st64_b64 v[{64+4*k}:{67+4*k}], v30 offset0:{L_OS//512+2*k} offset1:{L_OS//512+2*k+1}")
        A("""
        s_cmp_eq_u32 s43, 0
        s_waitcnt lgkmcnt(1)
        v_pk_add_f32 v[64:65], v[64:65], v[66:67]
        s_waitcnt lgkmcnt(0)
        v_pk_add_f32 v[68:69], v[68:69], v[70:71]
        v_add_f32 v40, v64, v68
        v_add_f32 v42, v65, v69
        s_cbranch_scc0 L_o_remote
        global_store_dwordx4 v26, v[40:43], s[26:27]
        L_opoll:
        """)
        if self.opt.get("st2") == "o":
            self.stamp(1)
        for k in range(8):
            A(f"global_load_dwordx4 v[{64+4*k}:{67+4*k}], v27, s[26:27] offset:{1024*k-4096} sc1")

        def chk(k, wait=True):
            r = 64 + 4 * k
            if wait:
                A(f"s_waitcnt vmcnt({7-k})")
                if k == 0 and self.opt.get("st2") == "o":
                    self.stamp(2)
            A(f"v_xor_b32 v{48+k}, s42, v{r+1}")
            A(f"v_bitop3_b32 v{48+k}, v{r+3}, s42, v{48+k} bitop3:0xbe")

        def anybad():
            A("""
            v_or3_b32 v6, v48, v49, v50
            v_or3_b32 v7, v51, v52, v53
            v_or3_b32 v6, v6, v54, v55
            v_or_b32 v6, v6, v7
            v_cmp_ne_u32 vcc, 0, v6
            """)

        def masks():
            for k in range(8):
                A(f"v_cmp_ne_u32 s[{64+2*k}:{65+2*k}], 0, v{48+k}")

        def reload():
            for k in range(8):
                A(f"s_mov_b64 exec, s[{64+2*k}:{65+2*k}]")
                A(f"global_load_dwordx4 v[{64+4*k}:{67+4*k}], v27, s[26:27] offset:{1024*k-4096} sc1")
            A("s_mov_b64 exec, -1")
        for k in range(8):
            chk(k)
        anybad()
        if self.opt.get("st2") == "o":
            self.stamp(3)
        A("s_cbranch_vccz L_osum")
        masks()
        reload()
        A(f"""
        L_oround:
        s_add_u32 s32, s32, 1
        s_cmp_lt_u32 s32, {SPIN_MAX}
        s_cbranch_scc0 L_osum
        """)
        masks()
        reload()
        A("s_waitcnt vmcnt(8)")
        for k in range(8):
            chk(k, False)
        anybad()
        A("""
        s_cbranch_vccnz L_oround
        L_osum:
        s_waitcnt vmcnt(0)
        v_add_f32 v44, v64, v68
        v_add_f32 v45, v66, v70
        v_add_f32 v46, v72, v76
        v_add_f32 v47, v74, v78
        v_add_f32 v56, v80, v84
        v_add_f32 v57, v82, v86
        v_add_f32 v58, v88, v92
        v_add_f32 v59, v90, v94
        v_pk_add_f32 v[44:45], v[44:45], v[46:47]
        v_pk_add_f32 v[56:57], v[56:57], v[58:59]
        v_pk_add_f32 v[44:45], v[44:45], v[56:57]
        """)
        A(f"""
        v_cvt_pk_bf16_f32 v44, v44, v45
        L_odone:
        ds_write_b32 v22, v44 offset:{L_OB}
        s_mov_b32 s34, s32
        s_mov_b32 s32, 0
        """)
        self.stamp(6)
        A(f"""
        s_waitcnt lgkmcnt(0)
        s_barrier
        s_mov_b64 vcc, -1
        {"global_store_dwordx4 v26, v[40:43], s[26:27] sc1" if self.opt.get("oclean") == "1" else ""}
        global_load_dwordx4 v[8:11], v28, s[26:27] sc1
        {"global_store_dwordx4 v26, v[40:43], s[26:27] sc1" if self.opt.get("oclean") == "2" else ""}
        s_branch L_yload
        L_ypoll:
        s_bcnt1_i32_b64 s48, vcc
        s_cmp_gt_u32 s48, {self.opt.get("yth", 16)}
        s_cbranch_scc1 L_ysleep
        L_yload:
        s_add_u32 s32, s32, 1
        s_cmp_ge_u32 s32, {SPIN_MAX}
        s_cbranch_scc1 L_ydone
        s_mov_b64 exec, vcc
        global_load_dwordx4 v[8:11], v28, s[26:27] sc1
        s_mov_b64 exec, -1
        s_waitcnt vmcnt(1)
        v_xor_b32 v6, s31, v9
        v_bitop3_b32 v6, v11, s31, v6 bitop3:0xbe
        v_cmp_ne_u32 vcc, 0, v6
        s_cbranch_vccnz L_ypoll
        L_ydone:
        {"s_memrealtime s[88:89]" if self.diag and self.opt.get("st2") == "y" else ""}
        s_waitcnt vmcnt(0)
        v_permlane32_swap_b32 v8, v10
        v_add_f32 v16, v8, v10
        v_add_f32 v18, v8, v10
        s_nop 1
        v_permlane16_swap_b32 v16, v18
        v_add_f32 v16, v16, v18
        """)
        self.row_allreduce("v_add_f32", 16, ("quad_perm:[2,3,0,1]", "row_ror:4", "row_ror:8"))
        self.round_bf16(16, 16)
        A("""
        v_add_f32 v12, v20, v16
        v_mov_b32 v18, v16
        """)
        self.round_bf16(12, 12)
        A("""
        v_permlane32_swap_b32 v16, v18
        v_add_f32 v12, v12, v18
        v_cvt_pk_bf16_f32 v12, v12, v12
        s_mov_b64 exec, 3
        global_store_short v29, v12, s[22:23] %s
        s_cmp_lg_u32 s30, 0
        s_cbranch_scc1 L_c0_end
        s_mov_b64 exec, 0xffff
        global_store_dwordx2 v30, v[32:33], s[26:27]
        L_c0_end:
        """ % self.opt.get("outpol", ""))
        self.stamp(7)
        self.dump_stamps(0, 8)
        if self.diag:
            A("""
            s_lshl_b32 s34, s34, 10
            s_lshl_b32 s32, s32, 20
            s_or_b32 s35, s35, s34
            s_or_b32 s35, s35, s32
            v_mov_b32 v2, s35
            v_mov_b32 v3, 0
            global_store_dwordx2 v1, v[2:3], s[26:27] offset:120
            """)
        if self.opt.get("dbgstamp"):
            A(f"""
            s_waitcnt vmcnt(0)
            v_mov_b32 v1, 0
            v_mov_b32 v2, 1
            global_atomic_add v3, v1, v2, s[24:25] offset:252 sc0 sc1
            s_waitcnt vmcnt(0)
            v_readfirstlane_b32 s48, v3
            s_cmp_lg_u32 s48, 255
            s_cbranch_scc1 L_end
            s_mov_b64 exec, -1
            v_mov_b32 v1, 0
            s_mov_b32 s48, {WS_STAMP}
            v_lshl_add_u32 v4, v0, 7, s48
            """)
            for k in range(16):
                src = 0 if k == 15 else k
                for q in range(4):
                    A(f"v_add_u32 v5, {q*8192 + 8*src}, v4")
                    A(f"global_load_dword v{8+q}, v5, s[26:27] sc1")
                A("s_waitcnt vmcnt(0)")
                op = "v_min_u32" if k == 15 else "v_max_u32"
                A(f"{op} v8, v8, v9")
                A(f"{op} v10, v10, v11")
                A(f"{op} v8, v8, v10")
                self.wave_reduce_to_sgpr(op, 8, 49)
                self.nop(2)
                A("v_mov_b32 v6, s49")
                A(f"global_store_dword v1, v6, s[24:25] offset:{4*k}")
                if k == int(self.opt.get("amp", -1)):
                    A("s_mov_b32 s50, s49")
            if int(self.opt.get("amp", -1)) >= 0:
                A(f"""
                s_sub_u32 s50, s50, s49
                s_mul_i32 s50, s50, {self.opt.get("ampk", 10)}
                s_min_u32 s50, s50, 100000
                s_memrealtime s[52:53]
                s_waitcnt lgkmcnt(0)
                L_amp:
                s_memrealtime s[54:55]
                s_waitcnt lgkmcnt(0)
                s_sub_u32 s54, s54, s52
                s_cmp_lt_u32 s54, s50
                s_cbranch_scc1 L_amp
                """)
        A(f"""
        s_endpgm
        L_ysleep:
        s_sleep {self.opt.get("ysleep", 4)}
        s_branch L_yload
        L_o_remote:
        global_store_dwordx4 v26, v[40:43], s[26:27] sc1
        s_branch L_opoll
        """)

    def dma(self, WPOL):
        A = self.A
        A(f"""
        s_mov_b32 s56, s12
        s_mov_b32 s57, s13
        s_mov_b32 s58, 0x400000
        s_mov_b32 s59, 0x20000
        s_mov_b32 s44, s20
        s_mov_b32 s45, s21
        s_mov_b32 s46, 1409024
        s_mov_b32 s47, 0x20000
        v_lshrrev_b32 v24, 3, v0
        v_and_b32 v25, 1, v3
        v_lshlrev_b32 v25, 1, v25
        v_and_b32 v26, 7, v0
        v_xor_b32 v25, v25, v26
        v_lshlrev_b32 v25, 4, v25
        v_lshl_add_u32 v25, v24, 10, v25
        v_xor_b32 v26, 64, v25
        s_lshl_b32 s49, s29, 7
        s_lshl_b32 s50, s28, 17
        s_add_u32 s50, s50, s49
        s_lshl_b32 s48, s34, 15
        s_add_u32 s50, s50, s48
        s_lshl_b32 s51, s34, 1
        s_add_u32 s48, s52, s51
        s_lshl_b32 s48, s48, 13
        s_add_u32 s48, s48, s49
        s_add_u32 s49, s48, 0x2000
        s_cmp_lt_u32 s51, s53
        s_cselect_b32 s54, 0, 0x40000000
        v_or_b32 v27, s54, v25
        s_add_u32 s51, s51, 1
        s_cmp_lt_u32 s51, s53
        s_cselect_b32 s54, 0, 0x40000000
        v_or_b32 v28, s54, v26
        s_lshl_b32 s51, s34, 11
        s_add_u32 m0, s51, {L_W + 16384}
        s_lshl_b32 s54, s34, 12
        buffer_load_dwordx4 v27, s[44:47], s48 offen {WPOL} lds
        s_add_u32 m0, s51, {L_W + 16384 + 1024}
        s_nop 0
        buffer_load_dwordx4 v28, s[44:47], s49 offen {WPOL} lds
        """)
        for jj in range(4):
            A(f"s_add_u32 m0, s54, {L_W + 1024*jj}")
            A(f"s_add_u32 s49, s50, {jj*0x2000}")
            A(f"buffer_load_dwordx4 v{25 + (jj & 1)}, s[56:59], s49 offen {WPOL} lds")

    def kv(self, KVPOL, WPOL):
        A = self.A
        pre = int(self.opt.get("pre", 4))
        YG = int(self.opt.get("yg", 2))
        dw = self.opt.get("diagwave", 7)
        pb = int(self.opt.get("pb", 2))
        A("""
        s_sub_u32 s34, s3, 2
        s_and_b32 s34, s34, 3
        s_lshl_b32 s48, s30, 17
        s_lshl_b32 s49, s34, %d
        s_add_u32 s48, s48, s49
        v_lshl_add_u32 v1, v0, 4, s48
        s_mov_b32 s38, 0x2000000
        s_mov_b32 s39, 0x20000
        s_cmp_ge_u32 s3, 6
        s_cbranch_scc1 L_val
        s_setprio 2
        s_waitcnt lgkmcnt(0)
        s_mov_b32 s36, s6
        s_mov_b32 s37, s7
        """ % (10 + pb))

        wk = int(self.opt.get("wk", 6))
        wv = int(self.opt.get("wv", 8))
        wv2 = int(self.opt.get("wv2", wv))
        vsw = int(self.opt.get("vsw", 32))

        def load(j, win=0):
            if win and j >= win:
                A(f"s_waitcnt vmcnt({win - 1})")
            off = (j & ((1 << pb) - 1)) * 1024 + (j >> pb) * (4096 << pb)
            if (off & 0xFFF) == 0:
                A(f"s_mov_b32 s48, {off}")
            A(f"buffer_load_dwordx4 v[{32+4*j}:{35+4*j}], v1, s[36:39], s48 offen offset:{off & 0xFFF} {KVPOL}")
        for j in range(32):
            if j == pre:
                A("s_barrier")
            if wk and j == int(self.opt.get("kdone", 31)):
                A(f"v_mov_b32 v20, {L_FLAG}")
                A("v_mov_b32 v4, 1")
                A("s_mov_b64 exec, 1")
                A("ds_add_u32 v20, v4 offset:20")
                A("s_mov_b64 exec, -1")
            load(j, wk)
        self.stamp(0)
        A(f"""
        v_and_b32 v4, 2, v0
        v_cmp_ne_u32 s[50:51], 0, v4
        v_and_b32 v4, 1, v0
        v_cmp_ne_u32 s[54:55], 0, v4
        v_mov_b32 v20, {L_FLAG}
        v_lshlrev_b32 v21, 4, v2
        v_mov_b32 v31, {LOG2E}
        """)
        self.lds_wait("q", 20, 0, 1, 2)
        A(f"""
        ds_read_b128 v[4:7], v21 offset:{L_Q}
        ds_read_b32 v22, v20 offset:4
        s_waitcnt vmcnt(16) lgkmcnt(0)
        v_readfirstlane_b32 s31, v22
        """)
        self.stamp(1)
        P = lambda j: 32 + 4 * j
        for n, g in enumerate((0, 16)):
            for half in ((range(16),) if n == 0 else (range(8), range(8, 16))):
                if n == 1:
                    A(f"s_waitcnt vmcnt({8 - half[0]})")
                for d in range(4):
                    for j in half:
                        r = P(g + j)
                        A(f"v_dot2_f32_bf16 v{r}, v{r+d}, v{4+d}, {'0' if d == 0 else 'v%d' % r}")
            for j in range(8):
                A(f"v_add_f32_dpp v{P(g+j)}, v{P(g+j)}, v{P(g+j)} row_ror:8 row_mask:0xf bank_mask:0x3")
            for j in range(8):
                A(f"v_add_f32_dpp v{P(g+j)}, v{P(g+j+8)}, v{P(g+j+8)} row_ror:8 row_mask:0xf bank_mask:0xc")
            for j in range(4):
                A(f"v_add_f32_dpp v{P(g+j)}, v{P(g+j)}, v{P(g+j)} row_shl:4 row_mask:0xf bank_mask:0x5")
            for j in range(4):
                A(f"v_add_f32_dpp v{P(g+j)}, v{P(g+j+4)}, v{P(g+j+4)} row_shr:4 row_mask:0xf bank_mask:0xa")
            for j in range(2):
                A(f"v_cndmask_b32 v{8+j}, v{P(g+j)}, v{P(g+j+2)}, s[50:51]")
                A(f"v_cndmask_b32 v{10+j}, v{P(g+j+2)}, v{P(g+j)}, s[50:51]")
            self.nop(1)
            A("v_add_f32_dpp v8, v10, v8 quad_perm:[2,3,0,1] row_mask:0xf bank_mask:0xf")
            A("v_add_f32_dpp v9, v11, v9 quad_perm:[2,3,0,1] row_mask:0xf bank_mask:0xf")
            A("v_cndmask_b32 v11, v9, v8, s[54:55]")
            A("v_cndmask_b32 v10, v8, v9, s[54:55]")
            self.nop(1)
            A(f"v_add_f32_dpp v{16+n}, v11, v10 quad_perm:[1,0,3,2] row_mask:0xf bank_mask:0xf")
        A(f"""
        v_cvt_pk_bf16_f32 v18, v16, v17
        v_lshlrev_b32 v16, 16, v18
        v_and_b32 v17, 0xffff0000, v18
        v_mul_f32 v16, {SCALE}, v16
        v_mul_f32 v17, {SCALE}, v17
        v_cvt_pk_bf16_f32 v18, v16, v17
        v_lshlrev_b32 v16, 16, v18
        v_and_b32 v17, 0xffff0000, v18
        v_max_f32 v18, v16, v17
        """)
        self.wave_reduce_to_sgpr("v_max_f32", 18, 49)
        A(f"""
        s_lshl_b32 s48, s34, 9
        s_add_u32 s48, s48, {L_P}
        v_lshl_add_u32 v19, v0, 2, s48
        ds_write2st64_b32 v19, v16, v17 offset0:0 offset1:1
        v_subrev_f32 v8, s49, v16
        v_subrev_f32 v9, s49, v17
        v_mul_f32 v8, v8, v31
        v_mul_f32 v9, v9, v31
        v_exp_f32 v8, v8
        v_exp_f32 v9, v9
        s_nop 0
        v_add_f32 v18, v8, v9
        """)
        self.row_allreduce("v_add_f32", 18)
        self.nop(2)
        A("v_add_f32_dpp v18, v18, v18 row_bcast:15 row_mask:0xa bank_mask:0xf")
        self.nop(2)
        A("v_add_f32_dpp v18, v18, v18 row_bcast:31 row_mask:0xc bank_mask:0xf")
        A(f"""
        s_lshl_b32 s48, s34, 3
        v_mov_b32 v16, s48
        v_mov_b32 v19, s49
        v_mov_b32 v17, 1
        s_mov_b32 exec_lo, 0
        s_mov_b32 exec_hi, 0x80000000
        ds_write2_b32 v16, v19, v18 offset0:{L_ML//4} offset1:{L_ML//4+1}
        ds_add_u32 v20, v17 offset:12
        s_mov_b64 exec, -1
        s_setprio 0
        """)
        self.stamp(2)
        if int(self.opt.get("dmaat", 32)) >= 0:
            self.lds_wait("v", 20, 16, int(self.opt.get("dmacnt", 4)), 1)
        if not self.opt.get("x_nodma"):
            self.dma(WPOL)
        self.stamp(3)
        A(f"""
        v_bfe_u32 v24, v2, 3, 1
        v_and_b32 v25, 1, v3
        v_lshl_add_u32 v24, v25, 1, v24
        v_xor_b32 v24, s34, v24
        v_lshlrev_b32 v24, 5, v24
        v_lshl_add_u32 v24, v3, 10, v24
        v_lshrrev_b32 v25, 2, v2
        v_lshl_add_u32 v24, v25, 7, v24
        v_and_b32 v25, 3, v2
        v_lshl_add_u32 v24, v25, 3, v24
        v_lshlrev_b32 v27, 4, v3
        v_mov_b32 v26, 1
        s_lshl_b32 s48, s29, 16
        s_and_b32 s49, s28, 7
        s_lshl_b32 s49, s49, 10
        s_add_u32 s48, s48, s49
        s_lshr_b32 s49, s28, 3
        s_lshl_b32 s49, s49, {14 if YG < 2 else 13}
        s_add_u32 s48, s48, s49
        s_lshr_b32 s49, s29, 2
        s_xor_b32 s49, s49, {YG & 1}
        s_lshl_b32 s49, s49, 13
        {"s_add_u32 s48, s48, s49" if YG < 2 else ""}
        s_lshl_b32 s49, s34, 8
        s_add_u32 s48, s48, s49
        s_add_u32 s48, s48, {WS_Y}
        v_lshl_add_u32 v29, v0, 4, s48
        s_waitcnt lgkmcnt(0)
        s_barrier
        """)
        self.stamp(4)
        A(f"""
        ds_read_b128 v[48:51], v27 offset:{L_H}
        ds_read_b128 v[52:55], v27 offset:{L_H + 64}
        s_mov_b64 exec, 1
        s_waitcnt vmcnt(0)
        ds_add_u32 v20, v26 offset:8
        s_mov_b64 exec, -1
        """)
        self.lds_wait("w", 20, 8, 4, 0, tmp=26)
        for kk in range(2):
            A(f"ds_read_b64_tr_b16 v[{112+4*kk}:{113+4*kk}], v24 offset:{L_W + 16384 + 4096*kk}")
            A(f"ds_read_b64_tr_b16 v[{114+4*kk}:{115+4*kk}], v24 offset:{L_W + 16384 + 4096*kk + 512}")
        for kk in range(4):
            A(f"ds_read_b64_tr_b16 v[{96+4*kk}:{97+4*kk}], v24 offset:{L_W + 4096*kk}")
            A(f"ds_read_b64_tr_b16 v[{98+4*kk}:{99+4*kk}], v24 offset:{L_W + 4096*kk + 512}")
        A("""
        s_waitcnt lgkmcnt(8)
        v_mfma_f32_16x16x32_bf16 v[20:23], v[48:51], v[112:115], 0
        v_mfma_f32_16x16x32_bf16 v[20:23], v[52:55], v[116:119], v[20:23]
        v_mov_b32 v5, s31
        v_mov_b32 v7, s31
        s_nop 5
        v_mov_b32 v6, v20
        s_waitcnt lgkmcnt(0)
        """)
        self.stamp(6)
        A("s_barrier")
        for kk in range(4):
            A(f"ds_read_b128 v[{32+4*kk}:{35+4*kk}], v27 offset:{L_OB + 64*kk}")
        for kk in range(4):
            A(f"s_waitcnt lgkmcnt({3-kk})")
            c = "0" if kk == 0 else "v[16:19]"
            A(f"v_mfma_f32_16x16x32_bf16 v[16:19], v[{32+4*kk}:{35+4*kk}], v[{96+4*kk}:{99+4*kk}], {c}")
        A("""
        s_nop 6
        s_mov_b64 exec, 0xffff
        v_mov_b32 v4, v16
        global_store_dwordx4 v29, v[4:7], s[26:27] sc1
        """)
        if self.diag and dw < 4:
            A(f"s_cmp_lg_u32 s34, {dw}")
            A("s_cbranch_scc1 L_end")
            self.stamp(5)
            self.dump_stamps(8, 7)
        A("s_endpgm")
        A(f"""
        L_val:
        s_setprio 1
        v_and_b32 v4, 2, v2
        v_cmp_eq_u32 vcc, 0, v4
        v_mov_b32 v5, 0xffff0000
        v_mov_b32 v6, 0xffff
        v_cndmask_b32 v5, v5, v6, vcc
        v_and_b32 v4, 13, v2
        """)
        for d in range(4):
            A(f"v_cmp_eq_u32 vcc, {4*d}, v4")
            self.nop(2)
            A(f"v_cndmask_b32 v{8+d}, 0, v5, vcc")
        A(f"""
        v_mov_b32 v20, {L_FLAG}
        s_lshl_b32 s48, s34, 9
        s_add_u32 s49, s48, {L_P}
        v_lshl_add_u32 v19, v0, 2, s49
        s_add_u32 s49, s48, {L_OS}
        v_lshl_add_u32 v18, v0, 3, s49
        v_mov_b32 v23, {LOG2E}
        v_mov_b32 v6, 1
        s_waitcnt lgkmcnt(0)
        s_mov_b32 s36, s8
        s_mov_b32 s37, s9
        s_barrier
        """)
        if wk:
            self.lds_wait("k", 20, 20, 4, 1)
        dmaat = int(self.opt.get("dmaat", 32))
        for j in range(33):
            if j == dmaat:
                A("s_mov_b64 exec, 1")
                A("ds_add_u32 v20, v6 offset:16")
                A("s_mov_b64 exec, -1")
            if j < 32:
                load(j, wv if j < vsw else wv2)
        self.stamp(0)
        self.lds_wait("p", 20, 24, 1, 1)
        A(f"""
        ds_read2st64_b32 v[16:17], v19 offset0:0 offset1:1
        ds_read_b64 v[4:5], v20 offset:32
        s_waitcnt lgkmcnt(0)
        v_sub_f32 v16, v16, v4
        v_sub_f32 v17, v17, v4
        v_mul_f32 v16, v16, v23
        v_mul_f32 v17, v17, v23
        v_exp_f32 v16, v16
        v_exp_f32 v17, v17
        s_nop 0
        v_mul_f32 v16, v16, v5
        v_mul_f32 v17, v17, v5
        v_cvt_pk_bf16_f32 v16, v16, v16
        v_cvt_pk_bf16_f32 v17, v17, v17
        s_nop 0
        """)
        self.stamp(1)

        def prep(j):
            a = 24 + 4 * (j & 1)
            for d in range(4):
                A(f"v_and_b32_dpp v{a+d}, v{16 + (j >> 4)}, v{8+d} row_newbcast:{j & 15} row_mask:0xf bank_mask:0xf")
        prep(0)
        for j in range(32):
            if j < 31:
                prep(j + 1)
            else:
                self.nop(1)
            A(f"s_waitcnt vmcnt({31-j})")
            if j == 31:
                self.stamp(5)
            if j == 20:
                self.stamp(2)
            a = 24 + 4 * (j & 1)
            c = "0" if j == 0 else "v[12:15]"
            A(f"v_mfma_f32_16x16x32_bf16 v[12:15], v[{a}:{a+3}], v[{32+4*j}:{35+4*j}], {c}")
        A("""
        s_nop 7
        ds_write2_b32 v18, v12, v14 offset0:0 offset1:1
        s_waitcnt lgkmcnt(0)
        s_barrier
        """)
        self.stamp(4)
        if self.diag and dw >= 4:
            A(f"s_cmp_lg_u32 s34, {dw - 4}")
            A("s_cbranch_scc1 L_end")
            self.stamp(3)
            self.stamp(6)
            self.dump_stamps(8, 7)


if __name__ == "__main__":
    out = sys.argv[1] if len(sys.argv) > 1 else "k1.s"
    opts = dict(a.split("=") for a in sys.argv[2:])
    diag = bool(int(opts.pop("diag", "0")))
    if "diagwave" in opts:
        opts["diagwave"] = int(opts["diagwave"])
    open(out, "w").write(Gen(diag, **opts).build())
```

```python
import sys

NAME = "parallel_sum__gqa_block_cached__geglu_ffn__decode"

WS_EPOCH = 0x0
WS_HINT = 0x4000
WS_PRES = 0x8000
WS_Q = 0x10000
WS_G = 0x50000
WS_ML = 0x90000
WS_O = 0xA0000
WS_Y = 0x100000
WS_STAMP = 0x8000000
L_Q = 0x000
L_H = 0x100
L_OB = 0x200
L_FLAG = 0x300
L_ML = 0x340
L_OS = 0x400
L_P = 0xC00
L_W = 0x2000
LDS_BYTES = 98304
SPIN_MAX = 1 << 20

LOG2E = 0x3FB8AA3B
SCALE = 0x3DB504F3
EPS = 0x3727C5AC
INV512 = 0x3B000000
GELU_K1 = 0x3D372713
GELU_C = 0xC0135761


DOC = """
One persistent workgroup per CU (256 in total). Workgroup (h, i) owns keys [512 i, 512 i + 512) of
head h, rows [128 (i/2), +128) of one half of the head's wq columns and of w_gate (even i) or w_up
(odd i) for the group's 40 or 48 FFN columns, and the 64-column tile i of wo rows [128 h, +128)
and of the matching w_down rows.
Waves: 0 = q projection + cross-workgroup tail, 1 = gate/up projection, 2..5 = keys, 6..9 = values.
Hand-offs go through d_ws as 8-byte {value, tag} granules. The tag is derived from a word of d_ws
that the launch leaves changed, so granules of an earlier launch never validate.
  1. partial q / gate / up sums    -> the eight workgroups of the head
  2. (softmax max, sum)            -> the eight workgroups of the head
  3. partial o                     -> the eight workgroups of the head (through the shared L2 when
                                      all eight report the same XCC id, device scope otherwise)
  4. partial attention / FFN rows  -> 256 consumers, two output columns each
bf16 roundings follow the reference step by step.
"""


class Gen:
    def __init__(self, diag=False, **opt):
        self.L = []
        self.diag = diag
        self.opt = opt

    def A(self, s):
        for line in s.split("\n"):
            line = line.strip()
            if line:
                self.L.append(line)

    def nop(self, n):
        if n > 0:
            self.A(f"s_nop {n-1}")

    def stamp(self, i):
        if self.diag:
            self.A(f"s_memrealtime s[{84+2*i}:{85+2*i}]")

    def dump_stamps(self, first, n):
        if not self.diag:
            return
        A = self.A
        A("s_waitcnt lgkmcnt(0)")
        A("s_mov_b64 exec, 1")
        A(f"s_lshl_b32 s48, s2, 7")
        A(f"s_add_u32 s48, s48, {WS_STAMP + 8*first}")
        A("v_mov_b32 v1, s48")
        for k in range(n):
            A(f"v_mov_b32 v2, s{84+2*k}")
            A(f"v_mov_b32 v3, s{85+2*k}")
            A(f"global_store_dwordx2 v1, v[2:3], s[26:27] offset:{8*k} sc1")
            A("s_nop 1")

    def row_allreduce(self, op, v, steps=("row_ror:8", "row_ror:4", "row_ror:2", "row_ror:1")):
        for st in steps:
            self.nop(2)
            self.A(f"{op}_dpp v{v}, v{v}, v{v} {st} row_mask:0xf bank_mask:0xf")

    def wave_reduce_to_sgpr(self, op, v, s):
        self.row_allreduce(op, v)
        self.nop(2)
        self.A(f"{op}_dpp v{v}, v{v}, v{v} row_bcast:15 row_mask:0xa bank_mask:0xf")
        self.nop(2)
        self.A(f"{op}_dpp v{v}, v{v}, v{v} row_bcast:31 row_mask:0xc bank_mask:0xf")
        self.nop(1)
        self.A(f"v_readlane_b32 s{s}, v{v}, 63")

    def oct_allreduce(self, op, v):
        self.row_allreduce(op, v, ("quad_perm:[1,0,3,2]", "quad_perm:[2,3,0,1]", "row_half_mirror"))

    def lds_wait(self, name, vaddr, off, target, sleep, tmp=7):
        self.A(f"""
        s_mov_b32 s32, 0
        L_wait_{name}:
        ds_read_b32 v{tmp}, v{vaddr} offset:{off}
        s_add_u32 s32, s32, 1
        s_waitcnt lgkmcnt(0)
        v_readfirstlane_b32 s48, v{tmp}
        s_cmp_ge_u32 s48, {target}
        s_cbranch_scc1 L_go_{name}
        {f"s_sleep {sleep}" if sleep else ""}
        s_cmp_lt_u32 s32, {SPIN_MAX}
        s_cbranch_scc1 L_wait_{name}
        L_go_{name}:
        """)

    def round_bf16(self, dst, src):
        self.A(f"v_cvt_pk_bf16_f32 v{dst}, v{src}, v{src}")
        self.A(f"v_and_b32 v{dst}, 0xffff0000, v{dst}")

    def build(self):
        A = self.A
        o = self.opt
        KVPOL = o.get("kvpol", "nt")
        WPOL = o.get("wpol", "nt")
        A(f"; @launch grid=(256,1,1) block=(640,1,1) lds={self.opt.get('lds', LDS_BYTES)}")
        for c in DOC.strip().split("\n"):
            A("; " + c if c else ";")
        A('.amdgcn_target "amdgcn-amd-amdhsa--gfx950"')
        A(".text")
        A(f".globl {NAME}_kernel")
        A(".p2align 8")
        A(f".type {NAME}_kernel,@function")
        A(f"{NAME}_kernel:")
        self.stamp(0)
        A("""
        s_cmp_ge_u32 s2, 0x100
        s_cbranch_scc1 L_end
        s_load_dwordx16 s[4:19], s[0:1], 0
        s_load_dwordx8 s[20:27], s[0:1], 64
        """)
        if int(o.get("cpf", 1)):
            self.A("; pull this kernel's own code into L2 while the argument loads are in flight")
            A(f"""
            s_getpc_b64 s[48:49]
            v_lshlrev_b32 v4, 4, v0
            s_and_b32 s48, s48, 0xffffff00
            v_min_u32 v4, (L_last-{NAME}_kernel-16)&0xfffffff0, v4
            v_mov_b32 v5, 0
            v_lshl_add_u64 v[4:5], v[4:5], 0, s[48:49]
            global_load_dwordx4 v[60:63], v[4:5], off {o.get("cpfpol", "")}
            """)
        A("""
        v_lshrrev_b32 v1, 6, v0
        v_and_b32 v0, 63, v0
        """)
        if o.get("map", "xcd") == "xcd":
            A("""
            s_and_b32 s28, s2, 7
            s_lshl_b32 s28, s28, 2
            v_readfirstlane_b32 s3, v1
            s_bfe_u32 s29, s2, 0x20003
            s_add_u32 s28, s28, s29
            s_lshr_b32 s29, s2, 5
            s_lshl_b32 s30, s28, 3
            s_add_u32 s30, s30, s29
            s_and_b32 s48, s2, 7
            s_mul_i32 s52, s48, 43
            s_add_u32 s53, s52, 43
            s_lshr_b32 s52, s52, 3
            s_lshr_b32 s53, s53, 3
            s_sub_u32 s53, s53, s52
            s_and_b32 s48, s28, 3
            s_mul_i32 s48, s48, s53
            s_lshl_b32 s52, s52, 2
            s_add_u32 s52, s52, s48
            """)
        else:
            A("""
            s_lshr_b32 s28, s2, 3
            s_and_b32 s29, s2, 7
            v_readfirstlane_b32 s3, v1
            s_mov_b32 s30, s2
            s_mul_i32 s52, s28, 43
            s_add_u32 s53, s52, 43
            s_lshr_b32 s52, s52, 3
            s_lshr_b32 s53, s53, 3
            s_sub_u32 s53, s53, s52
            """)
        A("""
        v_and_b32 v2, 15, v0
        v_lshrrev_b32 v3, 4, v0
        s_cmp_lt_u32 s3, 2
        s_cbranch_scc1 L_ctrl
        """)
        self.kv(KVPOL, o.get("wopol", WPOL))
        A("s_endpgm")
        A("L_ctrl:")
        self.ctrl(o.get("wqpol", WPOL))
        A("L_end:")
        A("s_endpgm")
        A("L_last:")
        A('.section .rodata,"a"')
        A(".p2align 6")
        A(f".amdhsa_kernel {NAME}_kernel")
        A("  .amdhsa_next_free_vgpr 160")
        A("  .amdhsa_next_free_sgpr 102")
        A("  .amdhsa_accum_offset 160")
        A("  .amdhsa_group_segment_fixed_size 0")
        A("  .amdhsa_kernarg_size 96")
        A("  .amdhsa_user_sgpr_count 2")
        A("  .amdhsa_user_sgpr_kernarg_segment_ptr 1")
        A("  .amdhsa_system_sgpr_workgroup_id_x 1")
        A(".end_amdhsa_kernel")
        return "\n".join(self.L) + "\n"

    def ctrl(self, WPOL):
        A = self.A
        A(f"""
        s_setprio 3
        s_movk_i32 s48, 2752
        s_sub_u32 s50, s53, 1
        s_cmp_eq_u32 s3, 0
        s_cselect_b32 s48, 0x2000, s48
        s_cselect_b32 s50, 7, s50
        s_lshr_b32 s51, s29, 1
        s_lshl_b32 s51, s51, 7
        v_lshl_add_u32 v4, v3, 5, s51
        v_lshrrev_b32 v5, 3, v2
        v_lshl_add_u32 v6, v5, 4, v4
        v_and_b32 v5, 7, v2
        v_min_u32 v5, s50, v5
        v_mul_lo_u32 v6, v6, s48
        v_lshl_add_u32 v22, v5, 4, v6
        v_and_b32 v5, 1, v2
        v_lshl_add_u32 v4, v5, 4, v4
        v_lshlrev_b32 v4, 1, v4
        v_lshlrev_b32 v5, 4, v0
        v_mov_b32 v7, 0
        v_mov_b32 v20, {L_FLAG}
        s_lshl_b32 s54, s28, 1
        s_and_b32 s51, s29, 1
        s_add_u32 s54, s54, s51
        s_lshl_b32 s54, s54, 7
        s_lshl_b32 s55, s52, 4
        ds_write2_b32 v20, v7, v7 offset0:2 offset1:3
        ds_write2_b32 v20, v7, v7 offset0:0 offset1:4
        ds_write2_b32 v20, v7, v7 offset0:5 offset1:6
        s_waitcnt lgkmcnt(0)
        {"s_memrealtime s[88:89]" if self.diag and self.opt.get("st2") == "s" else ""}
        global_load_dword v21, v7, s[26:27] sc1
        global_load_dwordx4 v[16:19], v5, s[4:5]
        global_load_dwordx4 v[8:11], v4, s[4:5]
        global_load_dwordx4 v[12:15], v4, s[4:5] offset:16
        s_cmp_eq_u32 s51, 0
        s_cselect_b64 s[56:57], s[16:17], s[18:19]
        s_cmp_eq_u32 s3, 0
        s_cselect_b64 s[56:57], s[10:11], s[56:57]
        s_cselect_b32 s54, s54, s55
        s_add_u32 s56, s56, s54
        s_addc_u32 s57, s57, 0
        """)
        if self.opt.get("x_noq"):
            A("s_mov_b32 s48, 0")
        if self.opt.get("x_nog"):
            A("s_cmp_eq_u32 s3, 0")
            A("s_cselect_b32 s48, s48, 0")
        for j in range(16):
            A(f"global_load_dwordx4 v[{64+4*j}:{67+4*j}], v22, s[56:57] {WPOL}")
            if j < 15:
                A("s_add_u32 s56, s56, s48")
                A("s_addc_u32 s57, s57, 0")
        if self.opt.get("st2") == "s":
            self.stamp(3)
        if self.opt.get("binit", "late") == "late":
            A("s_barrier")
        NT = 0
        if int(self.opt.get("touch", 0)):
            self.A("; one-lane loads that bring the address translations of later-used buffers into this CU")
            NT = 4
            A("""
            s_lshl_b32 s54, s30, 17
            v_mov_b32 v4, s54
            s_lshl_b32 s54, s28, 17
            v_mov_b32 v5, s54
            s_lshl_b32 s54, s52, 13
            v_mov_b32 v6, s54
            s_mov_b64 exec, 1
            global_load_dword v56, v4, s[8:9] nt
            global_load_dword v57, v5, s[12:13] nt
            global_load_dword v58, v6, s[20:21] nt
            global_load_dword v59, v7, s[22:23] nt
            s_mov_b64 exec, -1
            """)
        self.stamp(1)
        A("""
        """)
        if self.opt.get("ocol", "x") == "x":
            A("""
            s_lshr_b32 s37, s28, 2
            s_and_b32 s38, s30, 31
            """)
        else:
            A("""
            s_mov_b32 s37, s29
            s_mov_b32 s38, s28
            """)
        A("""
        s_lshl_b32 s54, s37, 7
        s_lshl_b32 s55, s38, 2
        s_add_u32 s39, s54, s55
        s_load_dword s33, s[4:5], s39
        """)
        A("""
        v_and_b32 v4, 2, v2
        v_cmp_eq_u32 vcc, 0, v4
        v_mov_b32 v5, 0x01000c0c
        v_mov_b32 v6, 0x0c0c0100
        v_cndmask_b32 v5, v5, v6, vcc
        v_mov_b32 v6, 0x03020c0c
        v_mov_b32 v7, 0x0c0c0302
        v_cndmask_b32 v6, v6, v7, vcc
        v_and_b32 v4, 12, v2
        v_mov_b32 v7, 0x0c0c0c0c
        """)
        for d in range(4):
            A(f"v_cmp_eq_u32 vcc, {4*d}, v4")
            self.nop(2)
            A(f"v_cndmask_b32 v{24+2*d}, v7, v5, vcc")
            A(f"v_cndmask_b32 v{25+2*d}, v7, v6, vcc")
        A(f"s_waitcnt vmcnt({18+NT})")
        A("v_or_b32 v21, 15, v21")
        A("v_add_u32 v21, 1, v21")
        for k in range(4):
            A(f"v_lshlrev_b32 v{44+2*k}, 16, v{16+k}")
            A(f"v_and_b32 v{45+2*k}, 0xffff0000, v{16+k}")
        A("v_readfirstlane_b32 s31, v21")
        QL = int(self.opt.get("qlocal", 0))
        A(f"""
        s_getreg_b32 s44, hwreg(HW_REG_XCC_ID, 0, 4)
        s_lshl_b32 s54, s28, 7
        s_add_u32 s54, s54, {WS_PRES}
        s_add_u32 s40, s26, s54
        s_addc_u32 s41, s27, 0
        s_or_b32 s44, s44, s31
        s_mov_b32 s45, s44
        s_lshl_b32 s55, s29, 2
        v_mov_b32 v52, s55
        v_mov_b32 v53, s44
        """)
        if QL:
            A("""
            s_mov_b64 exec, 1
            global_store_dword v52, v53, s[40:41] sc1
            s_mov_b64 exec, -1
            """)
            NT += 1
        A("""
        v_add_f32 v4, v44, v45
        v_add_f32 v5, v46, v47
        v_add_f32 v6, v48, v49
        v_add_f32 v7, v50, v51
        v_add_f32 v4, v4, v5
        v_add_f32 v6, v6, v7
        v_add_f32 v4, v4, v6
        """)
        self.wave_reduce_to_sgpr("v_add_f32", 4, 54)
        A(f"v_mov_b32 v5, {INV512}")
        self.nop(1)
        A("v_mul_f32 v20, s54, v5")
        for k in range(8):
            A(f"v_sub_f32 v{44+k}, v{44+k}, v20")
        A("v_mul_f32 v4, v44, v44")
        for k in range(1, 8):
            A(f"v_fmac_f32 v4, v{44+k}, v{44+k}")
        self.wave_reduce_to_sgpr("v_add_f32", 4, 54)
        self.round_bf16(20, 20)
        A("v_mul_f32 v4, s54, v5")
        self.round_bf16(4, 4)
        A(f"v_add_f32 v4, {EPS}, v4")
        self.round_bf16(4, 4)
        A("v_sqrt_f32 v4, v4")
        self.nop(1)
        self.round_bf16(4, 4)
        A("v_rcp_f32 v6, v4")
        A("v_mov_b32 v21, v20")
        A("v_mov_b32 v5, v4")
        A("v_mov_b32 v7, v6")
        A(f"s_waitcnt vmcnt({16+NT})")
        for k in range(8):
            x = 8 + k
            A(f"""
            v_lshlrev_b32 v44, 16, v{x}
            v_and_b32 v45, 0xffff0000, v{x}
            v_pk_add_f32 v[44:45], v[44:45], v[20:21] neg_lo:[0,1] neg_hi:[0,1]
            v_cvt_pk_bf16_f32 v46, v44, v45
            v_lshlrev_b32 v44, 16, v46
            v_and_b32 v45, 0xffff0000, v46
            v_pk_mul_f32 v[46:47], v[44:45], v[6:7]
            v_pk_fma_f32 v[44:45], v[46:47], v[4:5], v[44:45] neg_lo:[1,0,0] neg_hi:[1,0,0]
            v_pk_fma_f32 v[46:47], v[44:45], v[6:7], v[46:47]
            v_cvt_pk_bf16_f32 v{x}, v46, v47
            """)

        if QL:
            A("s_load_dwordx8 s[56:63], s[40:41], 0 glc")

        def perms(j):
            a = 32 + 4 * (j & 1)
            for d in range(4):
                A(f"v_perm_b32 v{a+d}, v{8+(j>>1)}, v{8+(j>>1)}, v{24+2*d+(j&1)}")
        perms(0)
        for j in range(16):
            if j < 15:
                perms(j + 1)
            else:
                self.nop(2)
            A(f"s_waitcnt vmcnt({15-j+NT})")
            a = 32 + 4 * (j & 1)
            c = "0" if j == 0 else "v[40:43]"
            A(f"v_mfma_f32_16x16x32_bf16 v[40:43], v[{a}:{a+3}], v[{64+4*j}:{67+4*j}], {c}")
        A(f"""
        s_mul_i32 s54, s3, {WS_G - WS_Q}
        s_add_u32 s54, s54, {WS_Q}
        s_lshl_b32 s55, s30, 10
        s_add_u32 s55, s55, s54
        v_and_b32 v6, 7, v2
        v_lshl_add_u32 v6, v3, 3, v6
        v_lshl_add_u32 v4, v6, 4, s55
        s_lshl_b32 s55, s28, 13
        s_add_u32 s55, s55, s54
        s_add_u32 s55, s55, 4096
        v_lshl_add_u32 v5, v6, 4, s55
        v_lshrrev_b32 v6, 3, v2
        v_lshl_add_u32 v5, v6, 10, v5
        v_add_f32_dpp v40, v41, v40 row_ror:8 row_mask:0xf bank_mask:0xf
        v_add_f32_dpp v42, v43, v42 row_ror:8 row_mask:0xf bank_mask:0xf
        s_lshl_b32 s54, s28, 8
        s_lshl_b32 s55, s3, 7
        s_add_u32 s54, s54, s55
        s_add_u32 s54, s54, {WS_HINT}
        v_mov_b32 v41, s31
        v_mov_b32 v43, s31
        s_add_u32 s46, s26, s54
        s_addc_u32 s47, s27, 0
        s_mov_b32 exec_lo, 0x00ff00ff
        s_mov_b32 exec_hi, 0x00ff00ff
        """)
        if QL:
            A("""
            s_waitcnt lgkmcnt(0)
            s_xor_b64 s[56:57], s[56:57], s[44:45]
            s_xor_b64 s[58:59], s[58:59], s[44:45]
            s_xor_b64 s[60:61], s[60:61], s[44:45]
            s_xor_b64 s[62:63], s[62:63], s[44:45]
            s_or_b64 s[56:57], s[56:57], s[58:59]
            s_or_b64 s[60:61], s[60:61], s[62:63]
            s_or_b64 s[56:57], s[56:57], s[60:61]
            s_cbranch_scc1 L_q_remote
            global_store_dwordx4 v4, v[40:43], s[26:27]
            s_branch L_q_stored
            L_q_remote:
            """)
        A("""
        global_store_dwordx4 v4, v[40:43], s[26:27] sc1
        L_q_stored:
        s_mov_b64 exec, 1
        global_store_dword v52, v53, s[46:47] sc1
        s_mov_b64 exec, -1
        s_mov_b32 s32, 0
        s_mov_b32 s43, 1
        s_mov_b32 s35, 0
        """)
        if self.opt.get("st2") != "s":
            self.stamp(2)
        if self.opt.get("x_nopoll"):
            A("s_branch L_qdone")
        if self.opt.get("x_nopoll1"):
            A("s_cmp_eq_u32 s3, 1")
            A("s_cbranch_scc1 L_qdone")
        A(f"""
        L_qhint:
        s_load_dwordx8 s[56:63], s[46:47], 0 glc
        s_add_u32 s32, s32, 1
        s_cmp_ge_u32 s32, {SPIN_MAX}
        s_cbranch_scc1 L_qpoll
        s_waitcnt lgkmcnt(0)
        s_xor_b64 s[56:57], s[56:57], s[44:45]
        s_xor_b64 s[58:59], s[58:59], s[44:45]
        s_xor_b64 s[60:61], s[60:61], s[44:45]
        s_xor_b64 s[62:63], s[62:63], s[44:45]
        s_or_b64 s[56:57], s[56:57], s[58:59]
        s_or_b64 s[60:61], s[60:61], s[62:63]
        s_or_b64 s[56:57], s[56:57], s[60:61]
        s_or_b32 s43, s56, s57
        s_cmp_lt_u32 s43, 16
        s_cbranch_scc1 L_qpoll
        s_sleep {self.opt.get("hintsleep", 4)}
        s_branch L_qhint
        """)
        A("L_qpoll:")
        if self.opt.get("x_hintonly"):
            A("s_branch L_qdone")
        if self.diag:
            A("s_add_u32 s35, s35, 1")
        for k in range(4):
            A(f"global_load_dwordx4 v[{64+4*k}:{67+4*k}], v5, s[26:27] offset:{2048*k-4096} sc1")
        A("s_add_u32 s32, s32, 1")
        for k in range(4):
            r = 64 + 4 * k
            A(f"s_waitcnt vmcnt({3-k})")
            if k == 0:
                A(f"v_xor_b32 v6, s31, v{r+1}")
                A(f"v_mov_b32 v44, v{r}")
                A(f"v_mov_b32 v45, v{r+2}")
            else:
                A(f"v_bitop3_b32 v6, v{r+1}, s31, v6 bitop3:0xbe")
                A(f"v_add_f32 v44, v44, v{r}")
                A(f"v_add_f32 v45, v45, v{r+2}")
            A(f"v_bitop3_b32 v6, v{r+3}, s31, v6 bitop3:0xbe")
        A(f"""
        v_cmp_ne_u32 vcc, 0, v6
        s_cbranch_vccz L_qdone
        s_cmp_lt_u32 s32, {SPIN_MAX}
        s_cbranch_scc1 L_qhint
        L_qdone:
        v_cvt_pk_bf16_f32 v44, v44, v45
        v_lshlrev_b32 v22, 4, v2
        v_lshl_add_u32 v22, v3, 2, v22
        s_cmp_eq_u32 s3, 0
        s_cbranch_scc1 L_c0
        """)
        A(f"""
        v_mov_b32_dpp v45, v44 row_ror:8 row_mask:0xf bank_mask:0xf
        v_lshlrev_b32 v46, 16, v44
        v_and_b32 v47, 0xffff0000, v44
        v_mov_b32 v50, {GELU_K1}
        v_mul_f32 v48, v46, v46
        v_mul_f32 v49, v47, v47
        v_mul_f32 v48, v48, v46
        v_mul_f32 v49, v49, v47
        v_fma_f32 v48, v48, v50, v46
        v_fma_f32 v49, v49, v50, v47
        v_mul_f32 v48, {GELU_C}, v48
        v_mul_f32 v49, {GELU_C}, v49
        v_exp_f32 v48, v48
        v_exp_f32 v49, v49
        s_nop 0
        v_add_f32 v48, 1.0, v48
        v_add_f32 v49, 1.0, v49
        v_rcp_f32 v48, v48
        v_rcp_f32 v49, v49
        s_nop 0
        v_mul_f32 v46, v46, v48
        v_mul_f32 v47, v47, v49
        v_cvt_pk_bf16_f32 v44, v46, v47
        v_lshlrev_b32 v46, 16, v44
        v_and_b32 v47, 0xffff0000, v44
        v_lshlrev_b32 v48, 16, v45
        v_and_b32 v49, 0xffff0000, v45
        v_cmp_gt_u32 vcc, s53, v2
        v_mul_f32 v46, v46, v48
        v_mul_f32 v47, v47, v49
        v_cvt_pk_bf16_f32 v44, v46, v47
        v_cndmask_b32 v44, 0, v44, vcc
        ds_write_b32 v22, v44 offset:{L_H}
        s_waitcnt lgkmcnt(0)
        s_endpgm
        """)
        YG = int(self.opt.get("yg", 2))
        A(f"""
        L_c0:
        v_mov_b32 v21, {L_FLAG}
        v_mov_b32 v6, 1
        v_mov_b32 v7, s31
        ds_write_b32 v22, v44 offset:{L_Q}
        ds_write_b64 v21, v[6:7]
        """)
        if self.opt.get("st2") != "s":
            self.stamp(3)
        A(f"""
        v_and_b32 v4, 3, v0
        v_lshlrev_b32 v4, 3, v4
        s_lshl_b32 s54, s28, 7
        s_add_u32 s54, s54, {WS_ML}
        s_add_u32 s46, s26, s54
        s_addc_u32 s47, s27, 0
        s_lshl_b32 s54, s29, 4
        v_mov_b32 v24, s54
        s_lshl_b32 s54, s30, 10
        s_add_u32 s54, s54, {WS_Q}
        v_lshl_add_u32 v26, v0, 4, s54
        s_lshl_b32 s54, s28, 13
        s_add_u32 s54, s54, {WS_Q + 4096}
        v_lshl_add_u32 v27, v0, 4, s54
        s_lshl_b32 s54, s37, 16
        s_lshl_b32 s55, s38, 5
        s_add_u32 s54, s54, s55
        s_lshr_b32 s55, s37, 2
        s_xor_b32 s55, s55, {YG & 1}
        s_lshl_b32 s55, s55, 13
        {"s_add_u32 s54, s54, s55" if YG < 2 else ""}
        s_add_u32 s54, s54, {WS_Y}
        v_bfe_u32 v5, v0, 1, 3
        v_lshlrev_b32 v5, 10, v5
        v_lshl_add_u32 v5, v3, {14 if YG < 2 else 13}, v5
        v_and_b32 v6, 1, v0
        v_lshl_add_u32 v5, v6, 4, v5
        v_add_u32 v28, s54, v5
        v_lshl_add_u32 v29, v0, 1, s39
        v_lshlrev_b32 v30, 3, v0
        v_mov_b32 v31, {LOG2E}
        v_cmp_eq_u32 vcc, 0, v6
        s_lshl_b32 s54, s33, 16
        s_and_b32 s55, s33, 0xffff0000
        v_mov_b32 v20, s55
        v_mov_b32 v23, s54
        v_cndmask_b32 v20, v20, v23, vcc
        v_mov_b32 v13, s31
        v_mov_b32 v15, s31
        v_mov_b32 v32, s31
        v_mov_b32 v33, s31
        s_add_u32 s42, s31, 1
        v_mov_b32 v41, s42
        v_mov_b32 v43, s42
        {"s_mov_b32 s43, 1" if self.opt.get("nolocal") else ""}
        """)
        self.lds_wait("c", 21, 12, 4, 2)
        self.stamp(4)
        quad = ("quad_perm:[1,0,3,2]", "quad_perm:[2,3,0,1]")
        A(f"""
        ds_read_b64 v[8:9], v4 offset:{L_ML}
        s_waitcnt lgkmcnt(0)
        v_mov_b32 v12, v8
        """)
        self.row_allreduce("v_max_f32", 12, quad)
        A("""
        v_sub_f32 v8, v8, v12
        v_mul_f32 v8, v8, v31
        v_exp_f32 v8, v8
        s_nop 0
        v_mul_f32 v14, v8, v9
        """)
        self.row_allreduce("v_add_f32", 14, quad)
        A(f"""
        s_mov_b64 exec, 1
        global_store_dwordx4 v24, v[12:15], s[46:47] sc1
        s_mov_b64 exec, -1
        s_mov_b32 s32, 0
        {"s_branch L_mldone" if self.opt.get("x_noml") else ""}
        L_mlpoll:
        s_load_dwordx16 s[48:63], s[46:47], 0 glc
        s_load_dwordx16 s[64:79], s[46:47], 64 glc
        s_add_u32 s32, s32, 1
        s_waitcnt lgkmcnt(0)
        s_xor_b32 s80, s49, s31
        """)
        for k in range(1, 16):
            A(f"s_xor_b32 s81, s{49+2*k}, s31")
            A("s_or_b32 s80, s80, s81")
        A(f"""
        s_cmp_eq_u32 s80, 0
        s_cbranch_scc1 L_mldone
        s_sleep {self.opt.get("mlsleep", 4)}
        s_cmp_lt_u32 s32, {SPIN_MAX}
        s_cbranch_scc1 L_mlpoll
        L_mldone:
        v_mov_b32 v8, s48
        """)
        for k in range(1, 8):
            A(f"v_max_f32 v8, s{48+4*k}, v8")
        for k in range(8):
            A(f"v_sub_f32 v{64+k}, s{48+4*k}, v8")
        for k in range(8):
            A(f"v_mul_f32 v{64+k}, v{64+k}, v31")
        for k in range(8):
            A(f"v_exp_f32 v{64+k}, v{64+k}")
        A("v_mul_f32 v9, s50, v64")
        for k in range(1, 8):
            A(f"v_fmac_f32 v9, s{50+4*k}, v{64+k}")
        A("""
        v_rcp_f32 v9, v9
        s_mov_b32 s32, 0
        v_mov_b32 v10, 1
        ds_write_b64 v21, v[8:9] offset:32
        ds_write_b32 v21, v10 offset:24
        """)
        if self.opt.get("st2") == "y":
            self.stamp(1)
        A("""
        s_waitcnt vmcnt(0) lgkmcnt(0)
        s_barrier
        """)
        self.stamp(5)
        if self.opt.get("x_notail"):
            self.stamp(6)
            A("s_barrier")
            A("s_branch L_c0_end")
        for k in range(2):
            A(f"ds_read2st64_b64 v[{64+4*k}:{67+4*k}], v30 offset0:{L_OS//512+2*k} offset1:{L_OS//512+2*k+1}")
        A("""
        s_cmp_eq_u32 s43, 0
        s_waitcnt lgkmcnt(1)
        v_pk_add_f32 v[64:65], v[64:65], v[66:67]
        s_waitcnt lgkmcnt(0)
        v_pk_add_f32 v[68:69], v[68:69], v[70:71]
        v_add_f32 v40, v64, v68
        v_add_f32 v42, v65, v69
        s_cbranch_scc0 L_o_remote
        global_store_dwordx4 v26, v[40:43], s[26:27]
        L_opoll:
        """)
        if self.opt.get("st2") == "o":
            self.stamp(1)
        for k in range(8):
            A(f"global_load_dwordx4 v[{64+4*k}:{67+4*k}], v27, s[26:27] offset:{1024*k-4096} sc1")

        def chk(k, wait=True):
            r = 64 + 4 * k
            if wait:
                A(f"s_waitcnt vmcnt({7-k})")
                if k == 0 and self.opt.get("st2") == "o":
                    self.stamp(2)
            A(f"v_xor_b32 v{48+k}, s42, v{r+1}")
            A(f"v_bitop3_b32 v{48+k}, v{r+3}, s42, v{48+k} bitop3:0xbe")

        def anybad():
            A("""
            v_or3_b32 v6, v48, v49, v50
            v_or3_b32 v7, v51, v52, v53
            v_or3_b32 v6, v6, v54, v55
            v_or_b32 v6, v6, v7
            v_cmp_ne_u32 vcc, 0, v6
            """)

        def masks():
            for k in range(8):
                A(f"v_cmp_ne_u32 s[{64+2*k}:{65+2*k}], 0, v{48+k}")

        def reload():
            for k in range(8):
                A(f"s_mov_b64 exec, s[{64+2*k}:{65+2*k}]")
                A(f"global_load_dwordx4 v[{64+4*k}:{67+4*k}], v27, s[26:27] offset:{1024*k-4096} sc1")
            A("s_mov_b64 exec, -1")
        for k in range(8):
            chk(k)
        anybad()
        if self.opt.get("st2") == "o":
            self.stamp(3)
        A("s_cbranch_vccz L_osum")
        masks()
        reload()
        A(f"""
        L_oround:
        s_add_u32 s32, s32, 1
        s_cmp_lt_u32 s32, {SPIN_MAX}
        s_cbranch_scc0 L_osum
        """)
        masks()
        reload()
        A("s_waitcnt vmcnt(8)")
        for k in range(8):
            chk(k, False)
        anybad()
        A("""
        s_cbranch_vccnz L_oround
        L_osum:
        s_waitcnt vmcnt(0)
        v_add_f32 v44, v64, v68
        v_add_f32 v45, v66, v70
        v_add_f32 v46, v72, v76
        v_add_f32 v47, v74, v78
        v_add_f32 v56, v80, v84
        v_add_f32 v57, v82, v86
        v_add_f32 v58, v88, v92
        v_add_f32 v59, v90, v94
        v_pk_add_f32 v[44:45], v[44:45], v[46:47]
        v_pk_add_f32 v[56:57], v[56:57], v[58:59]
        v_pk_add_f32 v[44:45], v[44:45], v[56:57]
        """)
        A(f"""
        v_cvt_pk_bf16_f32 v44, v44, v45
        L_odone:
        ds_write_b32 v22, v44 offset:{L_OB}
        s_mov_b32 s34, s32
        s_mov_b32 s32, 0
        """)
        self.stamp(6)
        A(f"""
        s_waitcnt lgkmcnt(0)
        s_barrier
        s_mov_b64 vcc, -1
        {"global_store_dwordx4 v26, v[40:43], s[26:27] sc1" if self.opt.get("oclean") == "1" else ""}
        global_load_dwordx4 v[8:11], v28, s[26:27] sc1
        {"global_store_dwordx4 v26, v[40:43], s[26:27] sc1" if self.opt.get("oclean") == "2" else ""}
        s_branch L_yload
        L_ypoll:
        s_bcnt1_i32_b64 s48, vcc
        s_cmp_gt_u32 s48, {self.opt.get("yth", 16)}
        s_cbranch_scc1 L_ysleep
        L_yload:
        s_add_u32 s32, s32, 1
        s_cmp_ge_u32 s32, {SPIN_MAX}
        s_cbranch_scc1 L_ydone
        s_mov_b64 exec, vcc
        global_load_dwordx4 v[8:11], v28, s[26:27] sc1
        s_mov_b64 exec, -1
        s_waitcnt vmcnt(1)
        v_xor_b32 v6, s31, v9
        v_bitop3_b32 v6, v11, s31, v6 bitop3:0xbe
        v_cmp_ne_u32 vcc, 0, v6
        s_cbranch_vccnz L_ypoll
        L_ydone:
        {"s_memrealtime s[88:89]" if self.diag and self.opt.get("st2") == "y" else ""}
        s_waitcnt vmcnt(0)
        v_permlane32_swap_b32 v8, v10
        v_add_f32 v16, v8, v10
        v_add_f32 v18, v8, v10
        s_nop 1
        v_permlane16_swap_b32 v16, v18
        v_add_f32 v16, v16, v18
        """)
        self.row_allreduce("v_add_f32", 16, ("quad_perm:[2,3,0,1]", "row_ror:4", "row_ror:8"))
        self.round_bf16(16, 16)
        A("""
        v_add_f32 v12, v20, v16
        v_mov_b32 v18, v16
        """)
        self.round_bf16(12, 12)
        A("""
        v_permlane32_swap_b32 v16, v18
        v_add_f32 v12, v12, v18
        v_cvt_pk_bf16_f32 v12, v12, v12
        s_mov_b64 exec, 3
        global_store_short v29, v12, s[22:23] %s
        s_cmp_lg_u32 s30, 0
        s_cbranch_scc1 L_c0_end
        s_mov_b64 exec, 0xffff
        global_store_dwordx2 v30, v[32:33], s[26:27]
        L_c0_end:
        """ % self.opt.get("outpol", ""))
        self.stamp(7)
        self.dump_stamps(0, 8)
        if self.diag:
            A("""
            s_lshl_b32 s34, s34, 10
            s_lshl_b32 s32, s32, 20
            s_or_b32 s35, s35, s34
            s_or_b32 s35, s35, s32
            v_mov_b32 v2, s35
            v_mov_b32 v3, 0
            global_store_dwordx2 v1, v[2:3], s[26:27] offset:120
            """)
        if self.opt.get("dbgstamp"):
            A(f"""
            s_waitcnt vmcnt(0)
            v_mov_b32 v1, 0
            v_mov_b32 v2, 1
            global_atomic_add v3, v1, v2, s[24:25] offset:252 sc0 sc1
            s_waitcnt vmcnt(0)
            v_readfirstlane_b32 s48, v3
            s_cmp_lg_u32 s48, 255
            s_cbranch_scc1 L_end
            s_mov_b64 exec, -1
            v_mov_b32 v1, 0
            s_mov_b32 s48, {WS_STAMP}
            v_lshl_add_u32 v4, v0, 7, s48
            """)
            for k in range(16):
                src = 0 if k == 15 else k
                for q in range(4):
                    A(f"v_add_u32 v5, {q*8192 + 8*src}, v4")
                    A(f"global_load_dword v{8+q}, v5, s[26:27] sc1")
                A("s_waitcnt vmcnt(0)")
                op = "v_min_u32" if k == 15 else "v_max_u32"
                A(f"{op} v8, v8, v9")
                A(f"{op} v10, v10, v11")
                A(f"{op} v8, v8, v10")
                self.wave_reduce_to_sgpr(op, 8, 49)
                self.nop(2)
                A("v_mov_b32 v6, s49")
                A(f"global_store_dword v1, v6, s[24:25] offset:{4*k}")
                if k == int(self.opt.get("amp", -1)):
                    A("s_mov_b32 s50, s49")
            if int(self.opt.get("amp", -1)) >= 0:
                A(f"""
                s_sub_u32 s50, s50, s49
                s_mul_i32 s50, s50, {self.opt.get("ampk", 10)}
                s_min_u32 s50, s50, 100000
                s_memrealtime s[52:53]
                s_waitcnt lgkmcnt(0)
                L_amp:
                s_memrealtime s[54:55]
                s_waitcnt lgkmcnt(0)
                s_sub_u32 s54, s54, s52
                s_cmp_lt_u32 s54, s50
                s_cbranch_scc1 L_amp
                """)
        A(f"""
        s_endpgm
        L_ysleep:
        s_sleep {self.opt.get("ysleep", 4)}
        s_branch L_yload
        L_o_remote:
        global_store_dwordx4 v26, v[40:43], s[26:27] sc1
        s_branch L_opoll
        """)

    def dma(self, WPOL):
        A = self.A
        A(f"""
        s_mov_b32 s56, s12
        s_mov_b32 s57, s13
        s_mov_b32 s58, 0x400000
        s_mov_b32 s59, 0x20000
        s_mov_b32 s44, s20
        s_mov_b32 s45, s21
        s_mov_b32 s46, 1409024
        s_mov_b32 s47, 0x20000
        v_lshrrev_b32 v24, 3, v0
        v_and_b32 v25, 1, v3
        v_lshlrev_b32 v25, 1, v25
        v_and_b32 v26, 7, v0
        v_xor_b32 v25, v25, v26
        v_lshlrev_b32 v25, 4, v25
        v_lshl_add_u32 v25, v24, 10, v25
        v_xor_b32 v26, 64, v25
        s_lshl_b32 s49, s29, 7
        s_lshl_b32 s50, s28, 17
        s_add_u32 s50, s50, s49
        s_lshl_b32 s48, s34, 15
        s_add_u32 s50, s50, s48
        s_lshl_b32 s51, s34, 1
        s_add_u32 s48, s52, s51
        s_lshl_b32 s48, s48, 13
        s_add_u32 s48, s48, s49
        s_add_u32 s49, s48, 0x2000
        s_cmp_lt_u32 s51, s53
        s_cselect_b32 s54, 0, 0x40000000
        v_or_b32 v27, s54, v25
        s_add_u32 s51, s51, 1
        s_cmp_lt_u32 s51, s53
        s_cselect_b32 s54, 0, 0x40000000
        v_or_b32 v28, s54, v26
        s_lshl_b32 s51, s34, 11
        s_add_u32 m0, s51, {L_W + 16384}
        s_lshl_b32 s54, s34, 12
        buffer_load_dwordx4 v27, s[44:47], s48 offen {WPOL} lds
        s_add_u32 m0, s51, {L_W + 16384 + 1024}
        s_nop 0
        buffer_load_dwordx4 v28, s[44:47], s49 offen {WPOL} lds
        """)
        for jj in range(4):
            A(f"s_add_u32 m0, s54, {L_W + 1024*jj}")
            A(f"s_add_u32 s49, s50, {jj*0x2000}")
            A(f"buffer_load_dwordx4 v{25 + (jj & 1)}, s[56:59], s49 offen {WPOL} lds")

    def kv(self, KVPOL, WPOL):
        A = self.A
        pre = int(self.opt.get("pre", 4))
        YG = int(self.opt.get("yg", 2))
        dw = self.opt.get("diagwave", 7)
        pb = int(self.opt.get("pb", 2))
        A("""
        s_sub_u32 s34, s3, 2
        s_and_b32 s34, s34, 3
        s_lshl_b32 s48, s30, 17
        s_lshl_b32 s49, s34, %d
        s_add_u32 s48, s48, s49
        v_lshl_add_u32 v1, v0, 4, s48
        s_mov_b32 s38, 0x2000000
        s_mov_b32 s39, 0x20000
        s_cmp_ge_u32 s3, 6
        s_cbranch_scc1 L_val
        s_setprio 2
        s_waitcnt lgkmcnt(0)
        s_mov_b32 s36, s6
        s_mov_b32 s37, s7
        """ % (10 + pb))

        wk = int(self.opt.get("wk", 6))
        wv = int(self.opt.get("wv", 8))
        wv2 = int(self.opt.get("wv2", wv))
        vsw = int(self.opt.get("vsw", 32))

        def load(j, win=0):
            if win and j >= win:
                A(f"s_waitcnt vmcnt({win - 1})")
            off = (j & ((1 << pb) - 1)) * 1024 + (j >> pb) * (4096 << pb)
            if (off & 0xFFF) == 0:
                A(f"s_mov_b32 s48, {off}")
            A(f"buffer_load_dwordx4 v[{32+4*j}:{35+4*j}], v1, s[36:39], s48 offen offset:{off & 0xFFF} {KVPOL}")
        for j in range(32):
            if j == pre:
                A("s_barrier")
            if wk and j == int(self.opt.get("kdone", 31)):
                A(f"v_mov_b32 v20, {L_FLAG}")
                A("v_mov_b32 v4, 1")
                A("s_mov_b64 exec, 1")
                A("ds_add_u32 v20, v4 offset:20")
                A("s_mov_b64 exec, -1")
            load(j, wk)
        self.stamp(0)
        A(f"""
        v_and_b32 v4, 2, v0
        v_cmp_ne_u32 s[50:51], 0, v4
        v_and_b32 v4, 1, v0
        v_cmp_ne_u32 s[54:55], 0, v4
        v_mov_b32 v20, {L_FLAG}
        v_lshlrev_b32 v21, 4, v2
        v_mov_b32 v31, {LOG2E}
        """)
        self.lds_wait("q", 20, 0, 1, 2)
        A(f"""
        ds_read_b128 v[4:7], v21 offset:{L_Q}
        ds_read_b32 v22, v20 offset:4
        s_waitcnt vmcnt(16) lgkmcnt(0)
        v_readfirstlane_b32 s31, v22
        """)
        self.stamp(1)
        P = lambda j: 32 + 4 * j
        for n, g in enumerate((0, 16)):
            for half in ((range(16),) if n == 0 else (range(8), range(8, 16))):
                if n == 1:
                    A(f"s_waitcnt vmcnt({8 - half[0]})")
                for d in range(4):
                    for j in half:
                        r = P(g + j)
                        A(f"v_dot2_f32_bf16 v{r}, v{r+d}, v{4+d}, {'0' if d == 0 else 'v%d' % r}")
            for j in range(8):
                A(f"v_add_f32_dpp v{P(g+j)}, v{P(g+j)}, v{P(g+j)} row_ror:8 row_mask:0xf bank_mask:0x3")
            for j in range(8):
                A(f"v_add_f32_dpp v{P(g+j)}, v{P(g+j+8)}, v{P(g+j+8)} row_ror:8 row_mask:0xf bank_mask:0xc")
            for j in range(4):
                A(f"v_add_f32_dpp v{P(g+j)}, v{P(g+j)}, v{P(g+j)} row_shl:4 row_mask:0xf bank_mask:0x5")
            for j in range(4):
                A(f"v_add_f32_dpp v{P(g+j)}, v{P(g+j+4)}, v{P(g+j+4)} row_shr:4 row_mask:0xf bank_mask:0xa")
            for j in range(2):
                A(f"v_cndmask_b32 v{8+j}, v{P(g+j)}, v{P(g+j+2)}, s[50:51]")
                A(f"v_cndmask_b32 v{10+j}, v{P(g+j+2)}, v{P(g+j)}, s[50:51]")
            self.nop(1)
            A("v_add_f32_dpp v8, v10, v8 quad_perm:[2,3,0,1] row_mask:0xf bank_mask:0xf")
            A("v_add_f32_dpp v9, v11, v9 quad_perm:[2,3,0,1] row_mask:0xf bank_mask:0xf")
            A("v_cndmask_b32 v11, v9, v8, s[54:55]")
            A("v_cndmask_b32 v10, v8, v9, s[54:55]")
            self.nop(1)
            A(f"v_add_f32_dpp v{16+n}, v11, v10 quad_perm:[1,0,3,2] row_mask:0xf bank_mask:0xf")
        A(f"""
        v_cvt_pk_bf16_f32 v18, v16, v17
        v_lshlrev_b32 v16, 16, v18
        v_and_b32 v17, 0xffff0000, v18
        v_mul_f32 v16, {SCALE}, v16
        v_mul_f32 v17, {SCALE}, v17
        v_cvt_pk_bf16_f32 v18, v16, v17
        v_lshlrev_b32 v16, 16, v18
        v_and_b32 v17, 0xffff0000, v18
        v_max_f32 v18, v16, v17
        """)
        self.wave_reduce_to_sgpr("v_max_f32", 18, 49)
        A(f"""
        s_lshl_b32 s48, s34, 9
        s_add_u32 s48, s48, {L_P}
        v_lshl_add_u32 v19, v0, 2, s48
        ds_write2st64_b32 v19, v16, v17 offset0:0 offset1:1
        v_subrev_f32 v8, s49, v16
        v_subrev_f32 v9, s49, v17
        v_mul_f32 v8, v8, v31
        v_mul_f32 v9, v9, v31
        v_exp_f32 v8, v8
        v_exp_f32 v9, v9
        s_nop 0
        v_add_f32 v18, v8, v9
        """)
        self.row_allreduce("v_add_f32", 18)
        self.nop(2)
        A("v_add_f32_dpp v18, v18, v18 row_bcast:15 row_mask:0xa bank_mask:0xf")
        self.nop(2)
        A("v_add_f32_dpp v18, v18, v18 row_bcast:31 row_mask:0xc bank_mask:0xf")
        A(f"""
        s_lshl_b32 s48, s34, 3
        v_mov_b32 v16, s48
        v_mov_b32 v19, s49
        v_mov_b32 v17, 1
        s_mov_b32 exec_lo, 0
        s_mov_b32 exec_hi, 0x80000000
        ds_write2_b32 v16, v19, v18 offset0:{L_ML//4} offset1:{L_ML//4+1}
        ds_add_u32 v20, v17 offset:12
        s_mov_b64 exec, -1
        s_setprio 0
        """)
        self.stamp(2)
        if int(self.opt.get("dmaat", 32)) >= 0:
            self.lds_wait("v", 20, 16, int(self.opt.get("dmacnt", 4)), 1)
        if not self.opt.get("x_nodma"):
            self.dma(WPOL)
        self.stamp(3)
        A(f"""
        v_bfe_u32 v24, v2, 3, 1
        v_and_b32 v25, 1, v3
        v_lshl_add_u32 v24, v25, 1, v24
        v_xor_b32 v24, s34, v24
        v_lshlrev_b32 v24, 5, v24
        v_lshl_add_u32 v24, v3, 10, v24
        v_lshrrev_b32 v25, 2, v2
        v_lshl_add_u32 v24, v25, 7, v24
        v_and_b32 v25, 3, v2
        v_lshl_add_u32 v24, v25, 3, v24
        v_lshlrev_b32 v27, 4, v3
        v_mov_b32 v26, 1
        s_lshl_b32 s48, s29, 16
        s_and_b32 s49, s28, 7
        s_lshl_b32 s49, s49, 10
        s_add_u32 s48, s48, s49
        s_lshr_b32 s49, s28, 3
        s_lshl_b32 s49, s49, {14 if YG < 2 else 13}
        s_add_u32 s48, s48, s49
        s_lshr_b32 s49, s29, 2
        s_xor_b32 s49, s49, {YG & 1}
        s_lshl_b32 s49, s49, 13
        {"s_add_u32 s48, s48, s49" if YG < 2 else ""}
        s_lshl_b32 s49, s34, 8
        s_add_u32 s48, s48, s49
        s_add_u32 s48, s48, {WS_Y}
        v_lshl_add_u32 v29, v0, 4, s48
        s_waitcnt lgkmcnt(0)
        s_barrier
        """)
        self.stamp(4)
        A(f"""
        ds_read_b128 v[48:51], v27 offset:{L_H}
        ds_read_b128 v[52:55], v27 offset:{L_H + 64}
        s_mov_b64 exec, 1
        s_waitcnt vmcnt(0)
        ds_add_u32 v20, v26 offset:8
        s_mov_b64 exec, -1
        """)
        self.lds_wait("w", 20, 8, 4, 0, tmp=26)
        for kk in range(2):
            A(f"ds_read_b64_tr_b16 v[{112+4*kk}:{113+4*kk}], v24 offset:{L_W + 16384 + 4096*kk}")
            A(f"ds_read_b64_tr_b16 v[{114+4*kk}:{115+4*kk}], v24 offset:{L_W + 16384 + 4096*kk + 512}")
        for kk in range(4):
            A(f"ds_read_b64_tr_b16 v[{96+4*kk}:{97+4*kk}], v24 offset:{L_W + 4096*kk}")
            A(f"ds_read_b64_tr_b16 v[{98+4*kk}:{99+4*kk}], v24 offset:{L_W + 4096*kk + 512}")
        A("""
        s_waitcnt lgkmcnt(8)
        v_mfma_f32_16x16x32_bf16 v[20:23], v[48:51], v[112:115], 0
        v_mfma_f32_16x16x32_bf16 v[20:23], v[52:55], v[116:119], v[20:23]
        v_mov_b32 v5, s31
        v_mov_b32 v7, s31
        s_nop 5
        v_mov_b32 v6, v20
        s_waitcnt lgkmcnt(0)
        """)
        self.stamp(6)
        A("s_barrier")
        for kk in range(4):
            A(f"ds_read_b128 v[{32+4*kk}:{35+4*kk}], v27 offset:{L_OB + 64*kk}")
        for kk in range(4):
            A(f"s_waitcnt lgkmcnt({3-kk})")
            c = "0" if kk == 0 else "v[16:19]"
            A(f"v_mfma_f32_16x16x32_bf16 v[16:19], v[{32+4*kk}:{35+4*kk}], v[{96+4*kk}:{99+4*kk}], {c}")
        A("""
        s_nop 6
        s_mov_b64 exec, 0xffff
        v_mov_b32 v4, v16
        global_store_dwordx4 v29, v[4:7], s[26:27] sc1
        """)
        if self.diag and dw < 4:
            A(f"s_cmp_lg_u32 s34, {dw}")
            A("s_cbranch_scc1 L_end")
            self.stamp(5)
            self.dump_stamps(8, 7)
        A("s_endpgm")
        A(f"""
        L_val:
        s_setprio 1
        v_and_b32 v4, 2, v2
        v_cmp_eq_u32 vcc, 0, v4
        v_mov_b32 v5, 0xffff0000
        v_mov_b32 v6, 0xffff
        v_cndmask_b32 v5, v5, v6, vcc
        v_and_b32 v4, 13, v2
        """)
        for d in range(4):
            A(f"v_cmp_eq_u32 vcc, {4*d}, v4")
            self.nop(2)
            A(f"v_cndmask_b32 v{8+d}, 0, v5, vcc")
        A(f"""
        v_mov_b32 v20, {L_FLAG}
        s_lshl_b32 s48, s34, 9
        s_add_u32 s49, s48, {L_P}
        v_lshl_add_u32 v19, v0, 2, s49
        s_add_u32 s49, s48, {L_OS}
        v_lshl_add_u32 v18, v0, 3, s49
        v_mov_b32 v23, {LOG2E}
        v_mov_b32 v6, 1
        s_waitcnt lgkmcnt(0)
        s_mov_b32 s36, s8
        s_mov_b32 s37, s9
        s_barrier
        """)
        if wk:
            self.lds_wait("k", 20, 20, 4, 1)
        dmaat = int(self.opt.get("dmaat", 32))
        for j in range(33):
            if j == dmaat:
                A("s_mov_b64 exec, 1")
                A("ds_add_u32 v20, v6 offset:16")
                A("s_mov_b64 exec, -1")
            if j < 32:
                load(j, wv if j < vsw else wv2)
        self.stamp(0)
        self.lds_wait("p", 20, 24, 1, 1)
        A(f"""
        ds_read2st64_b32 v[16:17], v19 offset0:0 offset1:1
        ds_read_b64 v[4:5], v20 offset:32
        s_waitcnt lgkmcnt(0)
        v_sub_f32 v16, v16, v4
        v_sub_f32 v17, v17, v4
        v_mul_f32 v16, v16, v23
        v_mul_f32 v17, v17, v23
        v_exp_f32 v16, v16
        v_exp_f32 v17, v17
        s_nop 0
        v_mul_f32 v16, v16, v5
        v_mul_f32 v17, v17, v5
        v_cvt_pk_bf16_f32 v16, v16, v16
        v_cvt_pk_bf16_f32 v17, v17, v17
        s_nop 0
        """)
        self.stamp(1)

        def prep(j):
            a = 24 + 4 * (j & 1)
            for d in range(4):
                A(f"v_and_b32_dpp v{a+d}, v{16 + (j >> 4)}, v{8+d} row_newbcast:{j & 15} row_mask:0xf bank_mask:0xf")
        prep(0)
        for j in range(32):
            if j < 31:
                prep(j + 1)
            else:
                self.nop(1)
            A(f"s_waitcnt vmcnt({31-j})")
            if j == 31:
                self.stamp(5)
            if j == 20:
                self.stamp(2)
            a = 24 + 4 * (j & 1)
            c = "0" if j == 0 else "v[12:15]"
            A(f"v_mfma_f32_16x16x32_bf16 v[12:15], v[{a}:{a+3}], v[{32+4*j}:{35+4*j}], {c}")
        A("""
        s_nop 7
        ds_write2_b32 v18, v12, v14 offset0:0 offset1:1
        s_waitcnt lgkmcnt(0)
        s_barrier
        """)
        self.stamp(4)
        if self.diag and dw >= 4:
            A(f"s_cmp_lg_u32 s34, {dw - 4}")
            A("s_cbranch_scc1 L_end")
            self.stamp(3)
            self.stamp(6)
            self.dump_stamps(8, 7)


if __name__ == "__main__":
    out = sys.argv[1] if len(sys.argv) > 1 else "k1.s"
    opts = dict(a.split("=") for a in sys.argv[2:])
    diag = bool(int(opts.pop("diag", "0")))
    if "diagwave" in opts:
        opts["diagwave"] = int(opts["diagwave"])
    open(out, "w").write(Gen(diag, **opts).build())
```

```python
import sys

NAME = "parallel_sum__gqa_block_cached__geglu_ffn__decode"

WS_EPOCH = 0x0
WS_HINT = 0x4000
WS_PRES = 0x8000
WS_Q = 0x10000
WS_G = 0x50000
WS_ML = 0x90000
WS_O = 0xA0000
WS_Y = 0x100000
WS_STAMP = 0x8000000
L_Q = 0x000
L_H = 0x100
L_OB = 0x200
L_FLAG = 0x300
L_ML = 0x340
L_OS = 0x400
L_P = 0xC00
L_W = 0x2000
LDS_BYTES = 98304
SPIN_MAX = 1 << 20

LOG2E = 0x3FB8AA3B
SCALE = 0x3DB504F3
EPS = 0x3727C5AC
INV512 = 0x3B000000
GELU_K1 = 0x3D372713
GELU_C = 0xC0135761


DOC = """
One persistent workgroup per CU (256 in total). Workgroup (h, i) owns keys [512 i, 512 i + 512) of
head h, rows [128 (i/2), +128) of one half of the head's wq columns and of w_gate (even i) or w_up
(odd i) for the group's 40 or 48 FFN columns, and the 64-column tile i of wo rows [128 h, +128)
and of the matching w_down rows.
Waves: 0 = q projection + cross-workgroup tail, 1 = gate/up projection, 2..5 = keys, 6..9 = values.
Hand-offs go through d_ws as 8-byte {value, tag} granules. The tag is derived from a word of d_ws
that the launch leaves changed, so granules of an earlier launch never validate.
  1. partial q / gate / up sums    -> the eight workgroups of the head
  2. (softmax max, sum)            -> the eight workgroups of the head
  3. partial o                     -> the eight workgroups of the head (through the shared L2 when
                                      all eight report the same XCC id, device scope otherwise)
  4. partial attention / FFN rows  -> 256 consumers, two output columns each
bf16 roundings follow the reference step by step.
"""


class Gen:
    def __init__(self, diag=False, **opt):
        self.L = []
        self.diag = diag
        self.opt = opt

    def A(self, s):
        for line in s.split("\n"):
            line = line.strip()
            if line:
                self.L.append(line)

    def nop(self, n):
        if n > 0:
            self.A(f"s_nop {n-1}")

    def stamp(self, i):
        if self.diag:
            self.A(f"s_memrealtime s[{84+2*i}:{85+2*i}]")

    def dump_stamps(self, first, n):
        if not self.diag:
            return
        A = self.A
        A("s_waitcnt lgkmcnt(0)")
        A("s_mov_b64 exec, 1")
        A(f"s_lshl_b32 s48, s2, 7")
        A(f"s_add_u32 s48, s48, {WS_STAMP + 8*first}")
        A("v_mov_b32 v1, s48")
        for k in range(n):
            A(f"v_mov_b32 v2, s{84+2*k}")
            A(f"v_mov_b32 v3, s{85+2*k}")
            A(f"global_store_dwordx2 v1, v[2:3], s[26:27] offset:{8*k} sc1")
            A("s_nop 1")

    def row_allreduce(self, op, v, steps=("row_ror:8", "row_ror:4", "row_ror:2", "row_ror:1")):
        for st in steps:
            self.nop(2)
            self.A(f"{op}_dpp v{v}, v{v}, v{v} {st} row_mask:0xf bank_mask:0xf")

    def wave_reduce_to_sgpr(self, op, v, s):
        self.row_allreduce(op, v)
        self.nop(2)
        self.A(f"{op}_dpp v{v}, v{v}, v{v} row_bcast:15 row_mask:0xa bank_mask:0xf")
        self.nop(2)
        self.A(f"{op}_dpp v{v}, v{v}, v{v} row_bcast:31 row_mask:0xc bank_mask:0xf")
        self.nop(1)
        self.A(f"v_readlane_b32 s{s}, v{v}, 63")

    def oct_allreduce(self, op, v):
        self.row_allreduce(op, v, ("quad_perm:[1,0,3,2]", "quad_perm:[2,3,0,1]", "row_half_mirror"))

    def lds_wait(self, name, vaddr, off, target, sleep, tmp=7):
        self.A(f"""
        s_mov_b32 s32, 0
        L_wait_{name}:
        ds_read_b32 v{tmp}, v{vaddr} offset:{off}
        s_add_u32 s32, s32, 1
        s_waitcnt lgkmcnt(0)
        v_readfirstlane_b32 s48, v{tmp}
        s_cmp_ge_u32 s48, {target}
        s_cbranch_scc1 L_go_{name}
        {f"s_sleep {sleep}" if sleep else ""}
        s_cmp_lt_u32 s32, {SPIN_MAX}
        s_cbranch_scc1 L_wait_{name}
        L_go_{name}:
        """)

    def round_bf16(self, dst, src):
        self.A(f"v_cvt_pk_bf16_f32 v{dst}, v{src}, v{src}")
        self.A(f"v_and_b32 v{dst}, 0xffff0000, v{dst}")

    def build(self):
        A = self.A
        o = self.opt
        KVPOL = o.get("kvpol", "nt")
        WPOL = o.get("wpol", "nt")
        A(f"; @launch grid=(256,1,1) block=(640,1,1) lds={self.opt.get('lds', LDS_BYTES)}")
        for c in DOC.strip().split("\n"):
            A("; " + c if c else ";")
        A('.amdgcn_target "amdgcn-amd-amdhsa--gfx950"')
        A(".text")
        A(f".globl {NAME}_kernel")
        A(".p2align 8")
        A(f".type {NAME}_kernel,@function")
        A(f"{NAME}_kernel:")
        self.stamp(0)
        A("""
        s_cmp_ge_u32 s2, 0x100
        s_cbranch_scc1 L_end
        s_load_dwordx16 s[4:19], s[0:1], 0
        s_load_dwordx8 s[20:27], s[0:1], 64
        """)
        if int(o.get("cpf", 1)):
            self.A("; pull this kernel's own code into L2 while the argument loads are in flight")
            A(f"""
            s_getpc_b64 s[48:49]
            v_lshlrev_b32 v4, 4, v0
            s_and_b32 s48, s48, 0xffffff00
            v_min_u32 v4, (L_last-{NAME}_kernel-16)&0xfffffff0, v4
            v_mov_b32 v5, 0
            v_lshl_add_u64 v[4:5], v[4:5], 0, s[48:49]
            global_load_dwordx4 v[60:63], v[4:5], off {o.get("cpfpol", "")}
            """)
        A("""
        v_lshrrev_b32 v1, 6, v0
        v_and_b32 v0, 63, v0
        """)
        if o.get("map", "xcd") == "xcd":
            A("""
            s_and_b32 s28, s2, 7
            s_lshl_b32 s28, s28, 2
            v_readfirstlane_b32 s3, v1
            s_bfe_u32 s29, s2, 0x20003
            s_add_u32 s28, s28, s29
            s_lshr_b32 s29, s2, 5
            s_lshl_b32 s30, s28, 3
            s_add_u32 s30, s30, s29
            s_and_b32 s48, s2, 7
            s_mul_i32 s52, s48, 43
            s_add_u32 s53, s52, 43
            s_lshr_b32 s52, s52, 3
            s_lshr_b32 s53, s53, 3
            s_sub_u32 s53, s53, s52
            s_and_b32 s48, s28, 3
            s_mul_i32 s48, s48, s53
            s_lshl_b32 s52, s52, 2
            s_add_u32 s52, s52, s48
            """)
        else:
            A("""
            s_lshr_b32 s28, s2, 3
            s_and_b32 s29, s2, 7
            v_readfirstlane_b32 s3, v1
            s_mov_b32 s30, s2
            s_mul_i32 s52, s28, 43
            s_add_u32 s53, s52, 43
            s_lshr_b32 s52, s52, 3
            s_lshr_b32 s53, s53, 3
            s_sub_u32 s53, s53, s52
            """)
        A("""
        v_and_b32 v2, 15, v0
        v_lshrrev_b32 v3, 4, v0
        s_cmp_lt_u32 s3, 2
        s_cbranch_scc1 L_ctrl
        """)
        self.kv(KVPOL, o.get("wopol", WPOL))
        A("s_endpgm")
        if o.get("lay", "far") == "far":
            A("L_ctrl:")
            self.ctrl(o.get("wqpol", WPOL))
        self.ctrl2(o.get("wqpol", WPOL))
        A("L_end:")
        A("s_endpgm")
        A("L_last:")
        A('.section .rodata,"a"')
        A(".p2align 6")
        A(f".amdhsa_kernel {NAME}_kernel")
        A("  .amdhsa_next_free_vgpr 160")
        A("  .amdhsa_next_free_sgpr 102")
        A("  .amdhsa_accum_offset 160")
        A("  .amdhsa_group_segment_fixed_size 0")
        A("  .amdhsa_kernarg_size 96")
        A("  .amdhsa_user_sgpr_count 2")
        A("  .amdhsa_user_sgpr_kernarg_segment_ptr 1")
        A("  .amdhsa_system_sgpr_workgroup_id_x 1")
        A(".end_amdhsa_kernel")
        return "\n".join(self.L) + "\n"

    def ctrl(self, WPOL):
        A = self.A
        A(f"""
        s_setprio 3
        s_movk_i32 s48, 2752
        s_sub_u32 s50, s53, 1
        s_cmp_eq_u32 s3, 0
        s_cselect_b32 s48, 0x2000, s48
        s_cselect_b32 s50, 7, s50
        s_lshr_b32 s51, s29, 1
        s_lshl_b32 s51, s51, 7
        v_lshl_add_u32 v4, v3, 5, s51
        v_lshrrev_b32 v5, 3, v2
        v_lshl_add_u32 v6, v5, 4, v4
        v_and_b32 v5, 7, v2
        v_min_u32 v5, s50, v5
        v_mul_lo_u32 v6, v6, s48
        v_lshl_add_u32 v22, v5, 4, v6
        v_and_b32 v5, 1, v2
        v_lshl_add_u32 v4, v5, 4, v4
        v_lshlrev_b32 v4, 1, v4
        v_lshlrev_b32 v5, 4, v0
        v_mov_b32 v7, 0
        v_mov_b32 v20, {L_FLAG}
        s_lshl_b32 s54, s28, 1
        s_and_b32 s51, s29, 1
        s_add_u32 s54, s54, s51
        s_lshl_b32 s54, s54, 7
        s_lshl_b32 s55, s52, 4
        ds_write2_b32 v20, v7, v7 offset0:2 offset1:3
        ds_write2_b32 v20, v7, v7 offset0:0 offset1:4
        ds_write2_b32 v20, v7, v7 offset0:5 offset1:6
        s_waitcnt lgkmcnt(0)
        {"s_memrealtime s[88:89]" if self.diag and self.opt.get("st2") == "s" else ""}
        global_load_dword v21, v7, s[26:27] sc1
        global_load_dwordx4 v[16:19], v5, s[4:5]
        global_load_dwordx4 v[8:11], v4, s[4:5]
        global_load_dwordx4 v[12:15], v4, s[4:5] offset:16
        s_cmp_eq_u32 s51, 0
        s_cselect_b64 s[56:57], s[16:17], s[18:19]
        s_cmp_eq_u32 s3, 0
        s_cselect_b64 s[56:57], s[10:11], s[56:57]
        s_cselect_b32 s54, s54, s55
        s_add_u32 s56, s56, s54
        s_addc_u32 s57, s57, 0
        """)
        if self.opt.get("x_noq"):
            A("s_mov_b32 s48, 0")
        if self.opt.get("x_nog"):
            A("s_cmp_eq_u32 s3, 0")
            A("s_cselect_b32 s48, s48, 0")
        for j in range(16):
            A(f"global_load_dwordx4 v[{64+4*j}:{67+4*j}], v22, s[56:57] {WPOL}")
            if j < 15:
                A("s_add_u32 s56, s56, s48")
                A("s_addc_u32 s57, s57, 0")
        if self.opt.get("st2") == "s":
            self.stamp(3)
        A("s_barrier")
        if self.opt.get("lay", "far") != "far":
            A("s_branch L_ctrl2")

    def ctrl2(self, WPOL):
        A = self.A
        A("L_ctrl2:")
        NT = 0
        if int(self.opt.get("touch", 0)):
            self.A("; one-lane loads that bring the address translations of later-used buffers into this CU")
            NT = 4
            A("""
            s_lshl_b32 s54, s30, 17
            v_mov_b32 v4, s54
            s_lshl_b32 s54, s28, 17
            v_mov_b32 v5, s54
            s_lshl_b32 s54, s52, 13
            v_mov_b32 v6, s54
            s_mov_b64 exec, 1
            global_load_dword v56, v4, s[8:9] nt
            global_load_dword v57, v5, s[12:13] nt
            global_load_dword v58, v6, s[20:21] nt
            global_load_dword v59, v7, s[22:23] nt
            s_mov_b64 exec, -1
            """)
        self.stamp(1)
        A("""
        """)
        if self.opt.get("ocol", "x") == "x":
            A("""
            s_lshr_b32 s37, s28, 2
            s_and_b32 s38, s30, 31
            """)
        else:
            A("""
            s_mov_b32 s37, s29
            s_mov_b32 s38, s28
            """)
        A("""
        s_lshl_b32 s54, s37, 7
        s_lshl_b32 s55, s38, 2
        s_add_u32 s39, s54, s55
        s_load_dword s33, s[4:5], s39
        """)
        A("""
        v_and_b32 v4, 2, v2
        v_cmp_eq_u32 vcc, 0, v4
        v_mov_b32 v5, 0x01000c0c
        v_mov_b32 v6, 0x0c0c0100
        v_cndmask_b32 v5, v5, v6, vcc
        v_mov_b32 v6, 0x03020c0c
        v_mov_b32 v7, 0x0c0c0302
        v_cndmask_b32 v6, v6, v7, vcc
        v_and_b32 v4, 12, v2
        v_mov_b32 v7, 0x0c0c0c0c
        """)
        for d in range(4):
            A(f"v_cmp_eq_u32 vcc, {4*d}, v4")
            self.nop(2)
            A(f"v_cndmask_b32 v{24+2*d}, v7, v5, vcc")
            A(f"v_cndmask_b32 v{25+2*d}, v7, v6, vcc")
        A(f"s_waitcnt vmcnt({18+NT})")
        A("v_or_b32 v21, 15, v21")
        A("v_add_u32 v21, 1, v21")
        for k in range(4):
            A(f"v_lshlrev_b32 v{44+2*k}, 16, v{16+k}")
            A(f"v_and_b32 v{45+2*k}, 0xffff0000, v{16+k}")
        A("v_readfirstlane_b32 s31, v21")
        QL = int(self.opt.get("qlocal", 0))
        A(f"""
        s_getreg_b32 s44, hwreg(HW_REG_XCC_ID, 0, 4)
        s_lshl_b32 s54, s28, 7
        s_add_u32 s54, s54, {WS_PRES}
        s_add_u32 s40, s26, s54
        s_addc_u32 s41, s27, 0
        s_or_b32 s44, s44, s31
        s_mov_b32 s45, s44
        s_lshl_b32 s55, s29, 2
        v_mov_b32 v52, s55
        v_mov_b32 v53, s44
        """)
        if QL:
            A("""
            s_mov_b64 exec, 1
            global_store_dword v52, v53, s[40:41] sc1
            s_mov_b64 exec, -1
            """)
            NT += 1
        A("""
        v_add_f32 v4, v44, v45
        v_add_f32 v5, v46, v47
        v_add_f32 v6, v48, v49
        v_add_f32 v7, v50, v51
        v_add_f32 v4, v4, v5
        v_add_f32 v6, v6, v7
        v_add_f32 v4, v4, v6
        """)
        self.wave_reduce_to_sgpr("v_add_f32", 4, 54)
        A(f"v_mov_b32 v5, {INV512}")
        self.nop(1)
        A("v_mul_f32 v20, s54, v5")
        for k in range(8):
            A(f"v_sub_f32 v{44+k}, v{44+k}, v20")
        A("v_mul_f32 v4, v44, v44")
        for k in range(1, 8):
            A(f"v_fmac_f32 v4, v{44+k}, v{44+k}")
        self.wave_reduce_to_sgpr("v_add_f32", 4, 54)
        self.round_bf16(20, 20)
        A("v_mul_f32 v4, s54, v5")
        self.round_bf16(4, 4)
        A(f"v_add_f32 v4, {EPS}, v4")
        self.round_bf16(4, 4)
        A("v_sqrt_f32 v4, v4")
        self.nop(1)
        self.round_bf16(4, 4)
        A("v_rcp_f32 v6, v4")
        A("v_mov_b32 v21, v20")
        A("v_mov_b32 v5, v4")
        A("v_mov_b32 v7, v6")
        A(f"s_waitcnt vmcnt({16+NT})")
        for k in range(8):
            x = 8 + k
            A(f"""
            v_lshlrev_b32 v44, 16, v{x}
            v_and_b32 v45, 0xffff0000, v{x}
            v_pk_add_f32 v[44:45], v[44:45], v[20:21] neg_lo:[0,1] neg_hi:[0,1]
            v_cvt_pk_bf16_f32 v46, v44, v45
            v_lshlrev_b32 v44, 16, v46
            v_and_b32 v45, 0xffff0000, v46
            v_pk_mul_f32 v[46:47], v[44:45], v[6:7]
            v_pk_fma_f32 v[44:45], v[46:47], v[4:5], v[44:45] neg_lo:[1,0,0] neg_hi:[1,0,0]
            v_pk_fma_f32 v[46:47], v[44:45], v[6:7], v[46:47]
            v_cvt_pk_bf16_f32 v{x}, v46, v47
            """)

        if QL:
            A("s_load_dwordx8 s[56:63], s[40:41], 0 glc")

        def perms(j):
            a = 32 + 4 * (j & 1)
            for d in range(4):
                A(f"v_perm_b32 v{a+d}, v{8+(j>>1)}, v{8+(j>>1)}, v{24+2*d+(j&1)}")
        perms(0)
        for j in range(16):
            if j < 15:
                perms(j + 1)
            else:
                self.nop(2)
            A(f"s_waitcnt vmcnt({15-j+NT})")
            a = 32 + 4 * (j & 1)
            c = "0" if j == 0 else "v[40:43]"
            A(f"v_mfma_f32_16x16x32_bf16 v[40:43], v[{a}:{a+3}], v[{64+4*j}:{67+4*j}], {c}")
        A(f"""
        s_mul_i32 s54, s3, {WS_G - WS_Q}
        s_add_u32 s54, s54, {WS_Q}
        s_lshl_b32 s55, s30, 10
        s_add_u32 s55, s55, s54
        v_and_b32 v6, 7, v2
        v_lshl_add_u32 v6, v3, 3, v6
        v_lshl_add_u32 v4, v6, 4, s55
        s_lshl_b32 s55, s28, 13
        s_add_u32 s55, s55, s54
        s_add_u32 s55, s55, 4096
        v_lshl_add_u32 v5, v6, 4, s55
        v_lshrrev_b32 v6, 3, v2
        v_lshl_add_u32 v5, v6, 10, v5
        v_add_f32_dpp v40, v41, v40 row_ror:8 row_mask:0xf bank_mask:0xf
        v_add_f32_dpp v42, v43, v42 row_ror:8 row_mask:0xf bank_mask:0xf
        s_lshl_b32 s54, s28, 8
        s_lshl_b32 s55, s3, 7
        s_add_u32 s54, s54, s55
        s_add_u32 s54, s54, {WS_HINT}
        v_mov_b32 v41, s31
        v_mov_b32 v43, s31
        s_add_u32 s46, s26, s54
        s_addc_u32 s47, s27, 0
        s_mov_b32 exec_lo, 0x00ff00ff
        s_mov_b32 exec_hi, 0x00ff00ff
        """)
        if QL:
            A("""
            s_waitcnt lgkmcnt(0)
            s_xor_b64 s[56:57], s[56:57], s[44:45]
            s_xor_b64 s[58:59], s[58:59], s[44:45]
            s_xor_b64 s[60:61], s[60:61], s[44:45]
            s_xor_b64 s[62:63], s[62:63], s[44:45]
            s_or_b64 s[56:57], s[56:57], s[58:59]
            s_or_b64 s[60:61], s[60:61], s[62:63]
            s_or_b64 s[56:57], s[56:57], s[60:61]
            s_cbranch_scc1 L_q_remote
            global_store_dwordx4 v4, v[40:43], s[26:27]
            s_branch L_q_stored
            L_q_remote:
            """)
        A("""
        global_store_dwordx4 v4, v[40:43], s[26:27] sc1
        L_q_stored:
        s_mov_b64 exec, 1
        global_store_dword v52, v53, s[46:47] sc1
        s_mov_b64 exec, -1
        s_mov_b32 s32, 0
        s_mov_b32 s43, 1
        s_mov_b32 s35, 0
        """)
        if self.opt.get("st2") != "s":
            self.stamp(2)
        if self.opt.get("x_nopoll"):
            A("s_branch L_qdone")
        if self.opt.get("x_nopoll1"):
            A("s_cmp_eq_u32 s3, 1")
            A("s_cbranch_scc1 L_qdone")
        A(f"""
        L_qhint:
        s_load_dwordx8 s[56:63], s[46:47], 0 glc
        s_add_u32 s32, s32, 1
        s_cmp_ge_u32 s32, {SPIN_MAX}
        s_cbranch_scc1 L_qpoll
        s_waitcnt lgkmcnt(0)
        s_xor_b64 s[56:57], s[56:57], s[44:45]
        s_xor_b64 s[58:59], s[58:59], s[44:45]
        s_xor_b64 s[60:61], s[60:61], s[44:45]
        s_xor_b64 s[62:63], s[62:63], s[44:45]
        s_or_b64 s[56:57], s[56:57], s[58:59]
        s_or_b64 s[60:61], s[60:61], s[62:63]
        s_or_b64 s[56:57], s[56:57], s[60:61]
        s_or_b32 s43, s56, s57
        s_cmp_lt_u32 s43, 16
        s_cbranch_scc1 L_qpoll
        s_sleep {self.opt.get("hintsleep", 4)}
        s_branch L_qhint
        """)
        A("L_qpoll:")
        if self.opt.get("x_hintonly"):
            A("s_branch L_qdone")
        if self.diag:
            A("s_add_u32 s35, s35, 1")
        for k in range(4):
            A(f"global_load_dwordx4 v[{64+4*k}:{67+4*k}], v5, s[26:27] offset:{2048*k-4096} sc1")
        A("s_add_u32 s32, s32, 1")
        for k in range(4):
            r = 64 + 4 * k
            A(f"s_waitcnt vmcnt({3-k})")
            if k == 0:
                A(f"v_xor_b32 v6, s31, v{r+1}")
                A(f"v_mov_b32 v44, v{r}")
                A(f"v_mov_b32 v45, v{r+2}")
            else:
                A(f"v_bitop3_b32 v6, v{r+1}, s31, v6 bitop3:0xbe")
                A(f"v_add_f32 v44, v44, v{r}")
                A(f"v_add_f32 v45, v45, v{r+2}")
            A(f"v_bitop3_b32 v6, v{r+3}, s31, v6 bitop3:0xbe")
        A(f"""
        v_cmp_ne_u32 vcc, 0, v6
        s_cbranch_vccz L_qdone
        s_cmp_lt_u32 s32, {SPIN_MAX}
        s_cbranch_scc1 L_qhint
        L_qdone:
        v_cvt_pk_bf16_f32 v44, v44, v45
        v_lshlrev_b32 v22, 4, v2
        v_lshl_add_u32 v22, v3, 2, v22
        s_cmp_eq_u32 s3, 0
        s_cbranch_scc1 L_c0
        """)
        A(f"""
        v_mov_b32_dpp v45, v44 row_ror:8 row_mask:0xf bank_mask:0xf
        v_lshlrev_b32 v46, 16, v44
        v_and_b32 v47, 0xffff0000, v44
        v_mov_b32 v50, {GELU_K1}
        v_mul_f32 v48, v46, v46
        v_mul_f32 v49, v47, v47
        v_mul_f32 v48, v48, v46
        v_mul_f32 v49, v49, v47
        v_fma_f32 v48, v48, v50, v46
        v_fma_f32 v49, v49, v50, v47
        v_mul_f32 v48, {GELU_C}, v48
        v_mul_f32 v49, {GELU_C}, v49
        v_exp_f32 v48, v48
        v_exp_f32 v49, v49
        s_nop 0
        v_add_f32 v48, 1.0, v48
        v_add_f32 v49, 1.0, v49
        v_rcp_f32 v48, v48
        v_rcp_f32 v49, v49
        s_nop 0
        v_mul_f32 v46, v46, v48
        v_mul_f32 v47, v47, v49
        v_cvt_pk_bf16_f32 v44, v46, v47
        v_lshlrev_b32 v46, 16, v44
        v_and_b32 v47, 0xffff0000, v44
        v_lshlrev_b32 v48, 16, v45
        v_and_b32 v49, 0xffff0000, v45
        v_cmp_gt_u32 vcc, s53, v2
        v_mul_f32 v46, v46, v48
        v_mul_f32 v47, v47, v49
        v_cvt_pk_bf16_f32 v44, v46, v47
        v_cndmask_b32 v44, 0, v44, vcc
        ds_write_b32 v22, v44 offset:{L_H}
        s_waitcnt lgkmcnt(0)
        s_endpgm
        """)
        YG = int(self.opt.get("yg", 2))
        A(f"""
        L_c0:
        v_mov_b32 v21, {L_FLAG}
        v_mov_b32 v6, 1
        v_mov_b32 v7, s31
        ds_write_b32 v22, v44 offset:{L_Q}
        ds_write_b64 v21, v[6:7]
        """)
        if self.opt.get("st2") != "s":
            self.stamp(3)
        A(f"""
        v_and_b32 v4, 3, v0
        v_lshlrev_b32 v4, 3, v4
        s_lshl_b32 s54, s28, 7
        s_add_u32 s54, s54, {WS_ML}
        s_add_u32 s46, s26, s54
        s_addc_u32 s47, s27, 0
        s_lshl_b32 s54, s29, 4
        v_mov_b32 v24, s54
        s_lshl_b32 s54, s30, 10
        s_add_u32 s54, s54, {WS_Q}
        v_lshl_add_u32 v26, v0, 4, s54
        s_lshl_b32 s54, s28, 13
        s_add_u32 s54, s54, {WS_Q + 4096}
        v_lshl_add_u32 v27, v0, 4, s54
        s_lshl_b32 s54, s37, 16
        s_lshl_b32 s55, s38, 5
        s_add_u32 s54, s54, s55
        s_lshr_b32 s55, s37, 2
        s_xor_b32 s55, s55, {YG & 1}
        s_lshl_b32 s55, s55, 13
        {"s_add_u32 s54, s54, s55" if YG < 2 else ""}
        s_add_u32 s54, s54, {WS_Y}
        v_bfe_u32 v5, v0, 1, 3
        v_lshlrev_b32 v5, 10, v5
        v_lshl_add_u32 v5, v3, {14 if YG < 2 else 13}, v5
        v_and_b32 v6, 1, v0
        v_lshl_add_u32 v5, v6, 4, v5
        v_add_u32 v28, s54, v5
        v_lshl_add_u32 v29, v0, 1, s39
        v_lshlrev_b32 v30, 3, v0
        v_mov_b32 v31, {LOG2E}
        v_cmp_eq_u32 vcc, 0, v6
        s_lshl_b32 s54, s33, 16
        s_and_b32 s55, s33, 0xffff0000
        v_mov_b32 v20, s55
        v_mov_b32 v23, s54
        v_cndmask_b32 v20, v20, v23, vcc
        v_mov_b32 v13, s31
        v_mov_b32 v15, s31
        v_mov_b32 v32, s31
        v_mov_b32 v33, s31
        s_add_u32 s42, s31, 1
        v_mov_b32 v41, s42
        v_mov_b32 v43, s42
        {"s_mov_b32 s43, 1" if self.opt.get("nolocal") else ""}
        """)
        self.lds_wait("c", 21, 12, 4, 2)
        self.stamp(4)
        quad = ("quad_perm:[1,0,3,2]", "quad_perm:[2,3,0,1]")
        A(f"""
        ds_read_b64 v[8:9], v4 offset:{L_ML}
        s_waitcnt lgkmcnt(0)
        v_mov_b32 v12, v8
        """)
        self.row_allreduce("v_max_f32", 12, quad)
        A("""
        v_sub_f32 v8, v8, v12
        v_mul_f32 v8, v8, v31
        v_exp_f32 v8, v8
        s_nop 0
        v_mul_f32 v14, v8, v9
        """)
        self.row_allreduce("v_add_f32", 14, quad)
        A(f"""
        s_mov_b64 exec, 1
        global_store_dwordx4 v24, v[12:15], s[46:47] sc1
        s_mov_b64 exec, -1
        s_mov_b32 s32, 0
        {"s_branch L_mldone" if self.opt.get("x_noml") else ""}
        L_mlpoll:
        s_load_dwordx16 s[48:63], s[46:47], 0 glc
        s_load_dwordx16 s[64:79], s[46:47], 64 glc
        s_add_u32 s32, s32, 1
        s_waitcnt lgkmcnt(0)
        s_xor_b32 s80, s49, s31
        """)
        for k in range(1, 16):
            A(f"s_xor_b32 s81, s{49+2*k}, s31")
            A("s_or_b32 s80, s80, s81")
        A(f"""
        s_cmp_eq_u32 s80, 0
        s_cbranch_scc1 L_mldone
        s_sleep {self.opt.get("mlsleep", 4)}
        s_cmp_lt_u32 s32, {SPIN_MAX}
        s_cbranch_scc1 L_mlpoll
        L_mldone:
        v_mov_b32 v8, s48
        """)
        for k in range(1, 8):
            A(f"v_max_f32 v8, s{48+4*k}, v8")
        for k in range(8):
            A(f"v_sub_f32 v{64+k}, s{48+4*k}, v8")
        for k in range(8):
            A(f"v_mul_f32 v{64+k}, v{64+k}, v31")
        for k in range(8):
            A(f"v_exp_f32 v{64+k}, v{64+k}")
        A("v_mul_f32 v9, s50, v64")
        for k in range(1, 8):
            A(f"v_fmac_f32 v9, s{50+4*k}, v{64+k}")
        A("""
        v_rcp_f32 v9, v9
        s_mov_b32 s32, 0
        v_mov_b32 v10, 1
        ds_write_b64 v21, v[8:9] offset:32
        ds_write_b32 v21, v10 offset:24
        """)
        if self.opt.get("st2") == "y":
            self.stamp(1)
        A("""
        s_waitcnt vmcnt(0) lgkmcnt(0)
        s_barrier
        """)
        self.stamp(5)
        if self.opt.get("x_notail"):
            self.stamp(6)
            A("s_barrier")
            A("s_branch L_c0_end")
        for k in range(2):
            A(f"ds_read2st64_b64 v[{64+4*k}:{67+4*k}], v30 offset0:{L_OS//512+2*k} offset1:{L_OS//512+2*k+1}")
        A("""
        s_cmp_eq_u32 s43, 0
        s_waitcnt lgkmcnt(1)
        v_pk_add_f32 v[64:65], v[64:65], v[66:67]
        s_waitcnt lgkmcnt(0)
        v_pk_add_f32 v[68:69], v[68:69], v[70:71]
        v_add_f32 v40, v64, v68
        v_add_f32 v42, v65, v69
        s_cbranch_scc0 L_o_remote
        global_store_dwordx4 v26, v[40:43], s[26:27]
        L_opoll:
        """)
        if self.opt.get("st2") == "o":
            self.stamp(1)
        for k in range(8):
            A(f"global_load_dwordx4 v[{64+4*k}:{67+4*k}], v27, s[26:27] offset:{1024*k-4096} sc1")

        def chk(k, wait=True):
            r = 64 + 4 * k
            if wait:
                A(f"s_waitcnt vmcnt({7-k})")
                if k == 0 and self.opt.get("st2") == "o":
                    self.stamp(2)
            A(f"v_xor_b32 v{48+k}, s42, v{r+1}")
            A(f"v_bitop3_b32 v{48+k}, v{r+3}, s42, v{48+k} bitop3:0xbe")

        def anybad():
            A("""
            v_or3_b32 v6, v48, v49, v50
            v_or3_b32 v7, v51, v52, v53
            v_or3_b32 v6, v6, v54, v55
            v_or_b32 v6, v6, v7
            v_cmp_ne_u32 vcc, 0, v6
            """)

        def masks():
            for k in range(8):
                A(f"v_cmp_ne_u32 s[{64+2*k}:{65+2*k}], 0, v{48+k}")

        def reload():
            for k in range(8):
                A(f"s_mov_b64 exec, s[{64+2*k}:{65+2*k}]")
                A(f"global_load_dwordx4 v[{64+4*k}:{67+4*k}], v27, s[26:27] offset:{1024*k-4096} sc1")
            A("s_mov_b64 exec, -1")
        for k in range(8):
            chk(k)
        anybad()
        if self.opt.get("st2") == "o":
            self.stamp(3)
        A("s_cbranch_vccz L_osum")
        masks()
        reload()
        A(f"""
        L_oround:
        s_add_u32 s32, s32, 1
        s_cmp_lt_u32 s32, {SPIN_MAX}
        s_cbranch_scc0 L_osum
        """)
        masks()
        reload()
        A("s_waitcnt vmcnt(8)")
        for k in range(8):
            chk(k, False)
        anybad()
        A("""
        s_cbranch_vccnz L_oround
        L_osum:
        s_waitcnt vmcnt(0)
        v_add_f32 v44, v64, v68
        v_add_f32 v45, v66, v70
        v_add_f32 v46, v72, v76
        v_add_f32 v47, v74, v78
        v_add_f32 v56, v80, v84
        v_add_f32 v57, v82, v86
        v_add_f32 v58, v88, v92
        v_add_f32 v59, v90, v94
        v_pk_add_f32 v[44:45], v[44:45], v[46:47]
        v_pk_add_f32 v[56:57], v[56:57], v[58:59]
        v_pk_add_f32 v[44:45], v[44:45], v[56:57]
        """)
        A(f"""
        v_cvt_pk_bf16_f32 v44, v44, v45
        L_odone:
        ds_write_b32 v22, v44 offset:{L_OB}
        s_mov_b32 s34, s32
        s_mov_b32 s32, 0
        """)
        self.stamp(6)
        A(f"""
        s_waitcnt lgkmcnt(0)
        s_barrier
        s_mov_b64 vcc, -1
        {"global_store_dwordx4 v26, v[40:43], s[26:27] sc1" if self.opt.get("oclean") == "1" else ""}
        global_load_dwordx4 v[8:11], v28, s[26:27] sc1
        {"global_store_dwordx4 v26, v[40:43], s[26:27] sc1" if self.opt.get("oclean") == "2" else ""}
        s_branch L_yload
        L_ypoll:
        s_bcnt1_i32_b64 s48, vcc
        s_cmp_gt_u32 s48, {self.opt.get("yth", 16)}
        s_cbranch_scc1 L_ysleep
        L_yload:
        s_add_u32 s32, s32, 1
        s_cmp_ge_u32 s32, {SPIN_MAX}
        s_cbranch_scc1 L_ydone
        s_mov_b64 exec, vcc
        global_load_dwordx4 v[8:11], v28, s[26:27] sc1
        s_mov_b64 exec, -1
        s_waitcnt vmcnt(1)
        v_xor_b32 v6, s31, v9
        v_bitop3_b32 v6, v11, s31, v6 bitop3:0xbe
        v_cmp_ne_u32 vcc, 0, v6
        s_cbranch_vccnz L_ypoll
        L_ydone:
        {"s_memrealtime s[88:89]" if self.diag and self.opt.get("st2") == "y" else ""}
        s_waitcnt vmcnt(0)
        v_permlane32_swap_b32 v8, v10
        v_add_f32 v16, v8, v10
        v_add_f32 v18, v8, v10
        s_nop 1
        v_permlane16_swap_b32 v16, v18
        v_add_f32 v16, v16, v18
        """)
        self.row_allreduce("v_add_f32", 16, ("quad_perm:[2,3,0,1]", "row_ror:4", "row_ror:8"))
        self.round_bf16(16, 16)
        A("""
        v_add_f32 v12, v20, v16
        v_mov_b32 v18, v16
        """)
        self.round_bf16(12, 12)
        A("""
        v_permlane32_swap_b32 v16, v18
        v_add_f32 v12, v12, v18
        v_cvt_pk_bf16_f32 v12, v12, v12
        s_mov_b64 exec, 3
        global_store_short v29, v12, s[22:23] %s
        s_cmp_lg_u32 s30, 0
        s_cbranch_scc1 L_c0_end
        s_mov_b64 exec, 0xffff
        global_store_dwordx2 v30, v[32:33], s[26:27]
        L_c0_end:
        """ % self.opt.get("outpol", ""))
        self.stamp(7)
        self.dump_stamps(0, 8)
        if self.diag:
            A("""
            s_lshl_b32 s34, s34, 10
            s_lshl_b32 s32, s32, 20
            s_or_b32 s35, s35, s34
            s_or_b32 s35, s35, s32
            v_mov_b32 v2, s35
            v_mov_b32 v3, 0
            global_store_dwordx2 v1, v[2:3], s[26:27] offset:120
            """)
        if self.opt.get("dbgstamp"):
            A(f"""
            s_waitcnt vmcnt(0)
            v_mov_b32 v1, 0
            v_mov_b32 v2, 1
            global_atomic_add v3, v1, v2, s[24:25] offset:252 sc0 sc1
            s_waitcnt vmcnt(0)
            v_readfirstlane_b32 s48, v3
            s_cmp_lg_u32 s48, 255
            s_cbranch_scc1 L_end
            s_mov_b64 exec, -1
            v_mov_b32 v1, 0
            s_mov_b32 s48, {WS_STAMP}
            v_lshl_add_u32 v4, v0, 7, s48
            """)
            for k in range(16):
                src = 0 if k == 15 else k
                for q in range(4):
                    A(f"v_add_u32 v5, {q*8192 + 8*src}, v4")
                    A(f"global_load_dword v{8+q}, v5, s[26:27] sc1")
                A("s_waitcnt vmcnt(0)")
                op = "v_min_u32" if k == 15 else "v_max_u32"
                A(f"{op} v8, v8, v9")
                A(f"{op} v10, v10, v11")
                A(f"{op} v8, v8, v10")
                self.wave_reduce_to_sgpr(op, 8, 49)
                self.nop(2)
                A("v_mov_b32 v6, s49")
                A(f"global_store_dword v1, v6, s[24:25] offset:{4*k}")
                if k == int(self.opt.get("amp", -1)):
                    A("s_mov_b32 s50, s49")
            if int(self.opt.get("amp", -1)) >= 0:
                A(f"""
                s_sub_u32 s50, s50, s49
                s_mul_i32 s50, s50, {self.opt.get("ampk", 10)}
                s_min_u32 s50, s50, 100000
                s_memrealtime s[52:53]
                s_waitcnt lgkmcnt(0)
                L_amp:
                s_memrealtime s[54:55]
                s_waitcnt lgkmcnt(0)
                s_sub_u32 s54, s54, s52
                s_cmp_lt_u32 s54, s50
                s_cbranch_scc1 L_amp
                """)
        A(f"""
        s_endpgm
        L_ysleep:
        s_sleep {self.opt.get("ysleep", 4)}
        s_branch L_yload
        L_o_remote:
        global_store_dwordx4 v26, v[40:43], s[26:27] sc1
        s_branch L_opoll
        """)

    def dma(self, WPOL):
        A = self.A
        A(f"""
        s_mov_b32 s56, s12
        s_mov_b32 s57, s13
        s_mov_b32 s58, 0x400000
        s_mov_b32 s59, 0x20000
        s_mov_b32 s44, s20
        s_mov_b32 s45, s21
        s_mov_b32 s46, 1409024
        s_mov_b32 s47, 0x20000
        v_lshrrev_b32 v24, 3, v0
        v_and_b32 v25, 1, v3
        v_lshlrev_b32 v25, 1, v25
        v_and_b32 v26, 7, v0
        v_xor_b32 v25, v25, v26
        v_lshlrev_b32 v25, 4, v25
        v_lshl_add_u32 v25, v24, 10, v25
        v_xor_b32 v26, 64, v25
        s_lshl_b32 s49, s29, 7
        s_lshl_b32 s50, s28, 17
        s_add_u32 s50, s50, s49
        s_lshl_b32 s48, s34, 15
        s_add_u32 s50, s50, s48
        s_lshl_b32 s51, s34, 1
        s_add_u32 s48, s52, s51
        s_lshl_b32 s48, s48, 13
        s_add_u32 s48, s48, s49
        s_add_u32 s49, s48, 0x2000
        s_cmp_lt_u32 s51, s53
        s_cselect_b32 s54, 0, 0x40000000
        v_or_b32 v27, s54, v25
        s_add_u32 s51, s51, 1
        s_cmp_lt_u32 s51, s53
        s_cselect_b32 s54, 0, 0x40000000
        v_or_b32 v28, s54, v26
        s_lshl_b32 s51, s34, 11
        s_add_u32 m0, s51, {L_W + 16384}
        s_lshl_b32 s54, s34, 12
        buffer_load_dwordx4 v27, s[44:47], s48 offen {WPOL} lds
        s_add_u32 m0, s51, {L_W + 16384 + 1024}
        s_nop 0
        buffer_load_dwordx4 v28, s[44:47], s49 offen {WPOL} lds
        """)
        for jj in range(4):
            A(f"s_add_u32 m0, s54, {L_W + 1024*jj}")
            A(f"s_add_u32 s49, s50, {jj*0x2000}")
            A(f"buffer_load_dwordx4 v{25 + (jj & 1)}, s[56:59], s49 offen {WPOL} lds")

    def kv(self, KVPOL, WPOL):
        A = self.A
        pre = int(self.opt.get("pre", 4))
        YG = int(self.opt.get("yg", 2))
        dw = self.opt.get("diagwave", 7)
        pb = int(self.opt.get("pb", 2))
        A("""
        s_sub_u32 s34, s3, 2
        s_and_b32 s34, s34, 3
        s_lshl_b32 s48, s30, 17
        s_lshl_b32 s49, s34, %d
        s_add_u32 s48, s48, s49
        v_lshl_add_u32 v1, v0, 4, s48
        s_mov_b32 s38, 0x2000000
        s_mov_b32 s39, 0x20000
        s_cmp_ge_u32 s3, 6
        s_cbranch_scc1 %s
        s_setprio 2
        s_waitcnt lgkmcnt(0)
        s_mov_b32 s36, s6
        s_mov_b32 s37, s7
        """ % (10 + pb, "L_val0" if self.opt.get("vbar", "far") == "near" else "L_val"))

        wk = int(self.opt.get("wk", 6))
        wv = int(self.opt.get("wv", 8))
        wv2 = int(self.opt.get("wv2", wv))
        vsw = int(self.opt.get("vsw", 32))

        def load(j, win=0):
            if win and j >= win:
                A(f"s_waitcnt vmcnt({win - 1})")
            off = (j & ((1 << pb) - 1)) * 1024 + (j >> pb) * (4096 << pb)
            if (off & 0xFFF) == 0:
                A(f"s_mov_b32 s48, {off}")
            A(f"buffer_load_dwordx4 v[{32+4*j}:{35+4*j}], v1, s[36:39], s48 offen offset:{off & 0xFFF} {KVPOL}")
        lay = self.opt.get("lay", "far")
        vbar = self.opt.get("vbar", "far")

        def island():
            A("s_branch L_key2")
            if vbar == "near":
                A("L_val0:")
                A("s_barrier")
                A("s_branch L_val")
            if lay != "far":
                A("L_ctrl:")
                self.ctrl(self.opt.get("wqpol", self.opt.get("wpol", "nt")))
            A("L_key2:")
        for j in range(32):
            if j == pre:
                A("s_barrier")
                if lay == "near":
                    island()
            if wk and j == int(self.opt.get("kdone", 31)):
                A(f"v_mov_b32 v20, {L_FLAG}")
                A("v_mov_b32 v4, 1")
                A("s_mov_b64 exec, 1")
                A("ds_add_u32 v20, v4 offset:20")
                A("s_mov_b64 exec, -1")
            load(j, wk)
        if lay == "mid" or (lay == "far" and vbar == "near"):
            island()
        self.stamp(0)
        A(f"""
        v_and_b32 v4, 2, v0
        v_cmp_ne_u32 s[50:51], 0, v4
        v_and_b32 v4, 1, v0
        v_cmp_ne_u32 s[54:55], 0, v4
        v_mov_b32 v20, {L_FLAG}
        v_lshlrev_b32 v21, 4, v2
        v_mov_b32 v31, {LOG2E}
        """)
        self.lds_wait("q", 20, 0, 1, 2)
        A(f"""
        ds_read_b128 v[4:7], v21 offset:{L_Q}
        ds_read_b32 v22, v20 offset:4
        s_waitcnt vmcnt(16) lgkmcnt(0)
        v_readfirstlane_b32 s31, v22
        """)
        self.stamp(1)
        P = lambda j: 32 + 4 * j
        for n, g in enumerate((0, 16)):
            for half in ((range(16),) if n == 0 else (range(8), range(8, 16))):
                if n == 1:
                    A(f"s_waitcnt vmcnt({8 - half[0]})")
                for d in range(4):
                    for j in half:
                        r = P(g + j)
                        A(f"v_dot2_f32_bf16 v{r}, v{r+d}, v{4+d}, {'0' if d == 0 else 'v%d' % r}")
            for j in range(8):
                A(f"v_add_f32_dpp v{P(g+j)}, v{P(g+j)}, v{P(g+j)} row_ror:8 row_mask:0xf bank_mask:0x3")
            for j in range(8):
                A(f"v_add_f32_dpp v{P(g+j)}, v{P(g+j+8)}, v{P(g+j+8)} row_ror:8 row_mask:0xf bank_mask:0xc")
            for j in range(4):
                A(f"v_add_f32_dpp v{P(g+j)}, v{P(g+j)}, v{P(g+j)} row_shl:4 row_mask:0xf bank_mask:0x5")
            for j in range(4):
                A(f"v_add_f32_dpp v{P(g+j)}, v{P(g+j+4)}, v{P(g+j+4)} row_shr:4 row_mask:0xf bank_mask:0xa")
            for j in range(2):
                A(f"v_cndmask_b32 v{8+j}, v{P(g+j)}, v{P(g+j+2)}, s[50:51]")
                A(f"v_cndmask_b32 v{10+j}, v{P(g+j+2)}, v{P(g+j)}, s[50:51]")
            self.nop(1)
            A("v_add_f32_dpp v8, v10, v8 quad_perm:[2,3,0,1] row_mask:0xf bank_mask:0xf")
            A("v_add_f32_dpp v9, v11, v9 quad_perm:[2,3,0,1] row_mask:0xf bank_mask:0xf")
            A("v_cndmask_b32 v11, v9, v8, s[54:55]")
            A("v_cndmask_b32 v10, v8, v9, s[54:55]")
            self.nop(1)
            A(f"v_add_f32_dpp v{16+n}, v11, v10 quad_perm:[1,0,3,2] row_mask:0xf bank_mask:0xf")
        A(f"""
        v_cvt_pk_bf16_f32 v18, v16, v17
        v_lshlrev_b32 v16, 16, v18
        v_and_b32 v17, 0xffff0000, v18
        v_mul_f32 v16, {SCALE}, v16
        v_mul_f32 v17, {SCALE}, v17
        v_cvt_pk_bf16_f32 v18, v16, v17
        v_lshlrev_b32 v16, 16, v18
        v_and_b32 v17, 0xffff0000, v18
        v_max_f32 v18, v16, v17
        """)
        self.wave_reduce_to_sgpr("v_max_f32", 18, 49)
        A(f"""
        s_lshl_b32 s48, s34, 9
        s_add_u32 s48, s48, {L_P}
        v_lshl_add_u32 v19, v0, 2, s48
        ds_write2st64_b32 v19, v16, v17 offset0:0 offset1:1
        v_subrev_f32 v8, s49, v16
        v_subrev_f32 v9, s49, v17
        v_mul_f32 v8, v8, v31
        v_mul_f32 v9, v9, v31
        v_exp_f32 v8, v8
        v_exp_f32 v9, v9
        s_nop 0
        v_add_f32 v18, v8, v9
        """)
        self.row_allreduce("v_add_f32", 18)
        self.nop(2)
        A("v_add_f32_dpp v18, v18, v18 row_bcast:15 row_mask:0xa bank_mask:0xf")
        self.nop(2)
        A("v_add_f32_dpp v18, v18, v18 row_bcast:31 row_mask:0xc bank_mask:0xf")
        A(f"""
        s_lshl_b32 s48, s34, 3
        v_mov_b32 v16, s48
        v_mov_b32 v19, s49
        v_mov_b32 v17, 1
        s_mov_b32 exec_lo, 0
        s_mov_b32 exec_hi, 0x80000000
        ds_write2_b32 v16, v19, v18 offset0:{L_ML//4} offset1:{L_ML//4+1}
        ds_add_u32 v20, v17 offset:12
        s_mov_b64 exec, -1
        s_setprio 0
        """)
        self.stamp(2)
        if int(self.opt.get("dmaat", 32)) >= 0:
            self.lds_wait("v", 20, 16, int(self.opt.get("dmacnt", 4)), 1)
        if not self.opt.get("x_nodma"):
            self.dma(WPOL)
        self.stamp(3)
        A(f"""
        v_bfe_u32 v24, v2, 3, 1
        v_and_b32 v25, 1, v3
        v_lshl_add_u32 v24, v25, 1, v24
        v_xor_b32 v24, s34, v24
        v_lshlrev_b32 v24, 5, v24
        v_lshl_add_u32 v24, v3, 10, v24
        v_lshrrev_b32 v25, 2, v2
        v_lshl_add_u32 v24, v25, 7, v24
        v_and_b32 v25, 3, v2
        v_lshl_add_u32 v24, v25, 3, v24
        v_lshlrev_b32 v27, 4, v3
        v_mov_b32 v26, 1
        s_lshl_b32 s48, s29, 16
        s_and_b32 s49, s28, 7
        s_lshl_b32 s49, s49, 10
        s_add_u32 s48, s48, s49
        s_lshr_b32 s49, s28, 3
        s_lshl_b32 s49, s49, {14 if YG < 2 else 13}
        s_add_u32 s48, s48, s49
        s_lshr_b32 s49, s29, 2
        s_xor_b32 s49, s49, {YG & 1}
        s_lshl_b32 s49, s49, 13
        {"s_add_u32 s48, s48, s49" if YG < 2 else ""}
        s_lshl_b32 s49, s34, 8
        s_add_u32 s48, s48, s49
        s_add_u32 s48, s48, {WS_Y}
        v_lshl_add_u32 v29, v0, 4, s48
        s_waitcnt lgkmcnt(0)
        s_barrier
        """)
        self.stamp(4)
        A(f"""
        ds_read_b128 v[48:51], v27 offset:{L_H}
        ds_read_b128 v[52:55], v27 offset:{L_H + 64}
        s_mov_b64 exec, 1
        s_waitcnt vmcnt(0)
        ds_add_u32 v20, v26 offset:8
        s_mov_b64 exec, -1
        """)
        self.lds_wait("w", 20, 8, 4, 0, tmp=26)
        for kk in range(2):
            A(f"ds_read_b64_tr_b16 v[{112+4*kk}:{113+4*kk}], v24 offset:{L_W + 16384 + 4096*kk}")
            A(f"ds_read_b64_tr_b16 v[{114+4*kk}:{115+4*kk}], v24 offset:{L_W + 16384 + 4096*kk + 512}")
        for kk in range(4):
            A(f"ds_read_b64_tr_b16 v[{96+4*kk}:{97+4*kk}], v24 offset:{L_W + 4096*kk}")
            A(f"ds_read_b64_tr_b16 v[{98+4*kk}:{99+4*kk}], v24 offset:{L_W + 4096*kk + 512}")
        A("""
        s_waitcnt lgkmcnt(8)
        v_mfma_f32_16x16x32_bf16 v[20:23], v[48:51], v[112:115], 0
        v_mfma_f32_16x16x32_bf16 v[20:23], v[52:55], v[116:119], v[20:23]
        v_mov_b32 v5, s31
        v_mov_b32 v7, s31
        s_nop 5
        v_mov_b32 v6, v20
        s_waitcnt lgkmcnt(0)
        """)
        self.stamp(6)
        A("s_barrier")
        for kk in range(4):
            A(f"ds_read_b128 v[{32+4*kk}:{35+4*kk}], v27 offset:{L_OB + 64*kk}")
        for kk in range(4):
            A(f"s_waitcnt lgkmcnt({3-kk})")
            c = "0" if kk == 0 else "v[16:19]"
            A(f"v_mfma_f32_16x16x32_bf16 v[16:19], v[{32+4*kk}:{35+4*kk}], v[{96+4*kk}:{99+4*kk}], {c}")
        A("""
        s_nop 6
        s_mov_b64 exec, 0xffff
        v_mov_b32 v4, v16
        global_store_dwordx4 v29, v[4:7], s[26:27] sc1
        """)
        if self.diag and dw < 4:
            A(f"s_cmp_lg_u32 s34, {dw}")
            A("s_cbranch_scc1 L_end")
            self.stamp(5)
            self.dump_stamps(8, 7)
        A("s_endpgm")
        A(f"""
        L_val:
        s_setprio 1
        v_and_b32 v4, 2, v2
        v_cmp_eq_u32 vcc, 0, v4
        v_mov_b32 v5, 0xffff0000
        v_mov_b32 v6, 0xffff
        v_cndmask_b32 v5, v5, v6, vcc
        v_and_b32 v4, 13, v2
        """)
        for d in range(4):
            A(f"v_cmp_eq_u32 vcc, {4*d}, v4")
            self.nop(2)
            A(f"v_cndmask_b32 v{8+d}, 0, v5, vcc")
        A(f"""
        v_mov_b32 v20, {L_FLAG}
        s_lshl_b32 s48, s34, 9
        s_add_u32 s49, s48, {L_P}
        v_lshl_add_u32 v19, v0, 2, s49
        s_add_u32 s49, s48, {L_OS}
        v_lshl_add_u32 v18, v0, 3, s49
        v_mov_b32 v23, {LOG2E}
        v_mov_b32 v6, 1
        s_waitcnt lgkmcnt(0)
        s_mov_b32 s36, s8
        s_mov_b32 s37, s9
        {"s_barrier" if vbar != "near" else ""}
        """)
        if wk:
            self.lds_wait("k", 20, 20, 4, 1)
        dmaat = int(self.opt.get("dmaat", 32))
        for j in range(33):
            if j == dmaat:
                A("s_mov_b64 exec, 1")
                A("ds_add_u32 v20, v6 offset:16")
                A("s_mov_b64 exec, -1")
            if j < 32:
                load(j, wv if j < vsw else wv2)
        self.stamp(0)
        self.lds_wait("p", 20, 24, 1, 1)
        A(f"""
        ds_read2st64_b32 v[16:17], v19 offset0:0 offset1:1
        ds_read_b64 v[4:5], v20 offset:32
        s_waitcnt lgkmcnt(0)
        v_sub_f32 v16, v16, v4
        v_sub_f32 v17, v17, v4
        v_mul_f32 v16, v16, v23
        v_mul_f32 v17, v17, v23
        v_exp_f32 v16, v16
        v_exp_f32 v17, v17
        s_nop 0
        v_mul_f32 v16, v16, v5
        v_mul_f32 v17, v17, v5
        v_cvt_pk_bf16_f32 v16, v16, v16
        v_cvt_pk_bf16_f32 v17, v17, v17
        s_nop 0
        """)
        self.stamp(1)

        def prep(j):
            a = 24 + 4 * (j & 1)
            for d in range(4):
                A(f"v_and_b32_dpp v{a+d}, v{16 + (j >> 4)}, v{8+d} row_newbcast:{j & 15} row_mask:0xf bank_mask:0xf")
        prep(0)
        for j in range(32):
            if j < 31:
                prep(j + 1)
            else:
                self.nop(1)
            A(f"s_waitcnt vmcnt({31-j})")
            if j == 31:
                self.stamp(5)
            if j == 20:
                self.stamp(2)
            a = 24 + 4 * (j & 1)
            c = "0" if j == 0 else "v[12:15]"
            A(f"v_mfma_f32_16x16x32_bf16 v[12:15], v[{a}:{a+3}], v[{32+4*j}:{35+4*j}], {c}")
        A("""
        s_nop 7
        ds_write2_b32 v18, v12, v14 offset0:0 offset1:1
        s_waitcnt lgkmcnt(0)
        s_barrier
        """)
        self.stamp(4)
        if self.diag and dw >= 4:
            A(f"s_cmp_lg_u32 s34, {dw - 4}")
            A("s_cbranch_scc1 L_end")
            self.stamp(3)
            self.stamp(6)
            self.dump_stamps(8, 7)


if __name__ == "__main__":
    out = sys.argv[1] if len(sys.argv) > 1 else "k1.s"
    opts = dict(a.split("=") for a in sys.argv[2:])
    diag = bool(int(opts.pop("diag", "0")))
    if "diagwave" in opts:
        opts["diagwave"] = int(opts["diagwave"])
    open(out, "w").write(Gen(diag, **opts).build())
```
